```python
import torch

def _softmax(x, axis=-1):
    return torch.softmax(x, dim=axis)
def _gelu(x):
    return torch.nn.functional.gelu(x, approximate="tanh")
def _silu(x):
    return torch.nn.functional.silu(x)
def _sigmoid(x):
    return torch.sigmoid(x)
def _layernorm(x, axis=-1, eps=1e-5):
    m = x.mean(dim=axis, keepdim=True)
    v = x.var(dim=axis, keepdim=True, unbiased=False)
    return (x - m) / torch.sqrt(v + eps)
def _scatter_add(tgt, idx, src, axis=0):
    return tgt.clone().index_add_(axis, idx, src)
def _segment_sum(src, seg, n):
    out = torch.zeros((n,) + src.shape[1:], dtype=src.dtype)
    return out.index_add_(0, seg, src)
def _pad(x, pw):
    flat = tuple(v for pair in reversed(pw) for v in pair)
    return torch.nn.functional.pad(x, flat)

kernel_name = 'concat_heads__gqa_block_cached__gqa_block_cached__near_ridge'

def setup_inputs():

    _w = (lambda a: (lambda t: t.to(torch.bfloat16) if t.is_floating_point() else t)(torch.as_tensor(a)))
    def _A_setup():
        B, Sq, D = 8, 64, 512
        Hq, Hkv, Sk, Dh = 32, 8, 512, 128
        assert Hq % Hkv == 0, (Hq, Hkv)
        return {
            "x": _w((lambda *s: torch.randn(*s, dtype=torch.bfloat16) * 0.8)(B, Sq, D)),
            "k_cache": _w((lambda *s: torch.randn(*s, dtype=torch.bfloat16) * 0.8)(B, Hkv, Sk, Dh)),
            "v_cache": _w((lambda *s: torch.randn(*s, dtype=torch.bfloat16) * 0.05)(B, Hkv, Sk, Dh)),
            "wq": _w((lambda *s: torch.randn(*s, dtype=torch.bfloat16) * 0.8)(D, Hq * Dh) * (D ** -0.5)),
            "wo": _w((lambda *s: torch.randn(*s, dtype=torch.bfloat16) * 0.05)(Hq * Dh, D) * ((Hq * Dh) ** -0.5)),
        }
    _A_in = _A_setup()

    def _B_setup():
        B, Sq, D = 8, 64, 512
        Hq, Hkv, Sk, Dh = 32, 8, 512, 128
        assert Hq % Hkv == 0, (Hq, Hkv)
        return {
            "x": _w((lambda *s: torch.randn(*s, dtype=torch.bfloat16) * 0.8)(B, Sq, D)),
            "k_cache": _w((lambda *s: torch.randn(*s, dtype=torch.bfloat16) * 0.8)(B, Hkv, Sk, Dh)),
            "v_cache": _w((lambda *s: torch.randn(*s, dtype=torch.bfloat16) * 0.05)(B, Hkv, Sk, Dh)),
            "wq": _w((lambda *s: torch.randn(*s, dtype=torch.bfloat16) * 0.8)(D, Hq * Dh) * (D ** -0.5)),
            "wo": _w((lambda *s: torch.randn(*s, dtype=torch.bfloat16) * 0.05)(Hq * Dh, D) * ((Hq * Dh) ** -0.5)),
        }
    _B_in = _B_setup()

    return {
        "A_x": _A_in["x"],
        "A_k_cache": _A_in["k_cache"],
        "A_v_cache": _A_in["v_cache"],
        "A_wq": _A_in["wq"],
        "A_wo": _A_in["wo"],
        "B_x": _B_in["x"],
        "B_k_cache": _B_in["k_cache"],
        "B_v_cache": _B_in["v_cache"],
        "B_wq": _B_in["wq"],
        "B_wo": _B_in["wo"],
    }

def reference(A_x, A_k_cache, A_v_cache, A_wq, A_wo, B_x, B_k_cache, B_v_cache, B_wq, B_wo):
    def _A_ref(x, k_cache, v_cache, wq, wo):
        B, Sq, D = x.shape
        Hq, Dh = 32, 128
        Hkv = k_cache.shape[1]
        rep = Hq // Hkv
        q = (lambda x, *d: x.permute(*d))((x @ wq).reshape(B, Sq, Hq, Dh), 0, 2, 1, 3)
        k = (lambda x, n, axis: torch.repeat_interleave(x, n, dim=axis))(k_cache, rep, axis=1)
        v = (lambda x, n, axis: torch.repeat_interleave(x, n, dim=axis))(v_cache, rep, axis=1)
        scores = torch.einsum("bhqd,bhkd->bhqk", q, k) * (Dh ** -0.5)
        p = _softmax(scores, axis=-1)
        o = torch.einsum("bhqk,bhkd->bhqd", p, v)
        return (lambda x, *d: x.permute(*d))(o, 0, 2, 1, 3).reshape(B, Sq, Hq * Dh) @ wo

    def _B_ref(x, k_cache, v_cache, wq, wo):
        B, Sq, D = x.shape
        Hq, Dh = 32, 128
        Hkv = k_cache.shape[1]
        rep = Hq // Hkv
        q = (lambda x, *d: x.permute(*d))((x @ wq).reshape(B, Sq, Hq, Dh), 0, 2, 1, 3)
        k = (lambda x, n, axis: torch.repeat_interleave(x, n, dim=axis))(k_cache, rep, axis=1)
        v = (lambda x, n, axis: torch.repeat_interleave(x, n, dim=axis))(v_cache, rep, axis=1)
        scores = torch.einsum("bhqd,bhkd->bhqk", q, k) * (Dh ** -0.5)
        p = _softmax(scores, axis=-1)
        o = torch.einsum("bhqk,bhkd->bhqd", p, v)
        return (lambda x, *d: x.permute(*d))(o, 0, 2, 1, 3).reshape(B, Sq, Hq * Dh) @ wo

    a = _A_ref(A_x, A_k_cache, A_v_cache, A_wq, A_wo)
    b = _B_ref(B_x, B_k_cache, B_v_cache, B_wq, B_wo)
    return torch.concatenate([a, b], axis=-1)
```

```python
import sys, re, math

NAME = "concat_heads__gqa_block_cached__gqa_block_cached__near_ridge"
SLOT = 40960
AUX = 32768
QSCALE = math.log2(math.e) / math.sqrt(128.0)


def f2u(x):
    import struct
    return struct.unpack("<I", struct.pack("<f", x))[0]


class Cfg:
    nt_w = ""
    nt_kv = ""
    st_pol = "sc1"
    red_pol = "sc1"
    out_pol = ""
    spin = 2000000
    ST0 = 0
    FL0 = 90
    FL1 = 122
    endbar = True
    psleep = 0
    remap = True
    span = False
    tst = False
    itlb = True
    STS = 4
    stmode = 'spread'
    prio = 0
    pace = ''
    pace0 = 19
    D1 = 7
    D2 = 7
    D3 = 8
    BL = 3
    stamps = False
    lstamps = False
    codepf = True
    thr_log2 = 24.0
    rot = 8
    WP = 2
    dbg = ''
    verbose = False
    CAP = 4
    CAPB = 2
    BARC = 4
    MINLEAD = 3
    WL = 3
    nodrain = False
    pro = 4
    plan = '1111112'
    force_rare = False


class Stream:
    def __init__(self):
        self.lines = []
        self.dsq = []
        self.nid = 0

    def raw(self, t):
        for l in t.strip("\n").split("\n"):
            self.lines.append(l if l.endswith(":") else "  " + l.strip())

    def ds(self, t):
        if len(self.dsq) >= 15:
            self.lines.append("  s_waitcnt lgkmcnt(11)")
            self.dsq = self.dsq[-11:]
        self.nid += 1
        self.dsq.append(self.nid)
        self.lines.append("  " + t)
        return self.nid

    def need(self, ids):
        pos = [self.dsq.index(i) for i in ids if i in self.dsq]
        if not pos:
            return
        p = max(pos)
        n = len(self.dsq) - 1 - p
        self.lines.append("  s_waitcnt lgkmcnt(%d)" % n)
        self.dsq = self.dsq[p + 1:]

    def drain(self):
        if self.dsq:
            self.lines.append("  s_waitcnt lgkmcnt(0)")
        self.dsq = []

    def text(self):
        return "\n".join(self.lines) + "\n"


def vr(a, n=1):
    return "v%d" % a if n == 1 else "v[%d:%d]" % (a, a + n - 1)


def mfma(d, a, b, c):
    cs = c if isinstance(c, str) else vr(c, 16)
    return "v_mfma_f32_32x32x16_bf16 %s, %s, %s, %s" % (vr(d, 16), vr(a, 4), vr(b, 4), cs)


V_TID = 0
V_XA0, V_XA1 = 1, 2
V_TA = 3
V_XL, V_KL = 4, 5
V_WQL, V_VL, V_WOL = 6, 7, 8
V_OW, V_OR = 9, 10
V_ST = 11
V_L, V_LT = 12, 13
V_T0, V_T1 = 14, 15
V_PF = 255
FR = 16
XF = 48
ET = 48
PK = 48
ACC = 64
QR = 128
SB = [160, 176]
PB = [192, 200]
NEGM = 208
OF = 128

S_W = 3
S_B, S_HP, S_GRP, S_BR = 6, 7, 16, 17
S_X, S_K, S_V, S_WQ, S_WO = 20, 24, 28, 32, 36
S_WS = 40
S_T0, S_T1, S_T2 = 44, 45, 46
S_M8, S_M1 = 47, 48
S_NC0 = 50
S_THR = 54
S_QS = 55
S_ROT = 49
S_IN, S_OUT = 76, 84
S_HPO = 88
S_CNT = 89
S_STB = 56
S_STT = 58


class MF:
    def __init__(self, text, reads=None, chunk=None):
        self.text = text
        self.reads = reads or []
        self.chunk = chunk


class RG:
    def __init__(self, texts, chunk, lead=None):
        self.texts = texts
        self.chunk = chunk
        self.ids = None
        self.lead = lead


def stamp(st, cfg, idx):
    if not cfg.stamps:
        return
    st_l = []
    st_l.append("s_memtime s[%d:%d]" % (S_STT, S_STT + 1))
    st_l.append("s_waitcnt lgkmcnt(0)")
    st_l.append("v_mov_b32 v%d, s%d" % (V_T0, S_STT))
    st_l.append("v_mov_b32 v%d, %d" % (V_T1, idx * 4))
    st_l.append("global_store_dword v%d, v%d, s[%d:%d]" % (V_T1, V_T0, S_STB, S_STB + 1))
    st.dsq = []
    st.raw("\n".join(st_l))


def vcost(t):
    if isinstance(t, tuple):
        return t[1]
    if not isinstance(t, str):
        return 0
    if t.endswith(":"):
        return 0
    if t.startswith(("v_exp", "v_rcp")):
        return 8
    if t.startswith("buffer_store"):
        return 12
    return 4


def emit_schedule(st, mfs, wins, pre, shadow, cfg, D, barrier_at, addr_update, virtual=()):
    n = len(mfs)
    open_gap = {c: g for g, c in barrier_at.items()}
    rd_at, rd_gap, seen, pend = {}, {}, set(), []
    for i, m in enumerate(mfs):
        for rg in m.reads:
            if id(rg) in seen:
                continue
            seen.add(id(rg))
            lead = rg.lead if rg.lead is not None else D
            pend.append((max(i - lead, open_gap[rg.chunk]), i, rg))
    g, k = -1, 0
    while k < len(pend):
        cap = 99 if g < 0 else (cfg.CAPB if g in barrier_at else cfg.CAP)
        used = 0
        while k < len(pend) and pend[k][0] <= g and (used + len(pend[k][2].texts) <= cap or pend[k][1] - g <= cfg.MINLEAD):
            rg = pend[k][2]
            rd_at.setdefault(g, []).append(rg)
            rd_gap[id(rg)] = g
            used += len(rg.texts)
            k += 1
        g += 1
    for _, i, rg in pend:
        if rg.chunk + 1 in open_gap and not getattr(rg, "free", False):
            assert rd_gap[id(rg)] < open_gap[rg.chunk + 1], "read of chunk %d after the next barrier" % rg.chunk
    budget = {}
    for g in range(n):
        b = 24 - 4 * sum(len(rg.texts) for rg in rd_at.get(g, []))
        if g in barrier_at:
            b -= cfg.BARC
        budget[g] = b
    gaps = {}
    upd_done = set()
    for g, c in barrier_at.items():
        if g >= 0 and not cfg.nodrain:
            lo = max(gg for gg, l in rd_at.items() if gg < g and any(not getattr(r, "free", False) for r in l))
            if lo <= g - 1:
                for j, t in enumerate(addr_update(c)):
                    gg = min(g - 1, lo + 1 + j)
                    gaps.setdefault(gg, []).append(t)
                    budget[gg] -= 4
                upd_done.add(g)
    over = 0
    for ops, g0, g1 in wins:
        g = g0
        for o in ops:
            c = vcost(o)
            while g <= g1 and budget[g] < c:
                g += 1
            if g > g1:
                pre.setdefault(g1 + 1, []).append(o)
                over += c
            else:
                gaps.setdefault(g, []).append(o)
                budget[g] -= c
    if cfg.verbose:
        print("window overflow cycles", over, "over-budget gaps", [(g, b) for g, b in budget.items() if b < 0], file=sys.stderr)
    for g in sorted(k for k in rd_at if k < 0):
        if g in barrier_at:
            st.drain()
            st.raw("s_barrier")
            for t in addr_update(barrier_at[g]):
                st.raw(t)
        for rg in rd_at[g]:
            rg.ids = [st.ds(t) for t in rg.texts]

    def emit(t):
        if isinstance(t, tuple):
            st.ds(t[0])
        elif callable(t):
            t()
        else:
            st.raw(t)

    for i, m in enumerate(mfs):
        for t in pre.get(i, []):
            emit(t)
        ids = []
        for rg in m.reads:
            assert rg.ids is not None, "read not issued before use at mfma %d" % i
            ids += rg.ids
        st.need(ids)
        st.raw(m.text)
        if i in shadow:
            for t in shadow[i]:
                emit(t)
        if i in barrier_at:
            if barrier_at[i] not in virtual:
                if not cfg.nodrain:
                    st.drain()
                st.raw("s_barrier")
            if i not in upd_done:
                for t in addr_update(barrier_at[i]):
                    st.raw(t)
        elif i not in shadow:
            ids = []
            for j in range(i + 1, min(n, i + 3)):
                for rg in mfs[j].reads:
                    if rg.ids is not None and (j == i + 1 or j - 1 in shadow or rd_gap[id(rg)] <= i - cfg.WL):
                        ids += rg.ids
            st.need(ids)
        for rg in rd_at.get(i, []):
            rg.ids = [st.ds(t) for t in rg.texts]
        for t in gaps.get(i, []):
            emit(t)


def softmax_ops(t, sub_first):
    S = SB[t & 1]
    P = PB[t & 1]
    ops = []
    e = lambda i: ET + (i % 8)
    seq = []
    for i in range(16):
        if sub_first:
            seq.append(("b", i))
        seq.append(("e", i))
    out = []
    pend = []
    for k, i in seq:
        if k == "b":
            out.append("v_add_f32 v%d, v%d, v%d" % (S + i, NEGM, S + i))
            continue
        out.append("v_exp_f32 v%d, v%d" % (e(i), S + i))
        j = i - 1
        if j >= 1:
            if j == 1:
                out.append("v_add_f32 v%d, v%d, v%d" % (V_LT, e(0), e(1)))
            else:
                out.append("v_add_f32 v%d, v%d, v%d" % (V_LT, e(j), V_LT))
            if j & 1:
                out.append("v_cvt_pk_bf16_f32 v%d, v%d, v%d" % (P + j // 2, e(j - 1), e(j)))
    out.append("v_add_f32 v%d, v%d, v%d" % (V_LT, e(15), V_LT))
    out.append("v_cvt_pk_bf16_f32 v%d, v%d, v%d" % (P + 7, e(14), e(15)))
    return out


def rare_path(t):
    S = SB[t & 1]
    S2 = SB[(t + 1) & 1]
    L = ["L_rare%d:" % t, "s_nop 15", "s_nop 3"]
    L.append("v_max3_f32 v%d, v%d, v%d, v%d" % (V_T0, S, S + 1, S + 2))
    for i in range(3, 15, 2):
        L.append("v_max3_f32 v%d, v%d, v%d, v%d" % (V_T0, V_T0, S + i, S + i + 1))
    L.append("v_max3_f32 v%d, v%d, v%d, 0" % (V_T0, V_T0, S + 15))
    L.append("v_mov_b32 v%d, v%d" % (V_T1, V_T0))
    L.append("s_nop 1")
    L.append("v_permlane32_swap_b32 v%d, v%d" % (V_T0, V_T1))
    L.append("v_max_f32 v%d, v%d, v%d" % (V_T0, V_T0, V_T1))
    L.append("v_sub_f32 v%d, 0, v%d" % (V_T1, V_T0))
    L.append("v_exp_f32 v%d, v%d" % (V_T1, V_T1))
    for i in range(16):
        L.append("v_sub_f32 v%d, v%d, v%d" % (NEGM + i, NEGM + i, V_T0))
        L.append("v_sub_f32 v%d, v%d, v%d" % (S + i, S + i, V_T0))
        if t < 15:
            L.append("v_sub_f32 v%d, v%d, v%d" % (S2 + i, S2 + i, V_T0))
    L.append("v_mul_f32 v%d, v%d, v%d" % (V_L, V_L, V_T1))
    for i in range(64):
        L.append("v_mul_f32 v%d, v%d, v%d" % (ACC + i, ACC + i, V_T1))
    L += softmax_ops(t, False)
    L.append("s_nop 1")
    L.append("s_branch L_back%d" % t)
    return L


S_EP = 80
EPOCH = f"""
s_waitcnt lgkmcnt(0)
s_mul_i32 s{S_EP+2}, s{S_EP+2}, 1664525
s_add_u32 s{S_EP+2}, s{S_EP+2}, 1013904223
"""
H_FL, H_TAG, H_PL, H_RD, H_OUT = 1, 6, 4, 5, 2


def handoff_addr(i, mode):
    o = f"""
v_and_b32 v12, 63, v0
s_lshl_b32 s{S_T1}, s{S_W}, 11
s_lshl_b32 s{S_T2}, s{S_HP}, 3
s_add_u32 s{S_T1}, s{S_T1}, s{S_T2}
v_lshlrev_b32 v13, 9, v12
v_add_u32 v13, s{S_T1}, v13
v_mov_b32 v14, 0x7fff0000
v_cmp_gt_u32 vcc, 4, v12
v_mov_b32 v{H_TAG}, s{S_EP+2}
s_lshl_b32 s{S_T1}, s{S_HP}, 9
v_cndmask_b32 v{H_FL}, v14, v13, vcc
v_not_b32 v{H_TAG+1}, v{H_TAG}
v_and_b32 v13, 15, v12
v_lshlrev_b32 v14, 3, v13
v_add_u32 v{H_PL}, s{S_T1}, v14
s_lshr_b32 s{S_T1}, s{S_HP}, 1
s_lshl_b32 s{S_T1}, s{S_T1}, 11
s_and_b32 s{S_T2}, s{S_HP}, 1
s_lshl_b32 s{S_T2}, s{S_T2}, 8
s_add_u32 s{S_T1}, s{S_T1}, s{S_T2}
v_lshrrev_b32 v14, 4, v12
"""
    if mode == "q":
        o += f"""
s_lshl_b32 s{S_T2}, s{S_W}, 6
s_add_u32 s{S_T1}, s{S_T1}, s{S_T2}
v_lshlrev_b32 v15, 9, v14
v_lshl_add_u32 v15, v13, 2, v15
v_add_u32 v{H_RD}, s{S_T1}, v15
v_lshrrev_b32 v15, 2, v13
v_lshlrev_b32 v15, 11, v15
v_lshl_add_u32 v15, v14, 4, v15
v_and_b32 v13, 3, v13
v_lshl_add_u32 v15, v13, 2, v15
s_lshl_b32 s{S_T2}, s{S_W}, 13
"""
    else:
        o += f"""
v_lshlrev_b32 v15, 9, v14
v_lshl_add_u32 v15, v13, 4, v15
v_add_u32 v{H_RD}, s{S_T1}, v15
v_lshlrev_b32 v15, 11, v13
v_lshl_add_u32 v15, v14, 4, v15
s_mov_b32 s{S_T2}, 0
"""
    o += f"""
s_and_b32 s{S_T1}, s{S_HP}, 3
s_lshl_b32 s{S_T1}, s{S_T1}, 15
s_add_u32 s{S_T2}, s{S_T2}, s{S_T1}
s_lshr_b32 s{S_T1}, s{S_HP}, 2
s_lshl_b32 s{S_T1}, s{S_T1}, 6
s_add_u32 s{S_T2}, s{S_T2}, s{S_T1}
v_add_u32 v{H_OUT}, s{S_T2}, v15
"""
    return [l.strip() for l in o.strip().split("\n") if l.strip()]


def reduce_code(cfg, i, mode, tag):
    nd = 1 if mode == "q" else 4
    B = 16
    if isinstance(i, int):
        o = f"s_mov_b32 s{S_T0}, {i}\n"
    else:
        o = f"s_mov_b32 s{S_T0}, {i}\n"
    o += f"""
s_lshl_b32 s{S_T1}, s{S_T0}, 7
s_mov_b32 s{S_CNT}, 0
L_poll_{tag}:
buffer_load_dwordx2 v[12:13], v{H_PL}, s[{S_IN}:{S_IN+3}], s{S_T1} offen sc1
s_add_u32 s{S_CNT}, s{S_CNT}, 1
s_cmp_gt_u32 s{S_CNT}, {cfg.spin}
s_cbranch_scc1 L_go_{tag}
{"s_sleep %d" % cfg.psleep if cfg.psleep and tag == "l" else ""}
s_waitcnt vmcnt(0)
v_cmp_ne_u64 vcc, v[12:13], v[{H_TAG}:{H_TAG+1}]
s_cbranch_vccnz L_poll_{tag}
L_go_{tag}:
{tstamp(cfg, 4)}
s_lshl_b32 s{S_T1}, s{S_T0}, 14
"""
    sfx = "dword" if nd == 1 else "dwordx4"
    for p in range(16):
        o += f"buffer_load_{sfx} {vr(B + nd*p, nd)}, v{H_RD}, s[{S_WS}:{S_WS+3}], s{S_T1} offen {cfg.red_pol}\n"
        if p < 15:
            o += f"s_add_u32 s{S_T1}, s{S_T1}, 0x10000\n"
    o += f"""
s_add_u32 s{S_T0}, s{S_T0}, s{S_B}
s_and_b32 s{S_T0}, s{S_T0}, 3
s_lshl_b32 s{S_T0}, s{S_T0}, 8
s_mov_b32 s{S_T2}, 0xffff0000
"""
    A = B + 16 * nd
    for p in range(16):
        o += f"s_waitcnt vmcnt({15-p})\n"
        for j in range(nd):
            r = B + nd * p + j
            if p == 0:
                o += f"v_lshlrev_b32 v{A+2*j}, 16, v{r}\nv_and_b32 v{A+2*j+1}, s{S_T2}, v{r}\n"
            else:
                o += f"v_lshlrev_b32 v12, 16, v{r}\nv_and_b32 v13, s{S_T2}, v{r}\nv_add_f32 v{A+2*j}, v12, v{A+2*j}\nv_add_f32 v{A+2*j+1}, v13, v{A+2*j+1}\n"
    o += tstamp(cfg, 5) + "\n"
    for j in range(nd):
        o += f"v_cvt_pk_bf16_f32 v{12+j}, v{A+2*j}, v{A+2*j+1}\n"
    o += f"buffer_store_{sfx} {vr(12, nd)}, v{H_OUT}, s[{S_OUT}:{S_OUT+3}], s{S_T0} offen {cfg.out_pol}\n"
    return o


REG = re.compile(r"v\[(\d+):(\d+)\]|v(\d+)")


def regs_of(tok):
    m = REG.fullmatch(tok.strip().lstrip("-"))
    if not m:
        return set()
    if m.group(3):
        return {int(m.group(3))}
    return set(range(int(m.group(1)), int(m.group(2)) + 1))


def parse(line):
    l = line.split(";")[0].strip()
    if not l or l.endswith(":") or l.startswith("."):
        return None
    op, _, rest = l.partition(" ")
    toks = [t.strip() for t in rest.split(",")] if rest else []
    toks = [t.split(" ")[0] for t in toks]
    rd, wr = set(), set()
    if op.startswith("v_cmp"):
        for t in toks[1:]:
            rd |= regs_of(t)
    elif op.startswith("v_permlane"):
        rd = wr = regs_of(toks[0]) | regs_of(toks[1])
    elif op.startswith(("v_readfirstlane", "v_readlane")):
        rd = regs_of(toks[1])
    elif op.startswith("v_"):
        wr = regs_of(toks[0])
        for t in toks[1:]:
            rd |= regs_of(t)
        if op.startswith(("v_fmac", "v_writelane")):
            rd |= wr
    elif op.startswith("ds_read"):
        wr = regs_of(toks[0]); rd = regs_of(toks[1])
    elif op.startswith("ds_write"):
        rd = regs_of(toks[0]) | regs_of(toks[1])
    elif op.startswith(("buffer_store", "buffer_atomic", "global_store", "global_atomic")):
        for t in toks:
            rd |= regs_of(t)
    elif op.startswith(("buffer_load", "global_load")):
        if "lds" in l.split():
            rd = regs_of(toks[0])
        else:
            wr = regs_of(toks[0]); rd = regs_of(toks[1])
    return op, rd, wr, toks


def fix_hazards(lines):
    out = []
    hist = []
    t = 0
    last_mf = -100
    for line in lines:
        p = parse(line)
        if p is None:
            out.append(line)
            continue
        op, rd, wr, toks = p
        is_mf = op.startswith("v_mfma")
        is_valu = op.startswith("v_") and not is_mf
        is_mem = op.startswith(("ds_", "buffer_", "global_"))
        need = 0
        tt = max(t, last_mf + 8) if is_mf else t
        dist = 0
        for (o2, r2, w2, k2, st2, t2) in reversed(hist[-40:]):
            m2 = o2.startswith("v_mfma")
            v2 = o2.startswith("v_") and not m2
            req = 0
            d = dist
            if v2 and o2.startswith(("v_exp", "v_rcp", "v_log", "v_rsq")) and is_valu and not op.startswith(("v_exp", "v_rcp")) and (w2 & rd):
                req = 1
            if v2 and is_mf and (w2 & rd):
                req = 2
            if v2 and op.startswith("v_permlane") and (w2 & rd):
                req = 2
            if v2 and op.startswith(("v_readfirstlane", "v_readlane")) and (w2 & rd):
                req = 1
            if o2.startswith(("buffer_store_dwordx4", "global_store_dwordx4")) and is_valu and (regs_of(k2[0] if o2.startswith("buffer") else k2[1]) & wr):
                req = 2
            if m2 and (is_valu or is_mem) and (w2 & (rd | wr)):
                req = 12
                d = tt - t2 - 1
            if m2 and is_mf and (w2 & (regs_of(toks[1]) | regs_of(toks[2]))):
                req = 12
                d = tt - t2 - 1
            if m2 and is_mf and (w2 & regs_of(toks[3])) and regs_of(toks[3]) != w2:
                req = 10
                d = tt - t2 - 1
            if m2 and is_valu and (regs_of(k2[3]) & wr):
                req = max(req, 7)
                d = tt - t2 - 1
            if req > d:
                need = max(need, req - d)
            dist += st2
        while need > 0:
            k = min(need, 16)
            out.append("  s_nop %d" % (k - 1))
            hist.append(("s_nop", set(), set(), [], k, t))
            t += k
            need -= k
        tt = max(t, last_mf + 8) if is_mf else t
        st_ = int(toks[0]) + 1 if op == "s_nop" else 1
        hist.append((op, rd, wr, toks, st_, tt))
        t = tt + st_
        if is_mf:
            last_mf = tt
        out.append(line)
    return out


TS = [4, 8, 10, 64, 66, 68, 70, 72]


def tstamp(cfg, k):
    return f"s_memrealtime s[{TS[k]}:{TS[k]+1}]" if cfg.tst else ""


def tst_end(cfg, base):
    o = f"""s_waitcnt vmcnt(0)
{tstamp(cfg, 7)}
s_lshl_b32 s14, s2, 3
s_add_u32 s14, s14, s{S_W}
s_add_u32 s14, s14, {base}
s_lshl_b32 s14, s14, 6
s_add_u32 s14, s14, 0x2300000
s_add_u32 s12, s74, s14
s_addc_u32 s13, s75, 0
s_waitcnt lgkmcnt(0)
v_mov_b32 v14, 0
"""
    for k in range(8):
        o += f"v_mov_b32 v{16+k}, s{TS[k]}\n"
    o += f"""v_mov_b32 v24, s60
v_mov_b32 v25, s{S_CNT}
global_store_dwordx4 v14, v[16:19], s[12:13]
global_store_dwordx4 v14, v[20:23], s[12:13] offset:16
global_store_dwordx2 v14, v[24:25], s[12:13] offset:32
"""
    return o


def span_end(cfg, base):
    if not cfg.span:
        return ""
    return f"""s_waitcnt vmcnt(0)
s_memrealtime s[{S_STT}:{S_STT+1}]
s_lshl_b32 s14, s2, 3
s_add_u32 s14, s14, s{S_W}
s_lshl_b32 s14, s14, 3
s_add_u32 s14, s14, {0x2200000 + base*8}
s_add_u32 s12, s74, s14
s_addc_u32 s13, s75, 0
s_waitcnt lgkmcnt(0)
v_mov_b32 v12, s60
v_mov_b32 v13, s{S_STT}
v_mov_b32 v14, 0
global_store_dwordx2 v14, v[12:13], s[12:13]
"""


def gen_compute(cfg):
    st = Stream()
    R = st.raw
    R("""
L_compute:
v_and_b32 v%(ln)d, 63, v0
""" % dict(ln=V_T0))
    ln = V_T0
    t1 = V_T1
    if cfg.codepf:
        R("""
s_getpc_b64 s[%d:%d]
s_sub_u32 s44, s44, 0x1800
s_subb_u32 s45, s45, 0
v_lshlrev_b32 v16, 7, v0
v_min_u32 v16, CODE_BYTES, v16
global_load_dword v255, v16, s[%d:%d]
""" % (S_T0, S_T0 + 1, S_T0, S_T0 + 1))
    R(f"""
v_lshrrev_b32 v18, 5, v{ln}              ; h
v_bfe_u32 v19, v{ln}, 2, 2
v_xor_b32 v20, v18, v19                  ; h^g
v_lshlrev_b32 v20, 4, v20
v_and_b32 v21, 3, v{ln}
v_lshl_add_u32 v20, v21, 6, v20          ; (key&3)*64 + (h^g)*16
v_bfe_u32 v22, v{ln}, 2, 3               ; key>>2
v_lshl_add_u32 v{V_KL}, v22, 10, v20
v_bfe_u32 v22, v{ln}, 3, 2               ; tok>>3
v_lshl_add_u32 v23, v22, 10, v20
v_bfe_u32 v22, v{ln}, 2, 1
v_lshl_add_u32 v23, v22, 8, v23
s_and_b32 s{S_T0}, s{S_W}, 1
s_lshl_b32 s{S_T0}, s{S_T0}, 12
s_add_u32 s{S_T0}, s{S_T0}, {AUX}
v_add_u32 v{V_XL}, s{S_T0}, v23
v_bfe_u32 v22, v{ln}, 4, 1               ; G&1
v_lshlrev_b32 v22, 5, v22
v_lshl_add_u32 v22, v19, 6, v22          ; r*64 + (G&1)*32
v_lshl_add_u32 v23, v21, 3, v22          ; + c4*8
v_lshl_add_u32 v{V_VL}, v18, 10, v23
v_and_b32 v23, 1, v21
v_lshrrev_b32 v24, 1, v21
v_lshl_add_u32 v23, v23, 1, v24          ; bitswap(c4)
v_lshl_add_u32 v23, v23, 3, v22
s_lshr_b32 s{S_T0}, s{S_W}, 1
s_lshl_b32 s{S_T0}, s{S_T0}, 14
v_lshl_add_u32 v24, v18, 11, v23
v_add_u32 v{V_WQL}, s{S_T0}, v24
s_lshl_b32 s{S_T0}, s{S_W}, 8
v_lshl_add_u32 v24, v18, 10, v23
v_add_u32 v{V_WOL}, s{S_T0}, v24
s_mul_i32 s{S_T0}, s{S_W}, {SLOT}
s_add_u32 s{S_T0}, s{S_T0}, {AUX}
v_lshlrev_b32 v24, 4, v{ln}
v_add_u32 v{V_OW}, s{S_T0}, v24
s_lshr_b32 s{S_T0}, s{S_B}, 2            ; first head = b>>2
s_mul_i32 s{S_T0}, s{S_T0}, {2*SLOT}
s_add_u32 s{S_T0}, s{S_T0}, {AUX}
v_add_u32 v{V_OR}, s{S_T0}, v24          ; O read (first head, th=0)
s_lshl_b32 s{S_T0}, s{S_W}, 12
v_add_u32 v{V_ST}, s{S_T0}, v24          ; partial store voffset: w*4096 + lane*16
s_mov_b32 s{S_THR}, {hex(f2u(2.0**cfg.thr_log2 if not cfg.force_rare else 4.0))}
s_mov_b32 s{S_QS}, {hex(f2u(QSCALE))}
v_mov_b32 v{V_L}, 0
""")
    R(EPOCH)
    if cfg.prio:
        R(f"s_setprio {cfg.prio}")
    if cfg.itlb:
        R("%WARM%")
    stamp(st, cfg, 1)

    def addr_update(c):
        base = (c % 4) * SLOT
        if c < 8:
            return [f"v_add_u32 v{V_XA0}, {base}, v{V_XL}", f"v_add_u32 v{V_TA}, {base}, v{V_WQL}",
                    f"v_xor_b32 v{V_XA1}, 32, v{V_XA0}"]
        if c < 16:
            return [f"v_add_u32 v{V_XA0}, {base}, v{V_KL}", f"v_add_u32 v{V_TA}, {base}, v{V_VL}",
                    f"v_xor_b32 v{V_XA1}, 32, v{V_XA0}"]
        return [f"v_add_u32 v{V_TA}, {base}, v{V_WOL}"]

    fr_i = [0]

    def next_frag():
        f = FR + 4 * (fr_i[0] % 8)
        fr_i[0] += 1
        return f

    def tr_pair(f, off0, off1, chunk, lead=None):
        return RG([f"ds_read_b64_tr_b16 {vr(f,2)}, v{V_TA} offset:{off0}",
                   f"ds_read_b64_tr_b16 {vr(f+2,2)}, v{V_TA} offset:{off1}"], chunk, lead)

    mfs, wins, pre, shadow, bar = [], [], {}, {}, {}
    xi = 0
    for c in range(8):
        bar[len(mfs) - 1 - cfg.BL if c else -1] = c
        for s in range(4):
            xf = XF + 4 * (xi % 3)
            xi += 1
            xr = RG([f"ds_read_b128 {vr(xf,4)}, v{V_XA0 + (s & 1)} offset:{(s >> 1) * 512}"], c, cfg.D1)
            for t in range(4):
                f = next_frag()
                rg = tr_pair(f, (4 * s) * 1024 + t * 256, (4 * s + 1) * 1024 + t * 256, c, cfg.D1)
                cin = "0" if (c == 0 and s == 0) else ACC + 16 * t
                mfs.append(MF(mfma(ACC + 16 * t, f, xf, cin), [xr, rg], c))
    n1 = len(mfs)
    q_ops = [lambda: stamp(st, cfg, 2), "s_waitcnt vmcnt(0)"]
    for i in range(64):
        q_ops.append(f"v_mul_f32 v{ACC+i}, s{S_QS}, v{ACC+i}")
    for i in range(32):
        q_ops.append(f"v_cvt_pk_bf16_f32 v{QR+i}, v{ACC+2*i}, v{ACC+2*i+1}")
    pre[n1] = q_ops
    items = [("K", 0)]
    for t in range(1, 16):
        items += [("K", t), ("V", t - 1)]
    items.append(("V", 15))
    start = {}
    for q, (kind, t) in enumerate(items):
        c = 8 + (q >> 2)
        tb = (q & 3) * 8192
        if (q & 3) == 0:
            bar[len(mfs) - 1 - cfg.BL] = c
        start[(kind, t)] = len(mfs)
        if kind == "K":
            S = SB[t & 1]
            for s in range(8):
                f = next_frag()
                rg = RG([f"ds_read_b128 {vr(f,4)}, v{V_XA0 + (s & 1)} offset:{tb + (s >> 1) * 256}"], c, cfg.D2)
                cin = S if s else ("0" if t < 2 else NEGM)
                mfs.append(MF(mfma(S, f, QR + 4 * s, cin), [rg], c))
        else:
            for u in range(2):
                for d in range(4):
                    f = next_frag()
                    rg = tr_pair(f, tb + (4 * u) * 1024 + d * 256, tb + (4 * u + 2) * 1024 + d * 256, c, cfg.D2)
                    cin = "0" if (t == 0 and u == 0) else ACC + 16 * d
                    mfs.append(MF(mfma(ACC + 16 * d, f, PB[t & 1] + 4 * u, cin), [rg], c))
    S = SB[0]
    ops0 = ["v_max3_f32 v%d, v%d, v%d, v%d" % (V_T0, S, S + 1, S + 2)]
    for i in range(3, 15, 2):
        ops0.append("v_max3_f32 v%d, v%d, v%d, v%d" % (V_T0, V_T0, S + i, S + i + 1))
    ops0.append("v_max_f32 v%d, v%d, v%d" % (V_T0, V_T0, S + 15))
    ops0.append("v_mov_b32 v%d, v%d" % (V_T1, V_T0))
    ops0.append("v_permlane32_swap_b32 v%d, v%d" % (V_T0, V_T1))
    ops0.append("v_max_f32 v%d, v%d, v%d" % (V_T0, V_T0, V_T1))
    ops0.append("v_sub_f32 v%d, 0, v%d" % (NEGM, V_T0))
    ops0 += softmax_ops(0, True)
    ops0.append("v_add_f32 v%d, v%d, v%d" % (V_L, V_LT, V_L))
    k1 = start[("K", 1)]
    wins.append((ops0, k1 + 1, k1 + 7))
    nb = ["v_mov_b32 v%d, v%d" % (NEGM + i, NEGM) for i in range(1, 16)]
    wins.append((nb, start[("V", 0)], start[("V", 0)] + 6))
    rare = []
    for t in range(1, 16):
        ops = softmax_ops(t, t == 1)
        g0 = start[("V", t - 1)] + 1
        pv = start[("V", t)]
        chk = ["v_cmp_nge_f32 vcc, s%d, v%d" % (S_THR, V_LT)]
        br = ["s_cbranch_vccnz L_rare%d" % t, "L_back%d:" % t]
        ladd = ["v_add_f32 v%d, v%d, v%d" % (V_L, V_LT, V_L)]
        if 1 < t < 15:
            wins.append((ops + chk, g0, pv - 2))
            shadow[pv - 1] = br
            wins.append((ladd, pv - 1, pv))
        else:
            wins.append((ops + chk + br, g0, pv - 1))
            wins.append((ladd, pv, pv))
        rare += rare_path(t)
    emit_schedule(st, mfs, wins, pre, shadow, cfg, cfg.D2, bar, addr_update)
    stamp(st, cfg, 3)
    R(f"""
v_mov_b32 v{V_T0}, v{V_L}
v_permlane32_swap_b32 v{V_L}, v{V_T0}
v_add_f32 v{V_L}, v{V_L}, v{V_T0}
v_rcp_f32 v{V_L}, v{V_L}
""")
    for ks in range(8):
        for i in range(8):
            R(f"v_mul_f32 v{ACC+8*ks+i}, v{V_L}, v{ACC+8*ks+i}")
        for i in range(4):
            R(f"v_cvt_pk_bf16_f32 v{QR+4*ks+i}, v{ACC+8*ks+2*i}, v{ACC+8*ks+2*i+1}")
        st.ds(f"ds_write_b128 v{V_OW}, {vr(QR+4*ks,4)} offset:{ks*1024}")
    R(f"s_lshr_b32 s{S_T0}, s{S_B}, 2\ns_xor_b32 s{S_T0}, s{S_T0}, 1\ns_mul_i32 s{S_T0}, s{S_T0}, {2*SLOT}\ns_add_u32 s{S_T0}, s{S_T0}, {AUX}")
    R(f"v_and_b32 v{V_OW+0}, 63, v0\nv_lshlrev_b32 v{V_T0}, 4, v{V_OW}")
    st.lines.pop(); st.lines.pop()
    R(f"v_and_b32 v{V_T1}, 63, v0\nv_lshlrev_b32 v{V_T1}, 4, v{V_T1}\nv_add_u32 v{V_XA0}, s{S_T0}, v{V_T1}")
    mfs, wins, pre, shadow, bar = [], [], {}, {}, {}
    orgs = {}
    for i in range(4):
        A = ACC + 32 * (i & 1)
        for kh in range(2):
            c = 16 + 2 * i + kh
            bar[len(mfs) - 1 - cfg.BL if c > 16 else -1] = c
            for ks in range(8):
                f = next_frag()
                rg = tr_pair(f, (4 * ks) * 1024, (4 * ks + 2) * 1024, c, cfg.D3)
                for th in range(2):
                    o = OF + 64 * kh + 32 * th + 4 * ks
                    reads = [rg]
                    if i == 0:
                        areg = V_OR if kh == 0 else V_XA0
                        reads.append(RG([f"ds_read_b128 {vr(o,4)}, v{areg} offset:{th*SLOT + ks*1024}"], 16, cfg.D3 - 2))
                        reads[-1].free = True
                    cin = "0" if (kh == 0 and ks == 0) else A + 16 * th
                    mfs.append(MF(mfma(A + 16 * th, f, o, cin), reads, c))

    def cvt_ops(i, f):
        A = ACC + 32 * (i & 1) + 8 * f
        return [f"v_cvt_pk_bf16_f32 v{PK+4*f+j}, v{A+2*j}, v{A+2*j+1}" for j in range(4)]

    def st_op(i, f):
        return [f"buffer_store_dwordx4 {vr(PK+4*f,4)}, v{V_ST}, s[{S_WS}:{S_WS+3}], s{S_NC0+i} offen offset:{f*1024} {cfg.st_pol}"]

    def flag_op(i):
        return f"buffer_store_dwordx2 v[{H_TAG}:{H_TAG+1}], v{H_FL}, s[{S_IN}:{S_IN+3}], 0 offen offset:{128*i} sc1"
    wins.append(([f"s_add_u32 s{S_NC0+i}, s{S_HPO}, {i*16384}" for i in range(4)], 33, 40))
    vq, sent = [], set()

    def vwait(tag):
        p = max(k for k, t in enumerate(vq) if t == tag)
        n = len(vq) - 1 - p
        del vq[:p + 1]
        return f"s_waitcnt vmcnt({n})"
    if cfg.stmode == "late":
        vq += [("st", 0)] * 3 + [("st", 1), ("st", 0)] + [("st", 1)] * 3 + [("st", 2)] * 4
        wins.append((sum((cvt_ops(0, f) for f in range(4)), []), 33, 60))
        wins.append((handoff_addr(3, "q"), 40, 78))
        g = 80 + cfg.ST0
        for f in range(4):
            wins.append((st_op(0, f), g + 2 * f, 94))
        for f in range(4):
            wins.append((cvt_ops(1, f) + st_op(1, f), g + 2 * f + 3, 94))
        for f in range(4):
            wins.append((cvt_ops(2, f) + st_op(2, f), 97 + 3 * f, 126))
    else:
        wins.append((handoff_addr(3, "q"), 33, 60))
        ev = []
        for i in range(3):
            for f in range(4):
                ev.append((32 * (i + 1) + 2 + cfg.STS * f, "st", i, f))
        ev.append((cfg.FL0, "fl", 0, 0))
        ev.append((cfg.FL1, "fl", 1, 0))
        for g, kind, i, f in sorted(ev):
            if kind == "st":
                wins.append((cvt_ops(i, f) + st_op(i, f), g, 32 * (i + 2) - 1))
                vq.append(("st", i))
            elif g < 128:
                wins.append(([vwait(("st", i)), flag_op(i)], g, 127))
                vq.append(("fl", i))
                sent.add(i)
    emit_schedule(st, mfs, wins, pre, shadow, cfg, cfg.D3, bar, addr_update, virtual={23})
    stamp(st, cfg, 4)
    if cfg.tst:
        R(tstamp(cfg, 0))
    if cfg.stamps:
        vq.append("stamp")
    for f in range(4):
        R("\n".join(cvt_ops(3, f) + st_op(3, f)))
        vq.append(("st", 3))
    if cfg.tst:
        R(tstamp(cfg, 1))
    for i in range(4):
        if i not in sent:
            if ("st", i) in vq:
                R(vwait(("st", i)))
            R(flag_op(i))
            vq.append(("fl", i))
        if i == 1 and cfg.endbar:
            R("s_barrier")
        if i == 2 and cfg.tst:
            R(tstamp(cfg, 2))
    if cfg.tst:
        R(tstamp(cfg, 3))
    stamp(st, cfg, 8)
    rc = reduce_code(cfg, 3, "q", "c").split("L_go_c:\n")
    R(rc[0] + "L_go_c:")
    stamp(st, cfg, 9)
    if cfg.stamps:
        R(f"v_mov_b32 v{V_T0}, s{S_CNT}\nv_mov_b32 v{V_T1}, 44\nglobal_store_dword v{V_T1}, v{V_T0}, s[{S_STB}:{S_STB+1}]\ns_waitcnt vmcnt(0)")
    R(rc[1])
    R(f"""s_or_b32 s{S_T0}, s{S_HP}, s{S_W}
s_cmp_lg_u32 s{S_T0}, 0
s_cbranch_scc1 L_noep
v_mov_b32 v12, 0
global_store_dword v12, v{H_TAG}, s[{S_EP}:{S_EP+1}]
L_noep:""")
    stamp(st, cfg, 10)
    if cfg.stamps:
        R("s_waitcnt vmcnt(0)")
        stamp(st, cfg, 5)
        R(f"s_memrealtime s[{S_STT}:{S_STT+1}]\ns_waitcnt lgkmcnt(0)\nv_mov_b32 v{V_T0}, s{S_STT}\nv_mov_b32 v{V_T1}, 28\nglobal_store_dword v{V_T1}, v{V_T0}, s[{S_STB}:{S_STB+1}]")
    if cfg.tst:
        R(tst_end(cfg, 0))
    if cfg.span:
        R(span_end(cfg, 0))
    R("s_endpgm")
    R("L_main_end:")
    R("\n".join(rare))
    if cfg.dbg:
        keep = []
        for l in st.lines:
            t = l.strip()
            if "E" in cfg.dbg and t.startswith("v_exp"): continue
            if "A" in cfg.dbg and t.startswith("v_add_f32"): continue
            if "C" in cfg.dbg and t.startswith("v_cvt_pk") and (" v19" in t.split(",")[0] or " v20" in t.split(",")[0]): continue
            if "K" in cfg.dbg and t.startswith("ds_read_b128"): continue
            if "T" in cfg.dbg and t.startswith("ds_read_b64_tr"): continue
            if "W" in cfg.dbg and t.startswith("s_waitcnt lgkmcnt"): continue
            if "B" in cfg.dbg and (t.startswith("s_cbranch_vccnz") or t.startswith("v_cmp_nge")): continue
            keep.append(l)
        st.lines = keep
    n0 = len(st.lines)
    st.lines = fix_hazards(st.lines)
    if cfg.verbose:
        print("hazard nops inserted:", len(st.lines) - n0, file=sys.stderr)
    return st.text()


def gen_loader(cfg):
    L = []
    R = lambda t: L.extend(("  " + l.strip()) if not l.endswith(":") else l for l in t.strip("\n").split("\n"))
    vWQ, vX, vK, vV, vWO = 1, 2, 3, 4, 5
    R(f"""
L_loader:
s_sub_u32 s{S_W}, s{S_W}, 4
v_and_b32 v10, 63, v0
v_lshrrev_b32 v11, 4, v10               ; t = i>>4
v_bfe_u32 v12, v10, 2, 2                ; r
v_and_b32 v13, 3, v10                   ; c
v_lshlrev_b32 v14, 6, v11
v_lshl_add_u32 v15, v13, 4, v14         ; t*64 + c*16
s_and_b32 s{S_T0}, s{S_W}, 1
s_lshl_b32 s{S_T0}, s{S_T0}, 18
s_lshr_b32 s{S_T1}, s{S_W}, 1
s_lshl_b32 s{S_T1}, s{S_T1}, 8
s_add_u32 s{S_T0}, s{S_T0}, s{S_T1}
v_lshl_add_u32 v16, v12, 13, v15
v_add_u32 v{vWQ}, s{S_T0}, v16
s_lshl_b32 s{S_M8}, s{S_W}, 13
s_lshl_b32 s{S_M1}, s{S_W}, 10
v_and_b32 v16, 1, v11                   ; tq
s_and_b32 s{S_T0}, s{S_W}, 1
s_lshl_b32 s{S_T0}, s{S_T0}, 1
v_or_b32 v17, s{S_T0}, v16              ; g
v_xor_b32 v17, v17, v13
v_lshlrev_b32 v17, 4, v17
v_lshrrev_b32 v18, 1, v11               ; ch
v_lshl_add_u32 v17, v18, 6, v17
v_lshl_add_u32 v18, v16, 2, v12         ; 4tq + t3
v_lshl_add_u32 v17, v18, 10, v17
v_add_u32 v{vX}, s{S_M8}, v17           ; + 8*lw*1024
""")
    vq = []

    def issue(c):
        base = (c % 4) * SLOT
        n = 0
        if c < 8:
            R(f"s_add_u32 s{S_T0}, s{S_ROT}, {c}\ns_and_b32 s{S_T0}, s{S_T0}, 7\ns_lshl_b32 s{S_T1}, s{S_T0}, 7\ns_lshl_b32 s{S_T0}, s{S_T0}, 19")
            for p in range(2):
                R(f"s_add_u32 m0, s{S_M1}, {base + AUX + p*4096}")
                R(f"s_add_u32 s{S_T2}, s{S_T1}, {p*32768}")
                R(f"buffer_load_dwordx4 v{vX}, s[{S_X}:{S_X+3}], s{S_T2} offen {cfg.nt_w} lds")
                n += 1
            for p in range(8):
                R(f"s_add_u32 m0, s{S_M8}, {base + p*1024}")
                R(f"s_add_u32 s{S_T2}, s{S_T0}, {p*32768}")
                R(f"buffer_load_dwordx4 v{vWQ}, s[{S_WQ}:{S_WQ+3}], s{S_T2} offen {cfg.nt_w} lds")
                n += 1
        elif c < 16:
            for j in range(4):
                q = (c - 8) * 4 + j
                if q == 0:
                    kind, t = "K", 0
                elif q == 31:
                    kind, t = "V", 15
                elif q & 1:
                    kind, t = "K", (q + 1) // 2
                else:
                    kind, t = "V", q // 2 - 1
                for p in range(2):
                    R(f"s_add_u32 m0, s{S_M1}, {base + j*8192 + p*4096}")
                    R(f"s_mov_b32 s{S_T2}, {t*8192 + p*4096}")
                    v, s = (vK, S_K) if kind == "K" else (vV, S_V)
                    R(f"buffer_load_dwordx4 v{v}, s[{s}:{s+3}], s{S_T2} offen {cfg.nt_kv} lds")
                    n += 1
        else:
            i, kh = (c - 16) >> 1, (c - 16) & 1
            R(f"s_add_u32 s{S_T0}, s{S_B}, {i}\ns_and_b32 s{S_T0}, s{S_T0}, 3\ns_lshl_b32 s{S_T0}, s{S_T0}, 8")
            R(f"s_lshr_b32 s{S_T1}, s{S_B}, 2\ns_xor_b32 s{S_T1}, s{S_T1}, {kh}\ns_lshl_b32 s{S_T1}, s{S_T1}, 17\ns_add_u32 s{S_T0}, s{S_T0}, s{S_T1}")
            for p in range(8):
                R(f"s_add_u32 m0, s{S_M8}, {base + p*1024}")
                R(f"s_add_u32 s{S_T2}, s{S_T0}, {p*4096}")
                R(f"buffer_load_dwordx4 v{vWO}, s[{S_WO}:{S_WO+3}], s{S_T2} offen {cfg.nt_w} lds")
                if cfg.pace and c >= cfg.pace0:
                    R(cfg.pace.replace(";", "\n"))
                n += 1
        vq.extend([("c", c)] * n)

    def lstamp(i):
        if cfg.lstamps:
            R(f"s_memtime s[{S_STT}:{S_STT+1}]\ns_waitcnt lgkmcnt(0)\nv_writelane_b32 v120, s{S_STT}, {i}")
    lstamp(50)
    issue(0)
    lstamp(51)
    R(f"""
v_lshl_add_u32 v16, v12, 8, v15
v_add_u32 v{vV}, s{S_M1}, v16
v_xor_b32 v16, s{S_W}, v13
v_lshl_add_u32 v16, v16, 4, v14
v_lshl_add_u32 v16, v12, 8, v16
v_add_u32 v{vK}, s{S_M1}, v16
v_lshl_add_u32 v16, v12, 10, v15
s_lshl_b32 s{S_T0}, s{S_W}, 15
v_add_u32 v{vWO}, s{S_T0}, v16
""")
    if cfg.plan:
        depth = [int(ch) for ch in cfg.plan]
        depth += [depth[-1]] * (24 - len(depth))
    else:
        depth = [cfg.pro - 1] + [2] * 23
        depth = [cfg.pro - 1] + [max(2, 0)] * 23
    def wait_for(*tags):
        pos = [k for k, t in enumerate(vq) if t in tags]
        if pos:
            n = len(vq) - 1 - max(pos)
            R(f"s_waitcnt vmcnt({n})")
            del vq[:max(pos) + 1]

    nxt = 1
    for s in range(23):
        tgt = min(23, s + depth[s])
        assert tgt <= max(3, s + 2)
        while nxt <= tgt:
            issue(nxt)
            if s == 0:
                lstamp(51 + nxt)
            nxt += 1
        if s == 0:
            lstamp(48)
        if s == 12:
            R(EPOCH)
        wait_for(("c", s if s < 22 else 23))
        lstamp(2 * s)
        R("s_barrier")
        if cfg.tst and s in (0, 8, 16):
            R(tstamp(cfg, s // 8))
        lstamp(2 * s + 1)
    R(f"s_cmp_eq_u32 s{S_W}, 3\ns_cbranch_scc1 L_ld_done")
    R("\n".join(handoff_addr(0, "w")))
    lstamp(46)
    if cfg.endbar:
        R("s_barrier")
    if cfg.tst:
        R(tstamp(cfg, 3))
    lstamp(47)
    R(reduce_code(cfg, f"s{S_W}", "w", "l"))
    R("L_ld_done:")
    if cfg.lstamps:
        R(f"""v_writelane_b32 v120, s62, 49
s_lshl_b32 s14, s2, 2
s_add_u32 s14, s14, s{S_W}
s_lshl_b32 s14, s14, 8
s_add_u32 s14, s14, 0x2100000
s_add_u32 s{S_STT}, s74, s14
s_addc_u32 s{S_STT+1}, s75, 0
v_lshlrev_b32 v21, 2, v10
global_store_dword v21, v120, s[{S_STT}:{S_STT+1}]""")
    if cfg.tst:
        R(tst_end(cfg, 4))
    if cfg.span:
        R(span_end(cfg, 4))
    R("s_endpgm")
    return "\n".join(L) + "\n"


def gen_main(cfg):
    name = NAME + "_kernel"
    s = f""".globl {name}
.p2align 12
.p2align 8
.type {name},@function
{name}:
  s_cmp_ge_u32 s2, 256
  s_cbranch_scc1 L_exit
"""
    if cfg.stamps or cfg.lstamps or cfg.span or cfg.tst:
        s += f"  s_memrealtime s[60:61]\n  s_memtime s[62:63]\n"
    s += f"""
  s_and_b32 s3, s2, 7
  s_lshr_b32 s4, s2, 3            ; slot
  s_and_b32 s5, s4, 1
  s_lshl_b32 s3, s3, 1
  s_add_u32 s3, s3, s5
  s_lshr_b32 s{S_BR}, s3, 3       ; branch
  s_mul_i32 s5, s{S_BR}, 40
  s_add_u32 s8, s0, s5
  s_addc_u32 s9, s1, 0
  s_load_dwordx8 s[64:71], s[8:9], 0      ; x k v wq
  s_load_dwordx2 s[72:73], s[8:9], 32     ; wo
  s_load_dwordx2 s[74:75], s[0:1], 96     ; ws
  s_load_dwordx2 s[92:93], s[0:1], 80     ; out
  s_and_b32 s3, s3, 7             ; hkv
  {f"s_lshr_b32 s{S_B}, s4, 2" if cfg.remap else f"s_bfe_u32 s{S_B}, s4, 0x30001"}   ; b
  {"s_bfe_u32 s5, s4, 0x10001" if cfg.remap else "s_lshr_b32 s5, s4, 4"}            ; half
  s_lshl_b32 s{S_HP}, s3, 1
  s_add_u32 s{S_HP}, s{S_HP}, s5  ; hp
  s_and_b32 s{S_ROT}, s4, 1
  s_lshl_b32 s5, s5, 1
  s_add_u32 s5, s5, s{S_ROT}
%ROT%
  s_lshl_b32 s{S_GRP}, s{S_BR}, 3
  s_add_u32 s{S_GRP}, s{S_GRP}, s{S_B}
  s_lshl_b32 s10, s{S_B}, 3
  s_add_u32 s10, s10, s3
  s_lshl_b32 s10, s10, 17
  s_lshl_b32 s11, s{S_B}, 16      ; x offset
  s_lshl_b32 s12, s{S_HP}, 9
  s_lshl_b32 s13, s{S_HP}, 18
  s_lshl_b32 s14, s{S_GRP}, 20
  s_lshl_b32 s{S_HPO}, s{S_HP}, 16
  s_lshl_b32 s15, s{S_GRP}, 13
  s_add_u32 s15, s15, 0x1000000
  s_lshl_b32 s18, s{S_GRP}, 8
  s_add_u32 s18, s18, 0x1040000
  s_lshl_b32 s90, s{S_BR}, 10
  s_lshl_b32 s19, s{S_B}, 17
  s_add_u32 s19, s19, s90
  v_lshrrev_b32 v1, 6, v0
  s_mov_b32 s{S_X+2}, 0x10000
  s_mov_b32 s{S_X+3}, 0x20000
  v_readfirstlane_b32 s{S_W}, v1
  s_mov_b32 s{S_K+2}, 0x20000
  s_mov_b32 s{S_K+3}, 0x20000
  s_mov_b32 s{S_V+2}, 0x20000
  s_mov_b32 s{S_V+3}, 0x20000
  s_sub_u32 s{S_WQ+2}, 0x400000, s12
  s_mov_b32 s{S_WQ+3}, 0x20000
  s_mov_b32 s{S_WO+2}, 0x40000
  s_mov_b32 s{S_WO+3}, 0x20000
  s_mov_b32 s{S_WS+2}, 0x100000
  s_mov_b32 s{S_WS+3}, 0x20000
  s_mov_b32 s{S_IN+2}, 0x2000
  s_mov_b32 s{S_IN+3}, 0x20000
  s_sub_u32 s{S_OUT+2}, 0x20000, s90
  s_mov_b32 s{S_OUT+3}, 0x20000
  s_waitcnt lgkmcnt(0)
  s_add_u32 s{S_X}, s64, s11
  s_addc_u32 s{S_X+1}, s65, 0
  s_add_u32 s{S_WQ}, s70, s12
  s_addc_u32 s{S_WQ+1}, s71, 0
  s_add_u32 s{S_K}, s66, s10
  s_addc_u32 s{S_K+1}, s67, 0
  s_add_u32 s{S_V}, s68, s10
  s_addc_u32 s{S_V+1}, s69, 0
  s_add_u32 s{S_WO}, s72, s13
  s_addc_u32 s{S_WO+1}, s73, 0
  s_add_u32 s{S_WS}, s74, s14
  s_addc_u32 s{S_WS+1}, s75, 0
  s_add_u32 s{S_IN}, s74, s15
  s_addc_u32 s{S_IN+1}, s75, 0
  s_add_u32 s{S_EP}, s74, s18
  s_addc_u32 s{S_EP+1}, s75, 0
  s_load_dword s{S_EP+2}, s[{S_EP}:{S_EP+1}], 0
  s_add_u32 s{S_OUT}, s92, s19
  s_addc_u32 s{S_OUT+1}, s93, 0
"""
    if cfg.stamps:
        s += f"""
  s_lshl_b32 s14, s2, 3
  s_add_u32 s14, s14, s{S_W}
  s_lshl_b32 s14, s14, 6
  s_add_u32 s14, s14, 0x2000000
  s_add_u32 s{S_STB}, s74, s14
  s_addc_u32 s{S_STB+1}, s75, 0
  v_mov_b32 v{V_T0}, s62
  v_mov_b32 v{V_T1}, 0
  global_store_dword v{V_T1}, v{V_T0}, s[{S_STB}:{S_STB+1}]
  v_mov_b32 v{V_T0}, s60
  v_mov_b32 v{V_T1}, 24
  global_store_dword v{V_T1}, v{V_T0}, s[{S_STB}:{S_STB+1}]
  s_waitcnt vmcnt(0)
"""
    s += f"""
  s_cmp_lt_u32 s{S_W}, 4
  s_cbranch_scc1 L_compute
"""
    s += gen_loader(cfg)
    comp = gen_compute(cfg)
    s += ".p2align 12\n" + comp
    s += "L_exit:\n  s_endpgm\nL_code_end:\n"
    s = s.replace("CODE_BYTES", "0x7f80")
    rot = {8: f"  s_lshl_b32 s5, s5, 1\n  s_add_u32 s{S_ROT}, s5, s{S_B}",
           -8: f"  s_mov_b32 s{S_ROT}, s{S_B}",
           4: f"  s_add_u32 s5, s5, s{S_B}\n  s_lshl_b32 s{S_ROT}, s5, 1",
           2: f"  s_add_u32 s5, s5, s{S_B}\n  s_lshl_b32 s{S_ROT}, s5, 2",
           1: f"  s_mov_b32 s{S_ROT}, 0"}[cfg.rot]
    s = s.replace("%ROT%", rot)
    return s


def gen_reduce(cfg):
    name = "reduce_kernel"
    s = f""".globl {name}
.p2align 8
.type {name},@function
{name}:
  s_cmp_ge_u32 s2, 256
  s_cbranch_scc1 L_rexit
  s_load_dwordx2 s[4:5], s[0:1], 96
  s_load_dwordx2 s[6:7], s[0:1], 80
  s_lshr_b32 s8, s2, 4            ; group
  s_and_b32 s9, s2, 15            ; slice
  s_lshl_b32 s10, s8, 20
  s_lshl_b32 s11, s9, 12
  s_add_u32 s10, s10, s11
  v_lshlrev_b32 v1, 4, v0
  s_mov_b32 s14, 0x100000
  s_mov_b32 s15, 0x20000
  s_mov_b32 s18, 0x100000
  s_mov_b32 s19, 0x20000
  s_waitcnt lgkmcnt(0)
  s_add_u32 s12, s4, s10
  s_addc_u32 s13, s5, 0
  s_mov_b32 s16, s6
  s_mov_b32 s17, s7
"""
    for p in range(16):
        s += f"  s_mov_b32 s20, {p*65536}\n  buffer_load_dwordx4 v[{16+4*p}:{19+4*p}], v1, s[12:15], s20 offen {cfg.red_pol}\n"
    s += """
  s_and_b32 s20, s8, 7
  s_lshl_b32 s20, s20, 17
  s_lshr_b32 s21, s8, 3
  s_lshl_b32 s21, s21, 10
  s_add_u32 s20, s20, s21
  s_and_b32 s21, s9, 1
  s_lshl_b32 s21, s21, 16
  s_add_u32 s20, s20, s21
  s_lshr_b32 s21, s9, 1
  s_lshl_b32 s21, s21, 7
  s_add_u32 s20, s20, s21
  v_and_b32 v2, 31, v0
  v_lshlrev_b32 v2, 11, v2
  v_lshrrev_b32 v3, 5, v0
  v_lshl_add_u32 v2, v3, 4, v2
  s_mov_b32 s22, 0xffff0000
"""
    for p in range(16):
        s += f"  s_waitcnt vmcnt({15-p})\n"
        for j in range(4):
            r = 16 + 4 * p + j
            if p == 0:
                s += f"  v_lshlrev_b32 v{4+2*j}, 16, v{r}\n  v_and_b32 v{5+2*j}, s22, v{r}\n"
            else:
                s += f"  v_lshlrev_b32 v12, 16, v{r}\n  v_and_b32 v13, s22, v{r}\n  v_add_f32 v{4+2*j}, v12, v{4+2*j}\n  v_add_f32 v{5+2*j}, v13, v{5+2*j}\n"
    for j in range(4):
        s += f"  v_cvt_pk_bf16_f32 v{12+j}, v{4+2*j}, v{5+2*j}\n"
    s += """  buffer_store_dwordx4 v[12:15], v2, s[16:19], s20 offen
L_rexit:
  s_endpgm
"""
    return s


def desc(name, nv, ns):
    return f""".p2align 6
.amdhsa_kernel {name}
  .amdhsa_next_free_vgpr {nv}
  .amdhsa_next_free_sgpr {ns}
  .amdhsa_accum_offset {nv}
  .amdhsa_group_segment_fixed_size 0
  .amdhsa_kernarg_size 104
  .amdhsa_user_sgpr_count 2
  .amdhsa_user_sgpr_kernarg_segment_ptr 1
  .amdhsa_system_sgpr_workgroup_id_x 1
.end_amdhsa_kernel
"""


def generate(cfg):
    ref = open("cdna_kernels/%s.s.ref" % NAME).read().split("\n")
    head = [l for l in ref if l.startswith(";") and "@launch" not in l and "Override launch" not in l and "grid=ceil" not in l]
    head = head[:14]
    s = "\n".join(head) + "\n"
    s += f"; @launch grid=(256,1,1) block=(512,1,1) lds=163840\n"
    s += '.amdgcn_target "amdgcn-amd-amdhsa--gfx950"\n.text\n'
    s += gen_main(cfg)
    s += '.section .rodata,"a"\n'
    s += desc(NAME + "_kernel", 256, 96)
    return s


def add_page_stubs(text):
    import subprocess, tempfile, os
    lines = text.split("\n")
    i0 = lines.index("L_compute:")
    i1 = lines.index("L_main_end:")
    iw = next(i for i, l in enumerate(lines) if l.strip() == "%WARM%")
    nwarm = 10
    probe = lines[:iw] + ["  s_nop 0"] * nwarm + lines[iw + 1:]
    d = tempfile.mkdtemp()
    open(d + "/p.s", "w").write("\n".join(probe))
    subprocess.check_call(["clang", "-x", "assembler", "-target", "amdgcn-amd-amdhsa", "-mcpu=gfx950", "-c", d + "/p.s", "-o", d + "/p.o"])
    dis = subprocess.check_output(["llvm-objdump", "-d", "--mcpu=gfx950", d + "/p.o"], text=True).split("\n")
    k = next(i for i, l in enumerate(dis) if l.endswith("<L_compute>:"))
    sizes = [4 * len(l.split("//")[1].split(":")[1].split()) for l in dis[k:] if "//" in l]
    out, addr, n, stubs = probe[:i0 + 1], 0, 0, []
    for l in probe[i0 + 1:i1 + nwarm - 1]:
        t = l.split(";")[0].strip()
        if t and not t.endswith(":"):
            if addr // 4096 > len(stubs):
                stubs.append(len(out))
                out.append(None)
                addr += 4
            addr += sizes[n]
            n += 1
        out.append(l)
    out += probe[i1 + nwarm - 1:]
    ns = len(stubs)
    for j, p in enumerate(stubs):
        tgt = "L_stub%d" % (j + 4) if j + 4 < ns else "L_warm_ret"
        out[p] = "L_stub%d:\n  s_cbranch_execz %s" % (j, tgt)
    warm = ["  s_mov_b64 exec, 0"]
    for w in range(4):
        warm += ["  s_cmp_eq_u32 s%d, %d" % (S_W, w), "  s_cbranch_scc1 %s" % ("L_stub%d" % w if w < ns else "L_warm_ret")]
    warm += ["L_warm_ret:\n  s_mov_b64 exec, -1"]
    out[iw:iw + nwarm] = warm
    return "\n".join(out)


if __name__ == "__main__":
    cfg = Cfg()
    out = sys.argv[1]
    for a in sys.argv[2:]:
        k, v = a.split("=")
        old = getattr(cfg, k)
        if isinstance(old, bool):
            v = v in ("1", "True", "true")
        elif isinstance(old, int):
            v = int(v)
        elif isinstance(old, float):
            v = float(v)
        else:
            v = v.replace("+", " ")
        setattr(cfg, k, v)
    txt = generate(cfg)
    if cfg.itlb:
        txt = add_page_stubs(txt)
    open(out, "w").write(txt)
```

```python
import sys, re, math

NAME = "concat_heads__gqa_block_cached__gqa_block_cached__near_ridge"
SLOT = 40960
AUX = 32768
QSCALE = math.log2(math.e) / math.sqrt(128.0)


def f2u(x):
    import struct
    return struct.unpack("<I", struct.pack("<f", x))[0]


class Cfg:
    nt_w = ""
    nt_kv = ""
    st_pol = "sc1"
    red_pol = "sc1"
    out_pol = ""
    spin = 2000000
    ST0 = 0
    seq = True
    dyn = False
    EB = 200
    t1 = True
    t3 = 2
    pk = True
    touch = ''
    part1 = 10
    FL0 = 90
    FL1 = 122
    endbar = True
    psleep = 0
    remap = True
    span = False
    tst = False
    itlb = True
    STS = 4
    stmode = 'spread'
    prio = 0
    pace = ''
    pace0 = 19
    D1 = 7
    D2 = 7
    D3 = 8
    BL = 3
    stamps = False
    lstamps = False
    codepf = 2
    thr_log2 = 24.0
    rot = 8
    WP = 2
    dbg = ''
    verbose = False
    CAP = 4
    CAPB = 2
    BARC = 4
    MINLEAD = 3
    WL = 3
    nodrain = False
    pro = 4
    plan = '1111111112'
    force_rare = False


class Stream:
    def __init__(self):
        self.lines = []
        self.dsq = []
        self.nid = 0

    def raw(self, t):
        for l in t.strip("\n").split("\n"):
            self.lines.append(l if l.endswith(":") else "  " + l.strip())

    def ds(self, t):
        if len(self.dsq) >= 15:
            self.lines.append("  s_waitcnt lgkmcnt(11)")
            self.dsq = self.dsq[-11:]
        self.nid += 1
        self.dsq.append(self.nid)
        self.lines.append("  " + t)
        return self.nid

    def need(self, ids):
        pos = [self.dsq.index(i) for i in ids if i in self.dsq]
        if not pos:
            return
        p = max(pos)
        n = len(self.dsq) - 1 - p
        self.lines.append("  s_waitcnt lgkmcnt(%d)" % n)
        self.dsq = self.dsq[p + 1:]

    def drain(self):
        if self.dsq:
            self.lines.append("  s_waitcnt lgkmcnt(0)")
        self.dsq = []

    def text(self):
        return "\n".join(self.lines) + "\n"


def vr(a, n=1):
    return "v%d" % a if n == 1 else "v[%d:%d]" % (a, a + n - 1)


def mfma(d, a, b, c):
    cs = c if isinstance(c, str) else vr(c, 16)
    return "v_mfma_f32_32x32x16_bf16 %s, %s, %s, %s" % (vr(d, 16), vr(a, 4), vr(b, 4), cs)


V_TID = 0
V_XA0, V_XA1 = 1, 2
V_TA = 3
V_XL, V_KL = 4, 5
V_WQL, V_VL, V_WOL = 6, 7, 8
V_OW, V_OR = 9, 10
V_ST = 11
V_L, V_LT = 12, 13
V_T0, V_T1 = 14, 15
V_PF = 255
FR = 16
XF = 48
ET = 48
PK = 48
ACC = 64
QR = 128
SB = [160, 176]
PB = [192, 200]
NEGM = 208
OF = 128

S_W = 3
S_B, S_HP, S_GRP, S_BR = 6, 7, 16, 17
S_X, S_K, S_V, S_WQ, S_WO = 20, 24, 28, 32, 36
S_WS = 40
S_T0, S_T1, S_T2 = 44, 45, 46
S_M8, S_M1 = 47, 48
S_NC0 = 50
S_THR = 54
S_QS = 55
S_ROT = 49
S_IN, S_OUT = 76, 84
S_HPO = 88
S_CNT = 89
S_STB = 56
S_STT = 58


class MF:
    def __init__(self, text, reads=None, chunk=None):
        self.text = text
        self.reads = reads or []
        self.chunk = chunk


class RG:
    def __init__(self, texts, chunk, lead=None):
        self.texts = texts
        self.chunk = chunk
        self.ids = None
        self.lead = lead


def stamp(st, cfg, idx):
    if not cfg.stamps:
        return
    st_l = []
    st_l.append("s_memtime s[%d:%d]" % (S_STT, S_STT + 1))
    st_l.append("s_waitcnt lgkmcnt(0)")
    st_l.append("v_mov_b32 v%d, s%d" % (V_T0, S_STT))
    st_l.append("v_mov_b32 v%d, %d" % (V_T1, idx * 4))
    st_l.append("global_store_dword v%d, v%d, s[%d:%d]" % (V_T1, V_T0, S_STB, S_STB + 1))
    st.dsq = []
    st.raw("\n".join(st_l))


def vcost(t):
    if isinstance(t, tuple):
        return t[1]
    if not isinstance(t, str):
        return 0
    if t.endswith(":"):
        return 0
    if t.startswith(("v_exp", "v_rcp")):
        return 8
    if t.startswith("buffer_store"):
        return 12
    return 4


def emit_schedule(st, mfs, wins, pre, shadow, cfg, D, barrier_at, addr_update, virtual=()):
    n = len(mfs)
    open_gap = {c: g for g, c in barrier_at.items()}
    rd_at, rd_gap, seen, pend = {}, {}, set(), []
    for i, m in enumerate(mfs):
        for rg in m.reads:
            if id(rg) in seen:
                continue
            seen.add(id(rg))
            lead = rg.lead if rg.lead is not None else D
            pend.append((max(i - lead, open_gap[rg.chunk]), i, rg))
    g, k = -1, 0
    while k < len(pend):
        cap = 99 if g < 0 else (cfg.CAPB if g in barrier_at else cfg.CAP)
        used = 0
        while k < len(pend) and pend[k][0] <= g and (used + len(pend[k][2].texts) <= cap or pend[k][1] - g <= cfg.MINLEAD):
            rg = pend[k][2]
            rd_at.setdefault(g, []).append(rg)
            rd_gap[id(rg)] = g
            used += len(rg.texts)
            k += 1
        g += 1
    for _, i, rg in pend:
        if rg.chunk + 1 in open_gap and not getattr(rg, "free", False):
            assert rd_gap[id(rg)] < open_gap[rg.chunk + 1], "read of chunk %d after the next barrier" % rg.chunk
    budget = {}
    for g in range(n):
        b = 24 - 4 * sum(len(rg.texts) for rg in rd_at.get(g, []))
        if g in barrier_at:
            b -= cfg.BARC
        budget[g] = b
    gaps = {}
    upd_done = set()
    for g, c in barrier_at.items():
        if g >= 0 and not cfg.nodrain:
            lo = max(gg for gg, l in rd_at.items() if gg < g and any(not getattr(r, "free", False) for r in l))
            if lo <= g - 1:
                for j, t in enumerate(addr_update(c)):
                    gg = min(g - 1, lo + 1 + j)
                    gaps.setdefault(gg, []).append(t)
                    budget[gg] -= 4
                upd_done.add(g)
    over = 0
    for ops, g0, g1 in wins:
        g = g0
        for o in ops:
            c = vcost(o)
            while g <= g1 and budget[g] < c:
                g += 1
            if g > g1:
                pre.setdefault(g1 + 1, []).append(o)
                over += c
            else:
                gaps.setdefault(g, []).append(o)
                budget[g] -= c
    if cfg.verbose:
        print("window overflow cycles", over, "over-budget gaps", [(g, b) for g, b in budget.items() if b < 0], file=sys.stderr)
    for g in sorted(k for k in rd_at if k < 0):
        if g in barrier_at:
            st.drain()
            st.raw("s_barrier")
            for t in addr_update(barrier_at[g]):
                st.raw(t)
        for rg in rd_at[g]:
            rg.ids = [st.ds(t) for t in rg.texts]

    def emit(t):
        if isinstance(t, tuple):
            st.ds(t[0])
        elif callable(t):
            t()
        else:
            st.raw(t)

    for i, m in enumerate(mfs):
        for t in pre.get(i, []):
            emit(t)
        ids = []
        for rg in m.reads:
            assert rg.ids is not None, "read not issued before use at mfma %d" % i
            ids += rg.ids
        st.need(ids)
        st.raw(m.text)
        if i in shadow:
            for t in shadow[i]:
                emit(t)
        if i in barrier_at:
            if barrier_at[i] not in virtual:
                if not cfg.nodrain:
                    st.drain()
                st.raw("s_barrier")
            if i not in upd_done:
                for t in addr_update(barrier_at[i]):
                    st.raw(t)
        elif i not in shadow:
            ids = []
            for j in range(i + 1, min(n, i + 3)):
                for rg in mfs[j].reads:
                    if rg.ids is not None and (j == i + 1 or j - 1 in shadow or rd_gap[id(rg)] <= i - cfg.WL):
                        ids += rg.ids
            st.need(ids)
        for rg in rd_at.get(i, []):
            rg.ids = [st.ds(t) for t in rg.texts]
        for t in gaps.get(i, []):
            emit(t)


def softmax_ops(t, sub_first):
    S = SB[t & 1]
    P = PB[t & 1]
    ops = []
    e = lambda i: ET + (i % 8)
    seq = []
    for i in range(16):
        if sub_first:
            seq.append(("b", i))
        seq.append(("e", i))
    out = []
    pend = []
    for k, i in seq:
        if k == "b":
            out.append("v_add_f32 v%d, v%d, v%d" % (S + i, NEGM, S + i))
            continue
        out.append("v_exp_f32 v%d, v%d" % (e(i), S + i))
        j = i - 1
        if j >= 1:
            if j == 1:
                out.append("v_add_f32 v%d, v%d, v%d" % (V_LT, e(0), e(1)))
            else:
                out.append("v_add_f32 v%d, v%d, v%d" % (V_LT, e(j), V_LT))
            if j & 1:
                out.append("v_cvt_pk_bf16_f32 v%d, v%d, v%d" % (P + j // 2, e(j - 1), e(j)))
    out.append("v_add_f32 v%d, v%d, v%d" % (V_LT, e(15), V_LT))
    out.append("v_cvt_pk_bf16_f32 v%d, v%d, v%d" % (P + 7, e(14), e(15)))
    return out


def rare_path(t):
    S = SB[t & 1]
    S2 = SB[(t + 1) & 1]
    L = ["L_rare%d:" % t, "s_nop 15", "s_nop 3"]
    L.append("v_max3_f32 v%d, v%d, v%d, v%d" % (V_T0, S, S + 1, S + 2))
    for i in range(3, 15, 2):
        L.append("v_max3_f32 v%d, v%d, v%d, v%d" % (V_T0, V_T0, S + i, S + i + 1))
    L.append("v_max3_f32 v%d, v%d, v%d, 0" % (V_T0, V_T0, S + 15))
    L.append("v_mov_b32 v%d, v%d" % (V_T1, V_T0))
    L.append("s_nop 1")
    L.append("v_permlane32_swap_b32 v%d, v%d" % (V_T0, V_T1))
    L.append("v_max_f32 v%d, v%d, v%d" % (V_T0, V_T0, V_T1))
    L.append("v_sub_f32 v%d, 0, v%d" % (V_T1, V_T0))
    L.append("v_exp_f32 v%d, v%d" % (V_T1, V_T1))
    for i in range(16):
        L.append("v_sub_f32 v%d, v%d, v%d" % (NEGM + i, NEGM + i, V_T0))
        L.append("v_sub_f32 v%d, v%d, v%d" % (S + i, S + i, V_T0))
        if t < 15:
            L.append("v_sub_f32 v%d, v%d, v%d" % (S2 + i, S2 + i, V_T0))
    L.append("v_mul_f32 v%d, v%d, v%d" % (V_L, V_L, V_T1))
    for i in range(64):
        L.append("v_mul_f32 v%d, v%d, v%d" % (ACC + i, ACC + i, V_T1))
    L += softmax_ops(t, False)
    L.append("s_nop 1")
    L.append("s_branch L_back%d" % t)
    return L


S_EP = 80
EPOCH = f"""
s_waitcnt lgkmcnt(0)
s_mul_i32 s{S_EP+2}, s{S_EP+2}, 1664525
s_add_u32 s{S_EP+2}, s{S_EP+2}, 1013904223
"""
EPOCH_NEXT = f"""s_or_b32 s{S_T0}, s{S_HP}, s{S_W}
s_cmp_lg_u32 s{S_T0}, 0
s_cbranch_scc1 L_noep
v_mov_b32 v12, 0
global_store_dword v12, v6, s[{S_EP}:{S_EP+1}]
L_noep:
"""
H_FL, H_TAG, H_PL, H_RD, H_OUT = 1, 6, 4, 5, 2


def handoff_addr(i, mode):
    o = f"""
v_and_b32 v12, 63, v0
s_lshl_b32 s{S_T1}, s{S_W}, 11
s_lshl_b32 s{S_T2}, s{S_HP}, 3
s_add_u32 s{S_T1}, s{S_T1}, s{S_T2}
v_lshlrev_b32 v13, 9, v12
v_add_u32 v13, s{S_T1}, v13
v_mov_b32 v14, 0x7fff0000
v_cmp_gt_u32 vcc, 4, v12
v_mov_b32 v{H_TAG}, s{S_EP+2}
s_lshl_b32 s{S_T1}, s{S_HP}, 9
v_cndmask_b32 v{H_FL}, v14, v13, vcc
v_not_b32 v{H_TAG+1}, v{H_TAG}
v_and_b32 v13, 15, v12
v_lshlrev_b32 v14, 3, v13
v_add_u32 v{H_PL}, s{S_T1}, v14
s_lshr_b32 s{S_T1}, s{S_HP}, 1
s_lshl_b32 s{S_T1}, s{S_T1}, 11
s_and_b32 s{S_T2}, s{S_HP}, 1
s_lshl_b32 s{S_T2}, s{S_T2}, 8
s_add_u32 s{S_T1}, s{S_T1}, s{S_T2}
v_lshrrev_b32 v14, 4, v12
"""
    if mode == "q":
        o += f"""
s_lshl_b32 s{S_T2}, s{S_W}, 6
s_add_u32 s{S_T1}, s{S_T1}, s{S_T2}
v_lshlrev_b32 v15, 9, v14
v_lshl_add_u32 v15, v13, 2, v15
v_add_u32 v{H_RD}, s{S_T1}, v15
v_lshrrev_b32 v15, 2, v13
v_lshlrev_b32 v15, 11, v15
v_lshl_add_u32 v15, v14, 4, v15
v_and_b32 v13, 3, v13
v_lshl_add_u32 v15, v13, 2, v15
s_lshl_b32 s{S_T2}, s{S_W}, 13
"""
    else:
        o += f"""
v_lshlrev_b32 v15, 9, v14
v_lshl_add_u32 v15, v13, 4, v15
v_add_u32 v{H_RD}, s{S_T1}, v15
v_lshlrev_b32 v15, 11, v13
v_lshl_add_u32 v15, v14, 4, v15
s_mov_b32 s{S_T2}, 0
"""
    o += f"""
s_and_b32 s{S_T1}, s{S_HP}, 3
s_lshl_b32 s{S_T1}, s{S_T1}, 15
s_add_u32 s{S_T2}, s{S_T2}, s{S_T1}
s_lshr_b32 s{S_T1}, s{S_HP}, 2
s_lshl_b32 s{S_T1}, s{S_T1}, 6
s_add_u32 s{S_T2}, s{S_T2}, s{S_T1}
v_add_u32 v{H_OUT}, s{S_T2}, v15
"""
    return [l.strip() for l in o.strip().split("\n") if l.strip()]


def reduce_code(cfg, i, mode, tag):
    nd = 1 if mode == "q" else 4
    B = 16
    if isinstance(i, int):
        o = f"s_mov_b32 s{S_T0}, {i}\n"
    else:
        o = f"s_mov_b32 s{S_T0}, {i}\n"
    o += f"""
s_lshl_b32 s{S_T1}, s{S_T0}, 7
s_mov_b32 s{S_CNT}, 0
L_poll_{tag}:
buffer_load_dwordx2 v[12:13], v{H_PL}, s[{S_IN}:{S_IN+3}], s{S_T1} offen sc1
s_add_u32 s{S_CNT}, s{S_CNT}, 1
s_cmp_gt_u32 s{S_CNT}, {cfg.spin}
s_cbranch_scc1 L_go_{tag}
{"s_sleep %d" % cfg.psleep if cfg.psleep and tag == "l" else ""}
s_waitcnt vmcnt(0)
v_cmp_ne_u64 vcc, v[12:13], v[{H_TAG}:{H_TAG+1}]
s_cbranch_vccnz L_poll_{tag}
L_go_{tag}:
{tstamp(cfg, 4)}
s_lshl_b32 s{S_T1}, s{S_T0}, 14
"""
    sfx = "dword" if nd == 1 else "dwordx4"
    for p in range(16):
        o += f"buffer_load_{sfx} {vr(B + nd*p, nd)}, v{H_RD}, s[{S_WS}:{S_WS+3}], s{S_T1} offen {cfg.red_pol}\n"
        if p < 15:
            o += f"s_add_u32 s{S_T1}, s{S_T1}, 0x10000\n"
    o += f"""
s_add_u32 s{S_T0}, s{S_T0}, s{S_B}
s_and_b32 s{S_T0}, s{S_T0}, 3
s_lshl_b32 s{S_T0}, s{S_T0}, 8
s_mov_b32 s{S_T2}, 0xffff0000
"""
    A = B + 16 * nd
    for p in range(16):
        o += f"s_waitcnt vmcnt({15-p})\n"
        for j in range(nd):
            r = B + nd * p + j
            if p == 0:
                o += f"v_lshlrev_b32 v{A+2*j}, 16, v{r}\nv_and_b32 v{A+2*j+1}, s{S_T2}, v{r}\n"
            else:
                o += f"v_lshlrev_b32 v12, 16, v{r}\nv_and_b32 v13, s{S_T2}, v{r}\nv_add_f32 v{A+2*j}, v12, v{A+2*j}\nv_add_f32 v{A+2*j+1}, v13, v{A+2*j+1}\n"
    o += tstamp(cfg, 5) + "\n"
    for j in range(nd):
        o += f"v_cvt_pk_bf16_f32 v{12+j}, v{A+2*j}, v{A+2*j+1}\n"
    o += f"buffer_store_{sfx} {vr(12, nd)}, v{H_OUT}, s[{S_OUT}:{S_OUT+3}], s{S_T0} offen {cfg.out_pol}\n"
    return o


def reduce_dyn(cfg):
    B, A = 16, 80
    S_TODO, S_NOW = 94, 95
    poll = f"buffer_load_dwordx2 v[8:9], v3, s[{S_IN}:{S_IN+3}], 0 offen sc1\n"
    o = f"""s_mov_b32 s{S_T2}, 0xffff0000
s_mov_b32 s{S_TODO}, 15
s_mov_b32 s{S_CNT}, 0
{poll}s_waitcnt vmcnt(0)
L_dyn:
v_cmp_ne_u64 vcc, v[8:9], v[{H_TAG}:{H_TAG+1}]
s_add_u32 s{S_CNT}, s{S_CNT}, 1
s_cmp_gt_u32 s{S_CNT}, {cfg.spin}
s_cselect_b64 vcc, 0, vcc
s_mov_b32 s{S_NOW}, 0
"""
    for i in range(4):
        half = "vcc_lo" if i < 2 else "vcc_hi"
        o += f"""s_bitcmp1_b32 s{S_TODO}, {i}
s_cbranch_scc0 L_dn{i}
s_bfe_u32 s{S_T0}, {half}, {hex(0x100000 + 16*(i & 1))}
s_cbranch_scc1 L_dn{i}
s_bitset1_b32 s{S_NOW}, {i}
{tstamp(cfg, (4, 0, 1, 2)[i])}
s_mov_b32 s{S_T1}, {i*16384}
{"s_waitcnt vmcnt(46)" if i == 3 else ""}
"""
        for p in range(16):
            o += f"buffer_load_dword v{B+16*i+p}, v{H_RD}, s[{S_WS}:{S_WS+3}], s{S_T1} offen {cfg.red_pol}\n"
            if p < 15:
                o += f"s_add_u32 s{S_T1}, s{S_T1}, 0x10000\n"
        o += f"L_dn{i}:\n"
    o += f"""s_andn2_b32 s{S_TODO}, s{S_TODO}, s{S_NOW}
s_cbranch_scc0 L_dnp
{poll}L_dnp:
s_waitcnt vmcnt(0)
"""
    for i in range(4):
        o += f"s_bitcmp1_b32 s{S_NOW}, {i}\ns_cbranch_scc0 L_ds{i}\n"
        o += f"s_add_u32 s{S_T0}, s{S_B}, {i}\ns_and_b32 s{S_T0}, s{S_T0}, 3\ns_lshl_b32 s{S_T0}, s{S_T0}, 8\n"
        r = B + 16 * i
        o += f"v_lshlrev_b32 v{A}, 16, v{r}\nv_and_b32 v{A+1}, s{S_T2}, v{r}\n"
        for p in range(1, 16):
            o += f"v_lshlrev_b32 v12, 16, v{r+p}\nv_and_b32 v13, s{S_T2}, v{r+p}\nv_add_f32 v{A}, v12, v{A}\nv_add_f32 v{A+1}, v13, v{A+1}\n"
        o += f"v_cvt_pk_bf16_f32 v{A+2+i}, v{A}, v{A+1}\n"
        o += f"buffer_store_dword v{A+2+i}, v{H_OUT}, s[{S_OUT}:{S_OUT+3}], s{S_T0} offen {cfg.out_pol}\nL_ds{i}:\n"
    o += f"""s_cmp_lg_u32 s{S_TODO}, 0
s_cbranch_scc1 L_dyn
{tstamp(cfg, 5)}
"""
    o += EPOCH_NEXT
    return o


def reduce_seq(cfg):
    B, A = 16, 32
    o = f"s_mov_b32 s{S_T2}, 0xffff0000\n"
    poll = lambda i: f"buffer_load_dwordx2 v[8:9], v{H_PL}, s[{S_IN}:{S_IN+3}], 0 offen offset:{128*i} sc1\n"
    o += poll(0) + "s_waitcnt vmcnt(0)\n"
    for i in range(4):
        o += f"""s_mov_b32 s{S_CNT}, 0
L_sp{i}:
v_cmp_ne_u64 vcc, v[8:9], v[{H_TAG}:{H_TAG+1}]
s_cbranch_vccz L_sg{i}
{poll(i)}s_add_u32 s{S_CNT}, s{S_CNT}, 1
s_cmp_lt_u32 s{S_CNT}, {cfg.spin}
s_waitcnt vmcnt(0)
s_cbranch_scc1 L_sp{i}
L_sg{i}:
{tstamp(cfg, (4, 0, 1, 2)[i]) if i in (0, 3) or True else ""}
s_mov_b32 s{S_T1}, {i*16384}
"""
        for p in range(16):
            o += f"buffer_load_dword v{B+p}, v{H_RD}, s[{S_WS}:{S_WS+3}], s{S_T1} offen {cfg.red_pol}\n"
            if p < 15:
                o += f"s_add_u32 s{S_T1}, s{S_T1}, 0x10000\n"
        k = 0
        if i < 3:
            o += poll(i + 1)
            k = 1
        o += f"s_add_u32 s{S_T0}, s{S_B}, {i}\ns_and_b32 s{S_T0}, s{S_T0}, 3\ns_lshl_b32 s{S_T0}, s{S_T0}, 8\n"
        for p in range(16):
            o += f"s_waitcnt vmcnt({15-p+k})\n"
            r = B + p
            if p == 0:
                o += f"v_lshlrev_b32 v{A}, 16, v{r}\nv_and_b32 v{A+1}, s{S_T2}, v{r}\n"
            else:
                o += f"v_lshlrev_b32 v12, 16, v{r}\nv_and_b32 v13, s{S_T2}, v{r}\nv_add_f32 v{A}, v12, v{A}\nv_add_f32 v{A+1}, v13, v{A+1}\n"
        o += f"v_cvt_pk_bf16_f32 v12, v{A}, v{A+1}\n"
        if i < 3:
            o += "s_waitcnt vmcnt(0)\n"
        else:
            o += tstamp(cfg, 5) + "\n"
        o += f"buffer_store_dword v12, v{H_OUT}, s[{S_OUT}:{S_OUT+3}], s{S_T0} offen {cfg.out_pol}\n"
    o += EPOCH_NEXT
    return o


REG = re.compile(r"v\[(\d+):(\d+)\]|v(\d+)")


def regs_of(tok):
    m = REG.fullmatch(tok.strip().lstrip("-"))
    if not m:
        return set()
    if m.group(3):
        return {int(m.group(3))}
    return set(range(int(m.group(1)), int(m.group(2)) + 1))


def parse(line):
    l = line.split(";")[0].strip()
    if not l or l.endswith(":") or l.startswith("."):
        return None
    op, _, rest = l.partition(" ")
    toks = [t.strip() for t in rest.split(",")] if rest else []
    toks = [t.split(" ")[0] for t in toks]
    rd, wr = set(), set()
    if op.startswith("v_cmp"):
        for t in toks[1:]:
            rd |= regs_of(t)
    elif op.startswith("v_permlane"):
        rd = wr = regs_of(toks[0]) | regs_of(toks[1])
    elif op.startswith(("v_readfirstlane", "v_readlane")):
        rd = regs_of(toks[1])
    elif op.startswith("v_"):
        wr = regs_of(toks[0])
        for t in toks[1:]:
            rd |= regs_of(t)
        if op.startswith(("v_fmac", "v_writelane")):
            rd |= wr
    elif op.startswith("ds_read"):
        wr = regs_of(toks[0]); rd = regs_of(toks[1])
    elif op.startswith("ds_write"):
        rd = regs_of(toks[0]) | regs_of(toks[1])
    elif op.startswith(("buffer_store", "buffer_atomic", "global_store", "global_atomic")):
        for t in toks:
            rd |= regs_of(t)
    elif op.startswith(("buffer_load", "global_load")):
        if "lds" in l.split():
            rd = regs_of(toks[0])
        else:
            wr = regs_of(toks[0]); rd = regs_of(toks[1])
    return op, rd, wr, toks


def fix_hazards(lines):
    out = []
    hist = []
    t = 0
    last_mf = -100
    for line in lines:
        p = parse(line)
        if p is None:
            out.append(line)
            continue
        op, rd, wr, toks = p
        is_mf = op.startswith("v_mfma")
        is_valu = op.startswith("v_") and not is_mf
        is_mem = op.startswith(("ds_", "buffer_", "global_"))
        need = 0
        tt = max(t, last_mf + 8) if is_mf else t
        dist = 0
        for (o2, r2, w2, k2, st2, t2) in reversed(hist[-40:]):
            m2 = o2.startswith("v_mfma")
            v2 = o2.startswith("v_") and not m2
            req = 0
            d = dist
            if v2 and o2.startswith(("v_exp", "v_rcp", "v_log", "v_rsq")) and is_valu and not op.startswith(("v_exp", "v_rcp")) and (w2 & rd):
                req = 1
            if v2 and is_mf and (w2 & rd):
                req = 2
            if v2 and op.startswith("v_permlane") and (w2 & rd):
                req = 2
            if v2 and op.startswith(("v_readfirstlane", "v_readlane")) and (w2 & rd):
                req = 1
            if o2.startswith(("buffer_store_dwordx4", "global_store_dwordx4")) and is_valu and (regs_of(k2[0] if o2.startswith("buffer") else k2[1]) & wr):
                req = 2
            if m2 and (is_valu or is_mem) and (w2 & (rd | wr)):
                req = 12
                d = tt - t2 - 1
            if m2 and is_mf and (w2 & (regs_of(toks[1]) | regs_of(toks[2]))):
                req = 12
                d = tt - t2 - 1
            if m2 and is_mf and (w2 & regs_of(toks[3])) and regs_of(toks[3]) != w2:
                req = 10
                d = tt - t2 - 1
            if m2 and is_valu and (regs_of(k2[3]) & wr):
                req = max(req, 7)
                d = tt - t2 - 1
            if req > d:
                need = max(need, req - d)
            dist += st2
        while need > 0:
            k = min(need, 16)
            out.append("  s_nop %d" % (k - 1))
            hist.append(("s_nop", set(), set(), [], k, t))
            t += k
            need -= k
        tt = max(t, last_mf + 8) if is_mf else t
        st_ = int(toks[0]) + 1 if op == "s_nop" else 1
        hist.append((op, rd, wr, toks, st_, tt))
        t = tt + st_
        if is_mf:
            last_mf = tt
        out.append(line)
    return out


TS = [4, 8, 10, 64, 66, 68, 70, 72]


def tstamp(cfg, k):
    return f"s_memrealtime s[{TS[k]}:{TS[k]+1}]" if cfg.tst else ""


def tst_end(cfg, base):
    o = f"""s_waitcnt vmcnt(0)
{tstamp(cfg, 7)}
s_lshl_b32 s14, s2, 3
s_add_u32 s14, s14, s{S_W}
s_add_u32 s14, s14, {base}
s_lshl_b32 s14, s14, 6
s_add_u32 s14, s14, 0x2300000
s_add_u32 s12, s74, s14
s_addc_u32 s13, s75, 0
s_waitcnt lgkmcnt(0)
v_mov_b32 v14, 0
"""
    for k in range(8):
        o += f"v_mov_b32 v{16+k}, s{TS[k]}\n"
    o += f"""v_mov_b32 v24, s60
v_mov_b32 v25, s{S_CNT}
global_store_dwordx4 v14, v[16:19], s[12:13]
global_store_dwordx4 v14, v[20:23], s[12:13] offset:16
global_store_dwordx2 v14, v[24:25], s[12:13] offset:32
"""
    return o


def span_end(cfg, base):
    if not cfg.span:
        return ""
    return f"""s_waitcnt vmcnt(0)
s_memrealtime s[{S_STT}:{S_STT+1}]
s_lshl_b32 s14, s2, 3
s_add_u32 s14, s14, s{S_W}
s_lshl_b32 s14, s14, 3
s_add_u32 s14, s14, {0x2200000 + base*8}
s_add_u32 s12, s74, s14
s_addc_u32 s13, s75, 0
s_waitcnt lgkmcnt(0)
v_mov_b32 v12, s60
v_mov_b32 v13, s{S_STT}
v_mov_b32 v14, 0
global_store_dwordx2 v14, v[12:13], s[12:13]
"""


def gen_compute(cfg):
    st = Stream()
    R = st.raw
    R("""
L_compute:
v_and_b32 v%(ln)d, 63, v0
""" % dict(ln=V_T0))
    ln = V_T0
    t1 = V_T1
    if cfg.codepf == 2:
        R(f"""
s_getpc_b64 s[94:95]
s_lshr_b32 s{S_T0}, s2, 3
s_lshl_b32 s{S_T0}, s{S_T0}, 2
s_add_u32 s{S_T0}, s{S_T0}, s{S_W}
s_lshl_b32 s{S_T0}, s{S_T0}, 7
s_load_dword s96, s[94:95], s{S_T0}
s_lshr_b32 s{S_T0}, s{S_T0}, 2
s_add_u32 s{S_T0}, s{S_T0}, 0x4000
s_load_dword s97, s[94:95], s{S_T0}
""")
    if cfg.codepf == 1:
        R("""
s_getpc_b64 s[%d:%d]
s_sub_u32 s44, s44, 0x1800
s_subb_u32 s45, s45, 0
v_lshlrev_b32 v16, 7, v0
v_min_u32 v16, CODE_BYTES, v16
global_load_dword v255, v16, s[%d:%d]
""" % (S_T0, S_T0 + 1, S_T0, S_T0 + 1))
    R(f"""
v_lshrrev_b32 v18, 5, v{ln}              ; h
v_bfe_u32 v19, v{ln}, 2, 2
v_xor_b32 v20, v18, v19                  ; h^g
v_lshlrev_b32 v20, 4, v20
v_and_b32 v21, 3, v{ln}
v_lshl_add_u32 v20, v21, 6, v20          ; (key&3)*64 + (h^g)*16
v_bfe_u32 v22, v{ln}, 2, 3               ; key>>2
v_lshl_add_u32 v{V_KL}, v22, 10, v20
v_bfe_u32 v22, v{ln}, 3, 2               ; tok>>3
v_lshl_add_u32 v23, v22, 10, v20
v_bfe_u32 v22, v{ln}, 2, 1
v_lshl_add_u32 v23, v22, 8, v23
s_and_b32 s{S_T0}, s{S_W}, 1
s_lshl_b32 s{S_T0}, s{S_T0}, 12
s_add_u32 s{S_T0}, s{S_T0}, {AUX}
v_add_u32 v{V_XL}, s{S_T0}, v23
v_bfe_u32 v22, v{ln}, 4, 1               ; G&1
v_lshlrev_b32 v22, 5, v22
v_lshl_add_u32 v22, v19, 6, v22          ; r*64 + (G&1)*32
v_lshl_add_u32 v23, v21, 3, v22          ; + c4*8
v_lshl_add_u32 v{V_VL}, v18, 10, v23
v_and_b32 v23, 1, v21
v_lshrrev_b32 v24, 1, v21
v_lshl_add_u32 v23, v23, 1, v24          ; bitswap(c4)
v_lshl_add_u32 v23, v23, 3, v22
s_lshr_b32 s{S_T0}, s{S_W}, 1
s_lshl_b32 s{S_T0}, s{S_T0}, 14
v_lshl_add_u32 v24, v18, 11, v23
v_add_u32 v{V_WQL}, s{S_T0}, v24
s_lshl_b32 s{S_T0}, s{S_W}, 8
v_lshl_add_u32 v24, v18, 10, v23
v_add_u32 v{V_WOL}, s{S_T0}, v24
s_mul_i32 s{S_T0}, s{S_W}, {SLOT}
s_add_u32 s{S_T0}, s{S_T0}, {AUX}
v_lshlrev_b32 v24, 4, v{ln}
v_add_u32 v{V_OW}, s{S_T0}, v24
s_lshr_b32 s{S_T0}, s{S_B}, 2            ; first head = b>>2
s_mul_i32 s{S_T0}, s{S_T0}, {2*SLOT}
s_add_u32 s{S_T0}, s{S_T0}, {AUX}
v_add_u32 v{V_OR}, s{S_T0}, v24          ; O read (first head, th=0)
s_lshl_b32 s{S_T0}, s{S_W}, 12
v_add_u32 v{V_ST}, s{S_T0}, v24          ; partial store voffset: w*4096 + lane*16
s_mov_b32 s{S_THR}, {hex(f2u(2.0**cfg.thr_log2 if not cfg.force_rare else 4.0))}
s_mov_b32 s{S_QS}, {hex(f2u(QSCALE))}
v_mov_b32 v{V_L}, 0
""")
    R(EPOCH)
    if cfg.prio:
        R(f"s_setprio {cfg.prio}")
    if cfg.itlb:
        R("%WARM%")
    stamp(st, cfg, 1)

    def addr_update(c):
        base = (c % 4) * SLOT
        if c < 8:
            return [f"v_add_u32 v{V_XA0}, {base}, v{V_XL}", f"v_add_u32 v{V_TA}, {base}, v{V_WQL}",
                    f"v_xor_b32 v{V_XA1}, 32, v{V_XA0}"]
        if c < 16:
            return [f"v_add_u32 v{V_XA0}, {base}, v{V_KL}", f"v_add_u32 v{V_TA}, {base}, v{V_VL}",
                    f"v_xor_b32 v{V_XA1}, 32, v{V_XA0}"]
        return [f"v_add_u32 v{V_TA}, {base}, v{V_WOL}"]

    fr_i = [0]

    def next_frag():
        f = FR + 4 * (fr_i[0] % 8)
        fr_i[0] += 1
        return f

    def tr_pair(f, off0, off1, chunk, lead=None):
        return RG([f"ds_read_b64_tr_b16 {vr(f,2)}, v{V_TA} offset:{off0}",
                   f"ds_read_b64_tr_b16 {vr(f+2,2)}, v{V_TA} offset:{off1}"], chunk, lead)

    mfs, wins, pre, shadow, bar = [], [], {}, {}, {}
    xi = 0
    for c in range(8):
        bar[len(mfs) - 1 - cfg.BL if c else -1] = c
        xr = []
        for s in range(4):
            xf = XF + 4 * (xi % 4)
            xi += 1
            xr.append((xf, RG([f"ds_read_b128 {vr(xf,4)}, v{V_XA0 + (s & 1)} offset:{(s >> 1) * 512}"], c, cfg.D1)))
        order = [(s, t) for s in range(4) for t in range(4)]
        if c == 7 and cfg.t1:
            order = [(s, t) for t in range(4) for s in range(4)]
        for s, t in order:
            f = next_frag()
            rg = tr_pair(f, (4 * s) * 1024 + t * 256, (4 * s + 1) * 1024 + t * 256, c, cfg.D1)
            cin = "0" if (c == 0 and s == 0) else ACC + 16 * t
            mfs.append(MF(mfma(ACC + 16 * t, f, xr[s][0], cin), [xr[s][1], rg], c))
    n1 = len(mfs)
    pre[n1] = [lambda: stamp(st, cfg, 2)] + (["s_waitcnt vmcnt(0)"] if cfg.codepf == 1 else [])
    for h in range(8):
        ops = [f"v_mul_f32 v{ACC+8*h+i}, s{S_QS}, v{ACC+8*h+i}" for i in range(8)]
        ops += [f"v_cvt_pk_bf16_f32 v{QR+4*h+i}, v{ACC+8*h+2*i}, v{ACC+8*h+2*i+1}" for i in range(4)]
        if cfg.t1:
            wins.append((ops, n1 - 16 + 4 * (h >> 1) + 5, n1 + h - 1))
        else:
            pre[n1] += ops
    items = [("K", 0)]
    for t in range(1, 16):
        items += [("K", t), ("V", t - 1)]
    items.append(("V", 15))
    start = {}
    for q, (kind, t) in enumerate(items):
        c = 8 + (q >> 2)
        tb = (q & 3) * 8192
        if (q & 3) == 0:
            bar[len(mfs) - 1 - cfg.BL] = c
        start[(kind, t)] = len(mfs)
        if kind == "K":
            S = SB[t & 1]
            for s in range(8):
                f = next_frag()
                rg = RG([f"ds_read_b128 {vr(f,4)}, v{V_XA0 + (s & 1)} offset:{tb + (s >> 1) * 256}"], c, cfg.D2)
                cin = S if s else ("0" if t < 2 else NEGM)
                mfs.append(MF(mfma(S, f, QR + 4 * s, cin), [rg], c))
        else:
            order = [(u, d) for u in range(2) for d in range(4)]
            if t == 15 and cfg.t3:
                order = [(u, d) for d in range(4) for u in range(2)]
            for u, d in order:
                if True:
                    f = next_frag()
                    rg = tr_pair(f, tb + (4 * u) * 1024 + d * 256, tb + (4 * u + 2) * 1024 + d * 256, c, cfg.D2)
                    cin = "0" if (t == 0 and u == 0) else ACC + 16 * d
                    mfs.append(MF(mfma(ACC + 16 * d, f, PB[t & 1] + 4 * u, cin), [rg], c))
    S = SB[0]
    ops0 = ["v_max3_f32 v%d, v%d, v%d, v%d" % (V_T0, S, S + 1, S + 2)]
    for i in range(3, 15, 2):
        ops0.append("v_max3_f32 v%d, v%d, v%d, v%d" % (V_T0, V_T0, S + i, S + i + 1))
    ops0.append("v_max_f32 v%d, v%d, v%d" % (V_T0, V_T0, S + 15))
    ops0.append("v_mov_b32 v%d, v%d" % (V_T1, V_T0))
    ops0.append("v_permlane32_swap_b32 v%d, v%d" % (V_T0, V_T1))
    ops0.append("v_max_f32 v%d, v%d, v%d" % (V_T0, V_T0, V_T1))
    ops0.append("v_sub_f32 v%d, 0, v%d" % (NEGM, V_T0))
    ops0 += softmax_ops(0, True)
    ops0.append("v_add_f32 v%d, v%d, v%d" % (V_L, V_LT, V_L))
    k1 = start[("K", 1)]
    wins.append((ops0, k1 + 1, k1 + 7))
    nb = ["v_mov_b32 v%d, v%d" % (NEGM + i, NEGM) for i in range(1, 16)]
    wins.append((nb, start[("V", 0)], start[("V", 0)] + 6))
    rare = []
    for t in range(1, 16):
        ops = softmax_ops(t, t == 1)
        g0 = start[("V", t - 1)] + 1
        pv = start[("V", t)]
        chk = ["v_cmp_nge_f32 vcc, s%d, v%d" % (S_THR, V_LT)]
        br = ["s_cbranch_vccnz L_rare%d" % t, "L_back%d:" % t]
        ladd = ["v_add_f32 v%d, v%d, v%d" % (V_L, V_LT, V_L)]
        if 1 < t < 15:
            wins.append((ops + chk, g0, pv - 2))
            shadow[pv - 1] = br
            wins.append((ladd, pv - 1, pv))
        else:
            wins.append((ops + chk + br, g0, pv - 1))
            wins.append((ladd, pv, pv))
        rare += rare_path(t)
    pv = start[("V", 15)]
    nend = len(mfs)
    lops = [f"v_mov_b32 v{V_T0}, v{V_L}", "s_nop 0", "s_nop 0", f"v_permlane32_swap_b32 v{V_L}, v{V_T0}",
            f"v_add_f32 v{V_L}, v{V_L}, v{V_T0}", f"v_rcp_f32 v{V_L}, v{V_L}"]

    def norm_ops(ks, packed):
        a = ACC + 8 * ks
        if packed:
            o = [f"v_pk_mul_f32 v[{a+2*i}:{a+2*i+1}], v[{a+2*i}:{a+2*i+1}], v[{V_L}:{V_L+1}] op_sel_hi:[1,0]" for i in range(4)]
        else:
            o = [f"v_mul_f32 v{a+i}, v{V_L}, v{a+i}" for i in range(8)]
        o += [f"v_cvt_pk_bf16_f32 v{QR+4*ks+i}, v{a+2*i}, v{a+2*i+1}" for i in range(4)]
        return o + [(f"ds_write_b128 v{V_OW}, {vr(QR+4*ks,4)} offset:{ks*1024}", 12)]
    if cfg.t3:
        wins.append((lops, pv, pv + 2))
        for ks in range(cfg.t3):
            wins.append((norm_ops(ks, False), pv + 3 + 2 * (ks >> 1), nend - 1))
        post = sum((norm_ops(ks, cfg.pk) for ks in range(cfg.t3, 8)), [])
    else:
        post = lops + sum((norm_ops(ks, cfg.pk) for ks in range(8)), [])
    emit_schedule(st, mfs, wins, pre, shadow, cfg, cfg.D2, bar, addr_update)
    stamp(st, cfg, 3)
    for o in pre.get(nend, []) + post:
        if isinstance(o, tuple):
            st.ds(o[0])
        else:
            R(o)
    R(f"s_lshr_b32 s{S_T0}, s{S_B}, 2\ns_xor_b32 s{S_T0}, s{S_T0}, 1\ns_mul_i32 s{S_T0}, s{S_T0}, {2*SLOT}\ns_add_u32 s{S_T0}, s{S_T0}, {AUX}")
    R(f"v_and_b32 v{V_OW+0}, 63, v0\nv_lshlrev_b32 v{V_T0}, 4, v{V_OW}")
    st.lines.pop(); st.lines.pop()
    R(f"v_and_b32 v{V_T1}, 63, v0\nv_lshlrev_b32 v{V_T1}, 4, v{V_T1}\nv_add_u32 v{V_XA0}, s{S_T0}, v{V_T1}")
    mfs, wins, pre, shadow, bar = [], [], {}, {}, {}
    orgs = {}
    for i in range(4):
        A = ACC + 32 * (i & 1)
        for kh in range(2):
            c = 16 + 2 * i + kh
            bar[len(mfs) - 1 - cfg.BL if c > 16 else -1] = c
            for ks in range(8):
                f = next_frag()
                rg = tr_pair(f, (4 * ks) * 1024, (4 * ks + 2) * 1024, c, cfg.D3)
                for th in range(2):
                    o = OF + 64 * kh + 32 * th + 4 * ks
                    reads = [rg]
                    if i == 0:
                        areg = V_OR if kh == 0 else V_XA0
                        reads.append(RG([f"ds_read_b128 {vr(o,4)}, v{areg} offset:{th*SLOT + ks*1024}"], 16, cfg.D3 - 2))
                        reads[-1].free = True
                    cin = "0" if (kh == 0 and ks == 0) else A + 16 * th
                    mfs.append(MF(mfma(A + 16 * th, f, o, cin), reads, c))

    def cvt_ops(i, f):
        A = ACC + 32 * (i & 1) + 8 * f
        return [f"v_cvt_pk_bf16_f32 v{PK+4*f+j}, v{A+2*j}, v{A+2*j+1}" for j in range(4)]

    def st_op(i, f):
        return [f"buffer_store_dwordx4 {vr(PK+4*f,4)}, v{V_ST}, s[{S_WS}:{S_WS+3}], s{S_NC0+i} offen offset:{f*1024} {cfg.st_pol}"]

    def flag_op(i):
        return f"buffer_store_dwordx2 v[{H_TAG}:{H_TAG+1}], v{H_FL}, s[{S_IN}:{S_IN+3}], 0 offen offset:{128*i} sc1"
    wins.append(([f"s_add_u32 s{S_NC0+i}, s{S_HPO}, {i*16384}" for i in range(4)], 33, 40))
    vq, sent = [], set()

    def vwait(tag):
        p = max(k for k, t in enumerate(vq) if t == tag)
        n = len(vq) - 1 - p
        del vq[:p + 1]
        return f"s_waitcnt vmcnt({n})"
    if cfg.stmode == "late":
        vq += [("st", 0)] * 3 + [("st", 1), ("st", 0)] + [("st", 1)] * 3 + [("st", 2)] * 4
        wins.append((sum((cvt_ops(0, f) for f in range(4)), []), 33, 60))
        wins.append((handoff_addr(3, "q"), 40, 78))
        g = 80 + cfg.ST0
        for f in range(4):
            wins.append((st_op(0, f), g + 2 * f, 94))
        for f in range(4):
            wins.append((cvt_ops(1, f) + st_op(1, f), g + 2 * f + 3, 94))
        for f in range(4):
            wins.append((cvt_ops(2, f) + st_op(2, f), 97 + 3 * f, 126))
    else:
        wins.append((handoff_addr(3, "q"), 33, 60))
        ev = []
        for i in range(3):
            for f in range(4):
                ev.append((32 * (i + 1) + 2 + cfg.STS * f, "st", i, f))
        ev.append((cfg.FL0, "fl", 0, 0))
        ev.append((cfg.FL1, "fl", 1, 0))
        for g, kind, i, f in sorted(ev):
            if kind == "st":
                wins.append((cvt_ops(i, f) + st_op(i, f), g, 32 * (i + 2) - 1))
                vq.append(("st", i))
            elif g < 128:
                wins.append(([vwait(("st", i)), flag_op(i)], g, 127))
                vq.append(("fl", i))
                sent.add(i)
    if cfg.endbar and cfg.EB < 128:
        shadow[cfg.EB] = ["s_barrier"]
    emit_schedule(st, mfs, wins, pre, shadow, cfg, cfg.D3, bar, addr_update, virtual={23})
    stamp(st, cfg, 4)
    if cfg.tst:
        R(tstamp(cfg, 0))
    if cfg.stamps:
        vq.append("stamp")
    for f in range(4):
        R("\n".join(cvt_ops(3, f) + st_op(3, f)))
        vq.append(("st", 3))
    if cfg.tst:
        R(tstamp(cfg, 1))
    for i in range(4):
        if i not in sent:
            if ("st", i) in vq:
                R(vwait(("st", i)))
            R(flag_op(i))
            vq.append(("fl", i))
        if i == 1 and cfg.endbar and cfg.EB >= 128:
            R("s_barrier")
        if i == 2 and cfg.tst:
            R(tstamp(cfg, 2))
    if cfg.tst:
        R(tstamp(cfg, 3))
    stamp(st, cfg, 8)
    if not cfg.seq:
        rc = reduce_code(cfg, 3, "q", "c").split("L_go_c:\n")
        R(rc[0] + "L_go_c:")
        stamp(st, cfg, 9)
        R(rc[1])
        R(EPOCH_NEXT)
    stamp(st, cfg, 10)
    if cfg.stamps:
        R("s_waitcnt vmcnt(0)")
        stamp(st, cfg, 5)
        R(f"s_memrealtime s[{S_STT}:{S_STT+1}]\ns_waitcnt lgkmcnt(0)\nv_mov_b32 v{V_T0}, s{S_STT}\nv_mov_b32 v{V_T1}, 28\nglobal_store_dword v{V_T1}, v{V_T0}, s[{S_STB}:{S_STB+1}]")
    if cfg.tst:
        R(tst_end(cfg, 0))
    if cfg.span:
        R(span_end(cfg, 0))
    R("s_endpgm")
    R("L_main_end:")
    R("\n".join(rare))
    if cfg.dbg:
        keep = []
        for l in st.lines:
            t = l.strip()
            if "E" in cfg.dbg and t.startswith("v_exp"): continue
            if "A" in cfg.dbg and t.startswith("v_add_f32"): continue
            if "C" in cfg.dbg and t.startswith("v_cvt_pk") and (" v19" in t.split(",")[0] or " v20" in t.split(",")[0]): continue
            if "K" in cfg.dbg and t.startswith("ds_read_b128"): continue
            if "T" in cfg.dbg and t.startswith("ds_read_b64_tr"): continue
            if "W" in cfg.dbg and t.startswith("s_waitcnt lgkmcnt"): continue
            if "B" in cfg.dbg and (t.startswith("s_cbranch_vccnz") or t.startswith("v_cmp_nge")): continue
            keep.append(l)
        st.lines = keep
    n0 = len(st.lines)
    st.lines = fix_hazards(st.lines)
    if cfg.verbose:
        print("hazard nops inserted:", len(st.lines) - n0, file=sys.stderr)
    return st.text()


def gen_loader(cfg):
    L = []
    R = lambda t: L.extend(("  " + l.strip()) if not l.endswith(":") else l for l in t.strip("\n").split("\n"))
    vWQ, vX, vK, vV, vWO = 1, 2, 3, 4, 5
    R(f"""
L_loader:
s_sub_u32 s{S_W}, s{S_W}, 4
v_and_b32 v10, 63, v0
v_lshrrev_b32 v11, 4, v10               ; t = i>>4
v_bfe_u32 v12, v10, 2, 2                ; r
v_and_b32 v13, 3, v10                   ; c
v_lshlrev_b32 v14, 6, v11
v_lshl_add_u32 v15, v13, 4, v14         ; t*64 + c*16
s_and_b32 s{S_T0}, s{S_W}, 1
s_lshl_b32 s{S_T0}, s{S_T0}, 18
s_lshr_b32 s{S_T1}, s{S_W}, 1
s_lshl_b32 s{S_T1}, s{S_T1}, 8
s_add_u32 s{S_T0}, s{S_T0}, s{S_T1}
v_lshl_add_u32 v16, v12, 13, v15
v_add_u32 v{vWQ}, s{S_T0}, v16
s_lshl_b32 s{S_M8}, s{S_W}, 13
s_lshl_b32 s{S_M1}, s{S_W}, 10
v_and_b32 v16, 1, v11                   ; tq
s_and_b32 s{S_T0}, s{S_W}, 1
s_lshl_b32 s{S_T0}, s{S_T0}, 1
v_or_b32 v17, s{S_T0}, v16              ; g
v_xor_b32 v17, v17, v13
v_lshlrev_b32 v17, 4, v17
v_lshrrev_b32 v18, 1, v11               ; ch
v_lshl_add_u32 v17, v18, 6, v17
v_lshl_add_u32 v18, v16, 2, v12         ; 4tq + t3
v_lshl_add_u32 v17, v18, 10, v17
v_add_u32 v{vX}, s{S_M8}, v17           ; + 8*lw*1024
""")
    vq = []

    def issue(c):
        base = (c % 4) * SLOT
        n = 0
        if c < 8:
            R(f"s_add_u32 s{S_T0}, s{S_ROT}, {c}\ns_and_b32 s{S_T0}, s{S_T0}, 7\ns_lshl_b32 s{S_T1}, s{S_T0}, 7\ns_lshl_b32 s{S_T0}, s{S_T0}, 19")
            for p in range(2):
                R(f"s_add_u32 m0, s{S_M1}, {base + AUX + p*4096}")
                R(f"s_add_u32 s{S_T2}, s{S_T1}, {p*32768}")
                R(f"buffer_load_dwordx4 v{vX}, s[{S_X}:{S_X+3}], s{S_T2} offen {cfg.nt_w} lds")
                n += 1
            for p in range(8):
                R(f"s_add_u32 m0, s{S_M8}, {base + p*1024}")
                R(f"s_add_u32 s{S_T2}, s{S_T0}, {p*32768}")
                R(f"buffer_load_dwordx4 v{vWQ}, s[{S_WQ}:{S_WQ+3}], s{S_T2} offen {cfg.nt_w} lds")
                n += 1
        elif c < 16:
            for j in range(4):
                q = (c - 8) * 4 + j
                if q == 0:
                    kind, t = "K", 0
                elif q == 31:
                    kind, t = "V", 15
                elif q & 1:
                    kind, t = "K", (q + 1) // 2
                else:
                    kind, t = "V", q // 2 - 1
                for p in range(2):
                    R(f"s_add_u32 m0, s{S_M1}, {base + j*8192 + p*4096}")
                    R(f"s_mov_b32 s{S_T2}, {t*8192 + p*4096}")
                    v, s = (vK, S_K) if kind == "K" else (vV, S_V)
                    R(f"buffer_load_dwordx4 v{v}, s[{s}:{s+3}], s{S_T2} offen {cfg.nt_kv} lds")
                    n += 1
        else:
            i, kh = (c - 16) >> 1, (c - 16) & 1
            R(f"s_add_u32 s{S_T0}, s{S_B}, {i}\ns_and_b32 s{S_T0}, s{S_T0}, 3\ns_lshl_b32 s{S_T0}, s{S_T0}, 8")
            R(f"s_lshr_b32 s{S_T1}, s{S_B}, 2\ns_xor_b32 s{S_T1}, s{S_T1}, {kh}\ns_lshl_b32 s{S_T1}, s{S_T1}, 17\ns_add_u32 s{S_T0}, s{S_T0}, s{S_T1}")
            for p in range(8):
                R(f"s_add_u32 m0, s{S_M8}, {base + p*1024}")
                R(f"s_add_u32 s{S_T2}, s{S_T0}, {p*4096}")
                R(f"buffer_load_dwordx4 v{vWO}, s[{S_WO}:{S_WO+3}], s{S_T2} offen {cfg.nt_w} lds")
                if cfg.pace and c >= cfg.pace0:
                    R(cfg.pace.replace(";", "\n"))
                n += 1
        vq.extend([("c", c)] * n)

    def lstamp(i):
        if cfg.lstamps:
            R(f"s_memtime s[{S_STT}:{S_STT+1}]\ns_waitcnt lgkmcnt(0)\nv_writelane_b32 v120, s{S_STT}, {i}")
    lstamp(50)
    issue(0)
    lstamp(51)
    R(f"""
v_lshl_add_u32 v16, v12, 8, v15
v_add_u32 v{vV}, s{S_M1}, v16
v_xor_b32 v16, s{S_W}, v13
v_lshl_add_u32 v16, v16, 4, v14
v_lshl_add_u32 v16, v12, 8, v16
v_add_u32 v{vK}, s{S_M1}, v16
v_lshl_add_u32 v16, v12, 10, v15
s_lshl_b32 s{S_T0}, s{S_W}, 15
v_add_u32 v{vWO}, s{S_T0}, v16
""")
    if cfg.plan:
        depth = [int(ch) for ch in cfg.plan]
        depth += [depth[-1]] * (24 - len(depth))
    else:
        depth = [cfg.pro - 1] + [2] * 23
        depth = [cfg.pro - 1] + [max(2, 0)] * 23
    def wait_for(*tags):
        pos = [k for k, t in enumerate(vq) if t in tags]
        if pos:
            n = len(vq) - 1 - max(pos)
            R(f"s_waitcnt vmcnt({n})")
            del vq[:max(pos) + 1]

    tl = []
    for q in range(8):
        kind, t = (("K", 0) if q == 0 else ("K", (q + 1) // 2) if q & 1 else ("V", q // 2 - 1))
        tl.append((kind, t))
    tq = [(kind, t * 8192 + j * 128) for kind, t in tl for j in range(8)]
    if cfg.touch:
        R(f"""s_and_b32 s{S_T0}, s{S_HP}, 1
s_lshl_b32 s{S_T0}, s{S_T0}, 12
s_add_u32 s{S_T0}, s{S_T0}, s{S_M1}
s_add_u32 s94, s{S_K}, s{S_T0}
s_addc_u32 s95, s{S_K+1}, 0
s_add_u32 s96, s{S_V}, s{S_T0}
s_addc_u32 s97, s{S_V+1}, 0""")
    nxt = 1
    for s in range(23):
        tgt = min(23, s + depth[s])
        assert tgt <= max(3, s + 2)
        while nxt <= tgt:
            issue(nxt)
            if s == 0:
                lstamp(51 + nxt)
            nxt += 1
        if s == 0:
            lstamp(48)
        if s < len(cfg.touch):
            for _ in range(int(cfg.touch[s], 16)):
                if tq:
                    kind, off = tq.pop(0)
                    R(f"s_load_dword s98, s[{94 if kind == 'K' else 96}:{95 if kind == 'K' else 97}], {off}")
        if s == 12:
            R(EPOCH)
        wait_for(("c", s if s < 22 else 23))
        lstamp(2 * s)
        R("s_barrier")
        if cfg.tst and s in (0, 8, 16):
            R(tstamp(cfg, s // 8) if not cfg.seq else tstamp(cfg, 6) if s == 16 else "")
        lstamp(2 * s + 1)
    if not cfg.seq:
        R(f"s_cmp_eq_u32 s{S_W}, 3\ns_cbranch_scc1 L_ld_done")
    R("\n".join(handoff_addr(0, "q" if cfg.seq else "w")))
    R(f"s_lshl_b32 s{S_T1}, s{S_HP}, 9\nv_lshlrev_b32 v3, 3, v10\nv_add_u32 v3, s{S_T1}, v3")
    lstamp(46)
    if cfg.endbar:
        R("s_barrier")
    if cfg.tst:
        R(tstamp(cfg, 3))
    lstamp(47)
    R(reduce_dyn(cfg) if cfg.seq and cfg.dyn else reduce_seq(cfg) if cfg.seq else reduce_code(cfg, f"s{S_W}", "w", "l"))
    R("L_ld_done:")
    if cfg.lstamps:
        R(f"""v_writelane_b32 v120, s62, 49
s_lshl_b32 s14, s2, 2
s_add_u32 s14, s14, s{S_W}
s_lshl_b32 s14, s14, 8
s_add_u32 s14, s14, 0x2100000
s_add_u32 s{S_STT}, s74, s14
s_addc_u32 s{S_STT+1}, s75, 0
v_lshlrev_b32 v21, 2, v10
global_store_dword v21, v120, s[{S_STT}:{S_STT+1}]""")
    if cfg.tst:
        R(tst_end(cfg, 4))
    if cfg.span:
        R(span_end(cfg, 4))
    R("s_endpgm")
    return "\n".join(L) + "\n"


def gen_main(cfg):
    name = NAME + "_kernel"
    s = f""".globl {name}
.p2align 12
.p2align 8
.type {name},@function
{name}:
  s_cmp_ge_u32 s2, 256
  s_cbranch_scc1 L_exit
"""
    if cfg.stamps or cfg.lstamps or cfg.span or cfg.tst:
        s += f"  s_memrealtime s[60:61]\n  s_memtime s[62:63]\n"
    s += f"""
  s_and_b32 s3, s2, 7
  s_lshr_b32 s4, s2, 3            ; slot
  s_and_b32 s5, s4, 1
  s_lshl_b32 s3, s3, 1
  s_add_u32 s3, s3, s5
  s_lshr_b32 s{S_BR}, s3, 3       ; branch
  s_mul_i32 s5, s{S_BR}, 40
  s_add_u32 s8, s0, s5
  s_addc_u32 s9, s1, 0
  s_load_dwordx8 s[64:71], s[8:9], 0      ; x k v wq
  s_load_dwordx2 s[72:73], s[8:9], 32     ; wo
  s_load_dwordx2 s[74:75], s[0:1], 96     ; ws
  s_load_dwordx2 s[92:93], s[0:1], 80     ; out
  s_and_b32 s3, s3, 7             ; hkv
  {f"s_lshr_b32 s{S_B}, s4, 2" if cfg.remap else f"s_bfe_u32 s{S_B}, s4, 0x30001"}   ; b
  {"s_bfe_u32 s5, s4, 0x10001" if cfg.remap else "s_lshr_b32 s5, s4, 4"}            ; half
  s_lshl_b32 s{S_HP}, s3, 1
  s_add_u32 s{S_HP}, s{S_HP}, s5  ; hp
  s_and_b32 s{S_ROT}, s4, 1
  s_lshl_b32 s5, s5, 1
  s_add_u32 s5, s5, s{S_ROT}
%ROT%
  s_lshl_b32 s{S_GRP}, s{S_BR}, 3
  s_add_u32 s{S_GRP}, s{S_GRP}, s{S_B}
  s_lshl_b32 s10, s{S_B}, 3
  s_add_u32 s10, s10, s3
  s_lshl_b32 s10, s10, 17
  s_lshl_b32 s11, s{S_B}, 16      ; x offset
  s_lshl_b32 s12, s{S_HP}, 9
  s_lshl_b32 s13, s{S_HP}, 18
  s_lshl_b32 s14, s{S_GRP}, 20
  s_lshl_b32 s{S_HPO}, s{S_HP}, 16
  s_lshl_b32 s15, s{S_GRP}, 13
  s_add_u32 s15, s15, 0x1000000
  s_lshl_b32 s18, s{S_GRP}, 8
  s_add_u32 s18, s18, 0x1040000
  s_lshl_b32 s90, s{S_BR}, 10
  s_lshl_b32 s19, s{S_B}, 17
  s_add_u32 s19, s19, s90
  v_lshrrev_b32 v1, 6, v0
  s_mov_b32 s{S_X+2}, 0x10000
  s_mov_b32 s{S_X+3}, 0x20000
  v_readfirstlane_b32 s{S_W}, v1
  s_mov_b32 s{S_K+2}, 0x20000
  s_mov_b32 s{S_K+3}, 0x20000
  s_mov_b32 s{S_V+2}, 0x20000
  s_mov_b32 s{S_V+3}, 0x20000
  s_sub_u32 s{S_WQ+2}, 0x400000, s12
  s_mov_b32 s{S_WQ+3}, 0x20000
  s_mov_b32 s{S_WO+2}, 0x40000
  s_mov_b32 s{S_WO+3}, 0x20000
  s_mov_b32 s{S_WS+2}, 0x100000
  s_mov_b32 s{S_WS+3}, 0x20000
  s_mov_b32 s{S_IN+2}, 0x2000
  s_mov_b32 s{S_IN+3}, 0x20000
  s_sub_u32 s{S_OUT+2}, 0x20000, s90
  s_mov_b32 s{S_OUT+3}, 0x20000
  s_waitcnt lgkmcnt(0)
  s_add_u32 s{S_X}, s64, s11
  s_addc_u32 s{S_X+1}, s65, 0
  s_add_u32 s{S_WQ}, s70, s12
  s_addc_u32 s{S_WQ+1}, s71, 0
  s_add_u32 s{S_K}, s66, s10
  s_addc_u32 s{S_K+1}, s67, 0
  s_add_u32 s{S_V}, s68, s10
  s_addc_u32 s{S_V+1}, s69, 0
  s_add_u32 s{S_WO}, s72, s13
  s_addc_u32 s{S_WO+1}, s73, 0
  s_add_u32 s{S_WS}, s74, s14
  s_addc_u32 s{S_WS+1}, s75, 0
  s_add_u32 s{S_IN}, s74, s15
  s_addc_u32 s{S_IN+1}, s75, 0
  s_add_u32 s{S_EP}, s74, s18
  s_addc_u32 s{S_EP+1}, s75, 0
  s_load_dword s{S_EP+2}, s[{S_EP}:{S_EP+1}], 0
  s_add_u32 s{S_OUT}, s92, s19
  s_addc_u32 s{S_OUT+1}, s93, 0
"""
    if cfg.stamps:
        s += f"""
  s_lshl_b32 s14, s2, 3
  s_add_u32 s14, s14, s{S_W}
  s_lshl_b32 s14, s14, 6
  s_add_u32 s14, s14, 0x2000000
  s_add_u32 s{S_STB}, s74, s14
  s_addc_u32 s{S_STB+1}, s75, 0
  v_mov_b32 v{V_T0}, s62
  v_mov_b32 v{V_T1}, 0
  global_store_dword v{V_T1}, v{V_T0}, s[{S_STB}:{S_STB+1}]
  v_mov_b32 v{V_T0}, s60
  v_mov_b32 v{V_T1}, 24
  global_store_dword v{V_T1}, v{V_T0}, s[{S_STB}:{S_STB+1}]
  s_waitcnt vmcnt(0)
"""
    s += f"""
  s_cmp_lt_u32 s{S_W}, 4
  s_cbranch_scc1 L_compute
"""
    s += gen_loader(cfg)
    comp = gen_compute(cfg)
    s += ".p2align 12\n" + comp
    s += "L_exit:\n  s_endpgm\nL_code_end:\n"
    s = s.replace("CODE_BYTES", "0x7f80")
    rot = {8: f"  s_lshl_b32 s5, s5, 1\n  s_add_u32 s{S_ROT}, s5, s{S_B}",
           -8: f"  s_mov_b32 s{S_ROT}, s{S_B}",
           4: f"  s_add_u32 s5, s5, s{S_B}\n  s_lshl_b32 s{S_ROT}, s5, 1",
           2: f"  s_add_u32 s5, s5, s{S_B}\n  s_lshl_b32 s{S_ROT}, s5, 2",
           1: f"  s_mov_b32 s{S_ROT}, 0"}[cfg.rot]
    s = s.replace("%ROT%", rot)
    return s


def gen_reduce(cfg):
    name = "reduce_kernel"
    s = f""".globl {name}
.p2align 8
.type {name},@function
{name}:
  s_cmp_ge_u32 s2, 256
  s_cbranch_scc1 L_rexit
  s_load_dwordx2 s[4:5], s[0:1], 96
  s_load_dwordx2 s[6:7], s[0:1], 80
  s_lshr_b32 s8, s2, 4            ; group
  s_and_b32 s9, s2, 15            ; slice
  s_lshl_b32 s10, s8, 20
  s_lshl_b32 s11, s9, 12
  s_add_u32 s10, s10, s11
  v_lshlrev_b32 v1, 4, v0
  s_mov_b32 s14, 0x100000
  s_mov_b32 s15, 0x20000
  s_mov_b32 s18, 0x100000
  s_mov_b32 s19, 0x20000
  s_waitcnt lgkmcnt(0)
  s_add_u32 s12, s4, s10
  s_addc_u32 s13, s5, 0
  s_mov_b32 s16, s6
  s_mov_b32 s17, s7
"""
    for p in range(16):
        s += f"  s_mov_b32 s20, {p*65536}\n  buffer_load_dwordx4 v[{16+4*p}:{19+4*p}], v1, s[12:15], s20 offen {cfg.red_pol}\n"
    s += """
  s_and_b32 s20, s8, 7
  s_lshl_b32 s20, s20, 17
  s_lshr_b32 s21, s8, 3
  s_lshl_b32 s21, s21, 10
  s_add_u32 s20, s20, s21
  s_and_b32 s21, s9, 1
  s_lshl_b32 s21, s21, 16
  s_add_u32 s20, s20, s21
  s_lshr_b32 s21, s9, 1
  s_lshl_b32 s21, s21, 7
  s_add_u32 s20, s20, s21
  v_and_b32 v2, 31, v0
  v_lshlrev_b32 v2, 11, v2
  v_lshrrev_b32 v3, 5, v0
  v_lshl_add_u32 v2, v3, 4, v2
  s_mov_b32 s22, 0xffff0000
"""
    for p in range(16):
        s += f"  s_waitcnt vmcnt({15-p})\n"
        for j in range(4):
            r = 16 + 4 * p + j
            if p == 0:
                s += f"  v_lshlrev_b32 v{4+2*j}, 16, v{r}\n  v_and_b32 v{5+2*j}, s22, v{r}\n"
            else:
                s += f"  v_lshlrev_b32 v12, 16, v{r}\n  v_and_b32 v13, s22, v{r}\n  v_add_f32 v{4+2*j}, v12, v{4+2*j}\n  v_add_f32 v{5+2*j}, v13, v{5+2*j}\n"
    for j in range(4):
        s += f"  v_cvt_pk_bf16_f32 v{12+j}, v{4+2*j}, v{5+2*j}\n"
    s += """  buffer_store_dwordx4 v[12:15], v2, s[16:19], s20 offen
L_rexit:
  s_endpgm
"""
    return s


def desc(name, nv, ns):
    return f""".p2align 6
.amdhsa_kernel {name}
  .amdhsa_next_free_vgpr {nv}
  .amdhsa_next_free_sgpr {ns}
  .amdhsa_accum_offset {nv}
  .amdhsa_group_segment_fixed_size 0
  .amdhsa_kernarg_size 104
  .amdhsa_user_sgpr_count 2
  .amdhsa_user_sgpr_kernarg_segment_ptr 1
  .amdhsa_system_sgpr_workgroup_id_x 1
.end_amdhsa_kernel
"""


def generate(cfg):
    ref = open("cdna_kernels/%s.s.ref" % NAME).read().split("\n")
    head = [l for l in ref if l.startswith(";") and "@launch" not in l and "Override launch" not in l and "grid=ceil" not in l]
    head = head[:14]
    s = "\n".join(head) + "\n"
    s += f"; @launch grid=(256,1,1) block=(512,1,1) lds=163840\n"
    s += '.amdgcn_target "amdgcn-amd-amdhsa--gfx950"\n.text\n'
    s += gen_main(cfg)
    s += '.section .rodata,"a"\n'
    s += desc(NAME + "_kernel", 256, 100)
    return s


def add_page_stubs(text):
    import subprocess, tempfile, os
    lines = text.split("\n")
    i0 = lines.index("L_compute:")
    i1 = lines.index("L_main_end:")
    iw = next(i for i, l in enumerate(lines) if l.strip() == "%WARM%")
    nwarm = 10
    probe = lines[:iw] + ["  s_nop 0"] * nwarm + lines[iw + 1:]
    d = tempfile.mkdtemp()
    open(d + "/p.s", "w").write("\n".join(probe))
    subprocess.check_call(["clang", "-x", "assembler", "-target", "amdgcn-amd-amdhsa", "-mcpu=gfx950", "-c", d + "/p.s", "-o", d + "/p.o"])
    dis = subprocess.check_output(["llvm-objdump", "-d", "--mcpu=gfx950", d + "/p.o"], text=True).split("\n")
    k = next(i for i, l in enumerate(dis) if l.endswith("<L_compute>:"))
    sizes = [4 * len(l.split("//")[1].split(":")[1].split()) for l in dis[k:] if "//" in l]
    out, addr, n, stubs = probe[:i0 + 1], 0, 0, []
    for l in probe[i0 + 1:i1 + nwarm - 1]:
        t = l.split(";")[0].strip()
        if t and not t.endswith(":"):
            if addr // 4096 > len(stubs):
                stubs.append(len(out))
                out.append(None)
                addr += 4
            addr += sizes[n]
            n += 1
        out.append(l)
    out += probe[i1 + nwarm - 1:]
    ns = len(stubs)
    for j, p in enumerate(stubs):
        tgt = "L_stub%d" % (j + 4) if j + 4 < ns else "L_warm_ret"
        out[p] = "L_stub%d:\n  s_cbranch_execz %s" % (j, tgt)
    warm = ["  s_mov_b64 exec, 0"]
    for w in range(4):
        warm += ["  s_cmp_eq_u32 s%d, %d" % (S_W, w), "  s_cbranch_scc1 %s" % ("L_stub%d" % w if w < ns else "L_warm_ret")]
    warm += ["L_warm_ret:\n  s_mov_b64 exec, -1"]
    out[iw:iw + nwarm] = warm
    return "\n".join(out)


if __name__ == "__main__":
    cfg = Cfg()
    out = sys.argv[1]
    for a in sys.argv[2:]:
        k, v = a.split("=")
        old = getattr(cfg, k)
        if isinstance(old, bool):
            v = v in ("1", "True", "true")
        elif isinstance(old, int):
            v = int(v)
        elif isinstance(old, float):
            v = float(v)
        else:
            v = v.replace("+", " ")
        setattr(cfg, k, v)
    txt = generate(cfg)
    if cfg.itlb:
        txt = add_page_stubs(txt)
    open(out, "w").write(txt)
```

```python
import sys, re, math

NAME = "concat_heads__gqa_block_cached__gqa_block_cached__near_ridge"
SLOT = 40960
AUX = 32768
QSCALE = math.log2(math.e) / math.sqrt(128.0)


def f2u(x):
    import struct
    return struct.unpack("<I", struct.pack("<f", x))[0]


class Cfg:
    nt_w = ""
    nt_kv = ""
    st_pol = "sc1"
    red_pol = "sc1"
    out_pol = ""
    spin = 2000000
    ST0 = 0
    kvrot = 3
    kvd = 0
    cyc = False
    prow = -1
    tlb = False
    seq = True
    dyn = False
    EB = 200
    t1 = True
    t3 = 2
    pk = True
    touch = ''
    part1 = 10
    FL0 = 90
    FL1 = 122
    endbar = True
    psleep = 0
    remap = True
    span = False
    tst = False
    itlb = True
    STS = 4
    stmode = 'spread'
    prio = 0
    pace = ''
    pace0 = 19
    D1 = 7
    D2 = 7
    D3 = 8
    BL = 3
    stamps = False
    lstamps = False
    codepf = 2
    thr_log2 = 24.0
    rot = 8
    WP = 2
    dbg = ''
    verbose = False
    CAP = 4
    CAPB = 2
    BARC = 4
    MINLEAD = 3
    WL = 3
    nodrain = False
    pro = 4
    plan = '1111111112'
    force_rare = False


class Stream:
    def __init__(self):
        self.lines = []
        self.dsq = []
        self.nid = 0

    def raw(self, t):
        for l in t.strip("\n").split("\n"):
            self.lines.append(l if l.endswith(":") else "  " + l.strip())

    def ds(self, t):
        if len(self.dsq) >= 15:
            self.lines.append("  s_waitcnt lgkmcnt(11)")
            self.dsq = self.dsq[-11:]
        self.nid += 1
        self.dsq.append(self.nid)
        self.lines.append("  " + t)
        return self.nid

    def need(self, ids):
        pos = [self.dsq.index(i) for i in ids if i in self.dsq]
        if not pos:
            return
        p = max(pos)
        n = len(self.dsq) - 1 - p
        self.lines.append("  s_waitcnt lgkmcnt(%d)" % n)
        self.dsq = self.dsq[p + 1:]

    def drain(self):
        if self.dsq:
            self.lines.append("  s_waitcnt lgkmcnt(0)")
        self.dsq = []

    def text(self):
        return "\n".join(self.lines) + "\n"


def vr(a, n=1):
    return "v%d" % a if n == 1 else "v[%d:%d]" % (a, a + n - 1)


def mfma(d, a, b, c):
    cs = c if isinstance(c, str) else vr(c, 16)
    return "v_mfma_f32_32x32x16_bf16 %s, %s, %s, %s" % (vr(d, 16), vr(a, 4), vr(b, 4), cs)


V_TID = 0
V_XA0, V_XA1 = 1, 2
V_TA = 3
V_XL, V_KL = 4, 5
V_WQL, V_VL, V_WOL = 6, 7, 8
V_OW, V_OR = 9, 10
V_ST = 11
V_L, V_LT = 12, 13
V_T0, V_T1 = 14, 15
V_PF = 255
FR = 16
XF = 48
ET = 48
PK = 48
ACC = 64
QR = 128
SB = [160, 176]
PB = [192, 200]
NEGM = 208
OF = 128

S_W = 3
S_B, S_HP, S_GRP, S_BR = 6, 7, 16, 17
S_X, S_K, S_V, S_WQ, S_WO = 20, 24, 28, 32, 36
S_WS = 40
S_T0, S_T1, S_T2 = 44, 45, 46
S_M8, S_M1 = 47, 48
S_NC0 = 50
S_THR = 54
S_QS = 55
S_ROT = 49
S_KVR = 83
S_IN, S_OUT = 76, 84
S_HPO = 88
S_CNT = 89
S_STB = 56
S_STT = 58


class MF:
    def __init__(self, text, reads=None, chunk=None):
        self.text = text
        self.reads = reads or []
        self.chunk = chunk


class RG:
    def __init__(self, texts, chunk, lead=None):
        self.texts = texts
        self.chunk = chunk
        self.ids = None
        self.lead = lead


def stamp(st, cfg, idx):
    if not cfg.stamps:
        return
    st_l = []
    st_l.append("s_memtime s[%d:%d]" % (S_STT, S_STT + 1))
    st_l.append("s_waitcnt lgkmcnt(0)")
    st_l.append("v_mov_b32 v%d, s%d" % (V_T0, S_STT))
    st_l.append("v_mov_b32 v%d, %d" % (V_T1, idx * 4))
    st_l.append("global_store_dword v%d, v%d, s[%d:%d]" % (V_T1, V_T0, S_STB, S_STB + 1))
    st.dsq = []
    st.raw("\n".join(st_l))


def vcost(t):
    if isinstance(t, tuple):
        return t[1]
    if not isinstance(t, str):
        return 0
    if t.endswith(":"):
        return 0
    if t.startswith(("v_exp", "v_rcp")):
        return 8
    if t.startswith("buffer_store"):
        return 12
    return 4


def emit_schedule(st, mfs, wins, pre, shadow, cfg, D, barrier_at, addr_update, virtual=()):
    n = len(mfs)
    open_gap = {c: g for g, c in barrier_at.items()}
    rd_at, rd_gap, seen, pend = {}, {}, set(), []
    for i, m in enumerate(mfs):
        for rg in m.reads:
            if id(rg) in seen:
                continue
            seen.add(id(rg))
            lead = rg.lead if rg.lead is not None else D
            pend.append((max(i - lead, open_gap[rg.chunk]), i, rg))
    g, k = -1, 0
    while k < len(pend):
        cap = 99 if g < 0 else (cfg.CAPB if g in barrier_at else cfg.CAP)
        used = 0
        while k < len(pend) and pend[k][0] <= g and (used + len(pend[k][2].texts) <= cap or pend[k][1] - g <= cfg.MINLEAD):
            rg = pend[k][2]
            rd_at.setdefault(g, []).append(rg)
            rd_gap[id(rg)] = g
            used += len(rg.texts)
            k += 1
        g += 1
    for _, i, rg in pend:
        if rg.chunk + 1 in open_gap and not getattr(rg, "free", False):
            assert rd_gap[id(rg)] < open_gap[rg.chunk + 1], "read of chunk %d after the next barrier" % rg.chunk
    budget = {}
    for g in range(n):
        b = 24 - 4 * sum(len(rg.texts) for rg in rd_at.get(g, []))
        if g in barrier_at:
            b -= cfg.BARC
        budget[g] = b
    gaps = {}
    upd_done = set()
    for g, c in barrier_at.items():
        if g >= 0 and not cfg.nodrain:
            lo = max(gg for gg, l in rd_at.items() if gg < g and any(not getattr(r, "free", False) for r in l))
            if lo <= g - 1:
                for j, t in enumerate(addr_update(c)):
                    gg = min(g - 1, lo + 1 + j)
                    gaps.setdefault(gg, []).append(t)
                    budget[gg] -= 4
                upd_done.add(g)
    over = 0
    for ops, g0, g1 in wins:
        g = g0
        for o in ops:
            c = vcost(o)
            while g <= g1 and budget[g] < c:
                g += 1
            if g > g1:
                pre.setdefault(g1 + 1, []).append(o)
                over += c
            else:
                gaps.setdefault(g, []).append(o)
                budget[g] -= c
    if cfg.verbose:
        print("window overflow cycles", over, "over-budget gaps", [(g, b) for g, b in budget.items() if b < 0], file=sys.stderr)
    for g in sorted(k for k in rd_at if k < 0):
        if g in barrier_at:
            st.drain()
            st.raw("s_barrier")
            for t in addr_update(barrier_at[g]):
                st.raw(t)
        for rg in rd_at[g]:
            rg.ids = [st.ds(t) for t in rg.texts]

    def emit(t):
        if isinstance(t, tuple):
            st.ds(t[0])
        elif callable(t):
            t()
        else:
            st.raw(t)

    for i, m in enumerate(mfs):
        for t in pre.get(i, []):
            emit(t)
        ids = []
        for rg in m.reads:
            assert rg.ids is not None, "read not issued before use at mfma %d" % i
            ids += rg.ids
        st.need(ids)
        st.raw(m.text)
        if i in shadow:
            for t in shadow[i]:
                emit(t)
        if i in barrier_at:
            if barrier_at[i] not in virtual:
                if not cfg.nodrain:
                    st.drain()
                st.raw("s_barrier")
            if i not in upd_done:
                for t in addr_update(barrier_at[i]):
                    st.raw(t)
        elif i not in shadow:
            ids = []
            for j in range(i + 1, min(n, i + 3)):
                for rg in mfs[j].reads:
                    if rg.ids is not None and (j == i + 1 or j - 1 in shadow or rd_gap[id(rg)] <= i - cfg.WL):
                        ids += rg.ids
            st.need(ids)
        for rg in rd_at.get(i, []):
            rg.ids = [st.ds(t) for t in rg.texts]
        for t in gaps.get(i, []):
            emit(t)


def softmax_ops(t, sub_first):
    S = SB[t & 1]
    P = PB[t & 1]
    ops = []
    e = lambda i: ET + (i % 8)
    seq = []
    for i in range(16):
        if sub_first:
            seq.append(("b", i))
        seq.append(("e", i))
    out = []
    pend = []
    for k, i in seq:
        if k == "b":
            out.append("v_add_f32 v%d, v%d, v%d" % (S + i, NEGM, S + i))
            continue
        out.append("v_exp_f32 v%d, v%d" % (e(i), S + i))
        j = i - 1
        if j >= 1:
            if j == 1:
                out.append("v_add_f32 v%d, v%d, v%d" % (V_LT, e(0), e(1)))
            else:
                out.append("v_add_f32 v%d, v%d, v%d" % (V_LT, e(j), V_LT))
            if j & 1:
                out.append("v_cvt_pk_bf16_f32 v%d, v%d, v%d" % (P + j // 2, e(j - 1), e(j)))
    out.append("v_add_f32 v%d, v%d, v%d" % (V_LT, e(15), V_LT))
    out.append("v_cvt_pk_bf16_f32 v%d, v%d, v%d" % (P + 7, e(14), e(15)))
    return out


def rare_path(t):
    S = SB[t & 1]
    S2 = SB[(t + 1) & 1]
    L = ["L_rare%d:" % t, "s_nop 15", "s_nop 3"]
    L.append("v_max3_f32 v%d, v%d, v%d, v%d" % (V_T0, S, S + 1, S + 2))
    for i in range(3, 15, 2):
        L.append("v_max3_f32 v%d, v%d, v%d, v%d" % (V_T0, V_T0, S + i, S + i + 1))
    L.append("v_max3_f32 v%d, v%d, v%d, 0" % (V_T0, V_T0, S + 15))
    L.append("v_mov_b32 v%d, v%d" % (V_T1, V_T0))
    L.append("s_nop 1")
    L.append("v_permlane32_swap_b32 v%d, v%d" % (V_T0, V_T1))
    L.append("v_max_f32 v%d, v%d, v%d" % (V_T0, V_T0, V_T1))
    L.append("v_sub_f32 v%d, 0, v%d" % (V_T1, V_T0))
    L.append("v_exp_f32 v%d, v%d" % (V_T1, V_T1))
    for i in range(16):
        L.append("v_sub_f32 v%d, v%d, v%d" % (NEGM + i, NEGM + i, V_T0))
        L.append("v_sub_f32 v%d, v%d, v%d" % (S + i, S + i, V_T0))
        if t < 15:
            L.append("v_sub_f32 v%d, v%d, v%d" % (S2 + i, S2 + i, V_T0))
    L.append("v_mul_f32 v%d, v%d, v%d" % (V_L, V_L, V_T1))
    for i in range(64):
        L.append("v_mul_f32 v%d, v%d, v%d" % (ACC + i, ACC + i, V_T1))
    L += softmax_ops(t, False)
    L.append("s_nop 1")
    L.append("s_branch L_back%d" % t)
    return L


S_EP = 80
EPOCH = f"""
s_waitcnt lgkmcnt(0)
s_mul_i32 s{S_EP+2}, s{S_EP+2}, 1664525
s_add_u32 s{S_EP+2}, s{S_EP+2}, 1013904223
"""
EPOCH_NEXT = f"""s_or_b32 s{S_T0}, s{S_HP}, s{S_W}
s_cmp_lg_u32 s{S_T0}, 0
s_cbranch_scc1 L_noep
v_mov_b32 v12, 0
global_store_dword v12, v6, s[{S_EP}:{S_EP+1}]
L_noep:
"""
H_FL, H_TAG, H_PL, H_RD, H_OUT = 1, 6, 4, 5, 2


def handoff_addr(i, mode):
    o = f"""
v_and_b32 v12, 63, v0
s_lshl_b32 s{S_T1}, s{S_W}, 11
s_lshl_b32 s{S_T2}, s{S_HP}, 3
s_add_u32 s{S_T1}, s{S_T1}, s{S_T2}
v_lshlrev_b32 v13, 9, v12
v_add_u32 v13, s{S_T1}, v13
v_mov_b32 v14, 0x7fff0000
v_cmp_gt_u32 vcc, 4, v12
v_mov_b32 v{H_TAG}, s{S_EP+2}
s_lshl_b32 s{S_T1}, s{S_HP}, 9
v_cndmask_b32 v{H_FL}, v14, v13, vcc
v_not_b32 v{H_TAG+1}, v{H_TAG}
v_and_b32 v13, 15, v12
v_lshlrev_b32 v14, 3, v13
v_add_u32 v{H_PL}, s{S_T1}, v14
s_lshr_b32 s{S_T1}, s{S_HP}, 1
s_lshl_b32 s{S_T1}, s{S_T1}, 11
s_and_b32 s{S_T2}, s{S_HP}, 1
s_lshl_b32 s{S_T2}, s{S_T2}, 8
s_add_u32 s{S_T1}, s{S_T1}, s{S_T2}
v_lshrrev_b32 v14, 4, v12
"""
    if mode == "q":
        o += f"""
s_lshl_b32 s{S_T2}, s{S_W}, 6
s_add_u32 s{S_T1}, s{S_T1}, s{S_T2}
v_lshlrev_b32 v15, 9, v14
v_lshl_add_u32 v15, v13, 2, v15
v_add_u32 v{H_RD}, s{S_T1}, v15
v_lshrrev_b32 v15, 2, v13
v_lshlrev_b32 v15, 11, v15
v_lshl_add_u32 v15, v14, 4, v15
v_and_b32 v13, 3, v13
v_lshl_add_u32 v15, v13, 2, v15
s_lshl_b32 s{S_T2}, s{S_W}, 13
"""
    else:
        o += f"""
v_lshlrev_b32 v15, 9, v14
v_lshl_add_u32 v15, v13, 4, v15
v_add_u32 v{H_RD}, s{S_T1}, v15
v_lshlrev_b32 v15, 11, v13
v_lshl_add_u32 v15, v14, 4, v15
s_mov_b32 s{S_T2}, 0
"""
    o += f"""
s_and_b32 s{S_T1}, s{S_HP}, 3
s_lshl_b32 s{S_T1}, s{S_T1}, 15
s_add_u32 s{S_T2}, s{S_T2}, s{S_T1}
s_lshr_b32 s{S_T1}, s{S_HP}, 2
s_lshl_b32 s{S_T1}, s{S_T1}, 6
s_add_u32 s{S_T2}, s{S_T2}, s{S_T1}
v_add_u32 v{H_OUT}, s{S_T2}, v15
"""
    return [l.strip() for l in o.strip().split("\n") if l.strip()]


def reduce_code(cfg, i, mode, tag):
    nd = 1 if mode == "q" else 4
    B = 16
    if isinstance(i, int):
        o = f"s_mov_b32 s{S_T0}, {i}\n"
    else:
        o = f"s_mov_b32 s{S_T0}, {i}\n"
    o += f"""
s_lshl_b32 s{S_T1}, s{S_T0}, 7
s_mov_b32 s{S_CNT}, 0
L_poll_{tag}:
buffer_load_dwordx2 v[12:13], v{H_PL}, s[{S_IN}:{S_IN+3}], s{S_T1} offen sc1
s_add_u32 s{S_CNT}, s{S_CNT}, 1
s_cmp_gt_u32 s{S_CNT}, {cfg.spin}
s_cbranch_scc1 L_go_{tag}
{"s_sleep %d" % cfg.psleep if cfg.psleep and tag == "l" else ""}
s_waitcnt vmcnt(0)
v_cmp_ne_u64 vcc, v[12:13], v[{H_TAG}:{H_TAG+1}]
s_cbranch_vccnz L_poll_{tag}
L_go_{tag}:
{tstamp(cfg, 4)}
s_lshl_b32 s{S_T1}, s{S_T0}, 14
"""
    sfx = "dword" if nd == 1 else "dwordx4"
    for p in range(16):
        o += f"buffer_load_{sfx} {vr(B + nd*p, nd)}, v{H_RD}, s[{S_WS}:{S_WS+3}], s{S_T1} offen {cfg.red_pol}\n"
        if p < 15:
            o += f"s_add_u32 s{S_T1}, s{S_T1}, 0x10000\n"
    o += f"""
s_add_u32 s{S_T0}, s{S_T0}, s{S_B}
s_and_b32 s{S_T0}, s{S_T0}, 3
s_lshl_b32 s{S_T0}, s{S_T0}, 8
s_mov_b32 s{S_T2}, 0xffff0000
"""
    A = B + 16 * nd
    for p in range(16):
        o += f"s_waitcnt vmcnt({15-p})\n"
        for j in range(nd):
            r = B + nd * p + j
            if p == 0:
                o += f"v_lshlrev_b32 v{A+2*j}, 16, v{r}\nv_and_b32 v{A+2*j+1}, s{S_T2}, v{r}\n"
            else:
                o += f"v_lshlrev_b32 v12, 16, v{r}\nv_and_b32 v13, s{S_T2}, v{r}\nv_add_f32 v{A+2*j}, v12, v{A+2*j}\nv_add_f32 v{A+2*j+1}, v13, v{A+2*j+1}\n"
    o += tstamp(cfg, 5) + "\n"
    for j in range(nd):
        o += f"v_cvt_pk_bf16_f32 v{12+j}, v{A+2*j}, v{A+2*j+1}\n"
    o += f"buffer_store_{sfx} {vr(12, nd)}, v{H_OUT}, s[{S_OUT}:{S_OUT+3}], s{S_T0} offen {cfg.out_pol}\n"
    return o


def reduce_dyn(cfg):
    B, A = 16, 80
    S_TODO, S_NOW = 94, 95
    poll = f"buffer_load_dwordx2 v[8:9], v3, s[{S_IN}:{S_IN+3}], 0 offen sc1\n"
    o = f"""s_mov_b32 s{S_T2}, 0xffff0000
s_mov_b32 s{S_TODO}, 15
s_mov_b32 s{S_CNT}, 0
{poll}s_waitcnt vmcnt(0)
L_dyn:
v_cmp_ne_u64 vcc, v[8:9], v[{H_TAG}:{H_TAG+1}]
s_add_u32 s{S_CNT}, s{S_CNT}, 1
s_cmp_gt_u32 s{S_CNT}, {cfg.spin}
s_cselect_b64 vcc, 0, vcc
s_mov_b32 s{S_NOW}, 0
"""
    for i in range(4):
        half = "vcc_lo" if i < 2 else "vcc_hi"
        o += f"""s_bitcmp1_b32 s{S_TODO}, {i}
s_cbranch_scc0 L_dn{i}
s_bfe_u32 s{S_T0}, {half}, {hex(0x100000 + 16*(i & 1))}
s_cbranch_scc1 L_dn{i}
s_bitset1_b32 s{S_NOW}, {i}
{tstamp(cfg, (4, 0, 1, 2)[i])}
s_mov_b32 s{S_T1}, {i*16384}
{"s_waitcnt vmcnt(46)" if i == 3 else ""}
"""
        for p in range(16):
            o += f"buffer_load_dword v{B+16*i+p}, v{H_RD}, s[{S_WS}:{S_WS+3}], s{S_T1} offen {cfg.red_pol}\n"
            if p < 15:
                o += f"s_add_u32 s{S_T1}, s{S_T1}, 0x10000\n"
        o += f"L_dn{i}:\n"
    o += f"""s_andn2_b32 s{S_TODO}, s{S_TODO}, s{S_NOW}
s_cbranch_scc0 L_dnp
{poll}L_dnp:
s_waitcnt vmcnt(0)
"""
    for i in range(4):
        o += f"s_bitcmp1_b32 s{S_NOW}, {i}\ns_cbranch_scc0 L_ds{i}\n"
        o += f"s_add_u32 s{S_T0}, s{S_B}, {i}\ns_and_b32 s{S_T0}, s{S_T0}, 3\ns_lshl_b32 s{S_T0}, s{S_T0}, 8\n"
        r = B + 16 * i
        o += f"v_lshlrev_b32 v{A}, 16, v{r}\nv_and_b32 v{A+1}, s{S_T2}, v{r}\n"
        for p in range(1, 16):
            o += f"v_lshlrev_b32 v12, 16, v{r+p}\nv_and_b32 v13, s{S_T2}, v{r+p}\nv_add_f32 v{A}, v12, v{A}\nv_add_f32 v{A+1}, v13, v{A+1}\n"
        o += f"v_cvt_pk_bf16_f32 v{A+2+i}, v{A}, v{A+1}\n"
        o += f"buffer_store_dword v{A+2+i}, v{H_OUT}, s[{S_OUT}:{S_OUT+3}], s{S_T0} offen {cfg.out_pol}\nL_ds{i}:\n"
    o += f"""s_cmp_lg_u32 s{S_TODO}, 0
s_cbranch_scc1 L_dyn
{tstamp(cfg, 5)}
"""
    o += EPOCH_NEXT
    return o


def reduce_seq(cfg):
    B, A = 16, 32
    o = f"s_mov_b32 s{S_T2}, 0xffff0000\n"
    poll = lambda i: f"buffer_load_dwordx2 v[8:9], v{H_PL}, s[{S_IN}:{S_IN+3}], 0 offen offset:{128*i} sc1\n"
    o += poll(0) + "s_waitcnt vmcnt(0)\n"
    for i in range(4):
        o += f"""s_mov_b32 s{S_CNT}, 0
L_sp{i}:
v_cmp_ne_u64 vcc, v[8:9], v[{H_TAG}:{H_TAG+1}]
s_cbranch_vccz L_sg{i}
{poll(i)}s_add_u32 s{S_CNT}, s{S_CNT}, 1
s_cmp_lt_u32 s{S_CNT}, {cfg.spin}
s_waitcnt vmcnt(0)
s_cbranch_scc1 L_sp{i}
L_sg{i}:
{tstamp(cfg, (4, 0, 1, 2)[i]) if i in (0, 3) or True else ""}
s_mov_b32 s{S_T1}, {i*16384}
"""
        for p in range(16):
            o += f"buffer_load_dword v{B+p}, v{H_RD}, s[{S_WS}:{S_WS+3}], s{S_T1} offen {cfg.red_pol}\n"
            if p < 15:
                o += f"s_add_u32 s{S_T1}, s{S_T1}, 0x10000\n"
        k = 0
        if i < 3:
            o += poll(i + 1)
            k = 1
        o += f"s_add_u32 s{S_T0}, s{S_B}, {i}\ns_and_b32 s{S_T0}, s{S_T0}, 3\ns_lshl_b32 s{S_T0}, s{S_T0}, 8\n"
        for p in range(16):
            o += f"s_waitcnt vmcnt({15-p+k})\n"
            r = B + p
            if p == 0:
                o += f"v_lshlrev_b32 v{A}, 16, v{r}\nv_and_b32 v{A+1}, s{S_T2}, v{r}\n"
            else:
                o += f"v_lshlrev_b32 v12, 16, v{r}\nv_and_b32 v13, s{S_T2}, v{r}\nv_add_f32 v{A}, v12, v{A}\nv_add_f32 v{A+1}, v13, v{A+1}\n"
        o += f"v_cvt_pk_bf16_f32 v12, v{A}, v{A+1}\n"
        if i < 3:
            o += "s_waitcnt vmcnt(0)\n"
        else:
            o += tstamp(cfg, 5) + "\n"
        o += f"buffer_store_dword v12, v{H_OUT}, s[{S_OUT}:{S_OUT+3}], s{S_T0} offen {cfg.out_pol}\n"
    o += EPOCH_NEXT
    return o


REG = re.compile(r"v\[(\d+):(\d+)\]|v(\d+)")


def regs_of(tok):
    m = REG.fullmatch(tok.strip().lstrip("-"))
    if not m:
        return set()
    if m.group(3):
        return {int(m.group(3))}
    return set(range(int(m.group(1)), int(m.group(2)) + 1))


def parse(line):
    l = line.split(";")[0].strip()
    if not l or l.endswith(":") or l.startswith("."):
        return None
    op, _, rest = l.partition(" ")
    toks = [t.strip() for t in rest.split(",")] if rest else []
    toks = [t.split(" ")[0] for t in toks]
    rd, wr = set(), set()
    if op.startswith("v_cmp"):
        for t in toks[1:]:
            rd |= regs_of(t)
    elif op.startswith("v_permlane"):
        rd = wr = regs_of(toks[0]) | regs_of(toks[1])
    elif op.startswith(("v_readfirstlane", "v_readlane")):
        rd = regs_of(toks[1])
    elif op.startswith("v_"):
        wr = regs_of(toks[0])
        for t in toks[1:]:
            rd |= regs_of(t)
        if op.startswith(("v_fmac", "v_writelane")):
            rd |= wr
    elif op.startswith("ds_read"):
        wr = regs_of(toks[0]); rd = regs_of(toks[1])
    elif op.startswith("ds_write"):
        rd = regs_of(toks[0]) | regs_of(toks[1])
    elif op.startswith(("buffer_store", "buffer_atomic", "global_store", "global_atomic")):
        for t in toks:
            rd |= regs_of(t)
    elif op.startswith(("buffer_load", "global_load")):
        if "lds" in l.split():
            rd = regs_of(toks[0])
        else:
            wr = regs_of(toks[0]); rd = regs_of(toks[1])
    return op, rd, wr, toks


def fix_hazards(lines):
    out = []
    hist = []
    t = 0
    last_mf = -100
    for line in lines:
        p = parse(line)
        if p is None:
            out.append(line)
            continue
        op, rd, wr, toks = p
        is_mf = op.startswith("v_mfma")
        is_valu = op.startswith("v_") and not is_mf
        is_mem = op.startswith(("ds_", "buffer_", "global_"))
        need = 0
        tt = max(t, last_mf + 8) if is_mf else t
        dist = 0
        for (o2, r2, w2, k2, st2, t2) in reversed(hist[-40:]):
            m2 = o2.startswith("v_mfma")
            v2 = o2.startswith("v_") and not m2
            req = 0
            d = dist
            if v2 and o2.startswith(("v_exp", "v_rcp", "v_log", "v_rsq")) and is_valu and not op.startswith(("v_exp", "v_rcp")) and (w2 & rd):
                req = 1
            if v2 and is_mf and (w2 & rd):
                req = 2
            if v2 and op.startswith("v_permlane") and (w2 & rd):
                req = 2
            if v2 and op.startswith(("v_readfirstlane", "v_readlane")) and (w2 & rd):
                req = 1
            if o2.startswith(("buffer_store_dwordx4", "global_store_dwordx4")) and is_valu and (regs_of(k2[0] if o2.startswith("buffer") else k2[1]) & wr):
                req = 2
            if m2 and (is_valu or is_mem) and (w2 & (rd | wr)):
                req = 12
                d = tt - t2 - 1
            if m2 and is_mf and (w2 & (regs_of(toks[1]) | regs_of(toks[2]))):
                req = 12
                d = tt - t2 - 1
            if m2 and is_mf and (w2 & regs_of(toks[3])) and regs_of(toks[3]) != w2:
                req = 10
                d = tt - t2 - 1
            if m2 and is_valu and (regs_of(k2[3]) & wr):
                req = max(req, 7)
                d = tt - t2 - 1
            if req > d:
                need = max(need, req - d)
            dist += st2
        while need > 0:
            k = min(need, 16)
            out.append("  s_nop %d" % (k - 1))
            hist.append(("s_nop", set(), set(), [], k, t))
            t += k
            need -= k
        tt = max(t, last_mf + 8) if is_mf else t
        st_ = int(toks[0]) + 1 if op == "s_nop" else 1
        hist.append((op, rd, wr, toks, st_, tt))
        t = tt + st_
        if is_mf:
            last_mf = tt
        out.append(line)
    return out


TS = [4, 8, 10, 64, 66, 68, 70, 72, 96, 98]


def tstamp(cfg, k):
    return f"s_memrealtime s[{TS[k]}:{TS[k]+1}]" if cfg.tst else ""


def tst_end(cfg, base):
    o = f"""s_waitcnt vmcnt(0)
{tstamp(cfg, 7)}
s_lshl_b32 s14, s2, 3
s_add_u32 s14, s14, s{S_W}
s_add_u32 s14, s14, {base}
s_lshl_b32 s14, s14, 6
s_add_u32 s14, s14, 0x2300000
s_add_u32 s12, s74, s14
s_addc_u32 s13, s75, 0
s_waitcnt lgkmcnt(0)
v_mov_b32 v14, 0
"""
    for k in range(8):
        o += f"v_mov_b32 v{16+k}, s{TS[k]}\n"
    o += f"""v_mov_b32 v24, s60
v_mov_b32 v25, s{S_CNT}
global_store_dwordx4 v14, v[16:19], s[12:13]
global_store_dwordx4 v14, v[20:23], s[12:13] offset:16
v_mov_b32 v26, s96
v_mov_b32 v27, s98
global_store_dwordx4 v14, v[24:27], s[12:13] offset:32
"""
    return o


def span_end(cfg, base):
    if not cfg.span:
        return ""
    return f"""s_waitcnt vmcnt(0)
s_memrealtime s[{S_STT}:{S_STT+1}]
s_lshl_b32 s14, s2, 3
s_add_u32 s14, s14, s{S_W}
s_lshl_b32 s14, s14, 3
s_add_u32 s14, s14, {0x2200000 + base*8}
s_add_u32 s12, s74, s14
s_addc_u32 s13, s75, 0
s_waitcnt lgkmcnt(0)
v_mov_b32 v12, s60
v_mov_b32 v13, s{S_STT}
v_mov_b32 v14, 0
global_store_dwordx2 v14, v[12:13], s[12:13]
"""


def gen_compute(cfg):
    st = Stream()
    R = st.raw
    R("""
L_compute:
v_and_b32 v%(ln)d, 63, v0
""" % dict(ln=V_T0))
    ln = V_T0
    t1 = V_T1
    R("s_waitcnt lgkmcnt(0)")
    R(rest_setup())
    if cfg.tlb:
        R(f"""s_load_dword s96, s[{S_K}:{S_K+1}], 0
s_load_dword s96, s[{S_V}:{S_V+1}], 0
s_load_dword s96, s[{S_WO}:{S_WO+1}], 0
s_load_dword s96, s[{S_WS}:{S_WS+1}], s{S_HPO}
s_load_dword s96, s[{S_OUT}:{S_OUT+1}], 0""")
    if cfg.codepf == 2:
        R(f"""
s_getpc_b64 s[94:95]
s_lshr_b32 s{S_T0}, s2, 3
s_lshl_b32 s{S_T0}, s{S_T0}, 2
s_add_u32 s{S_T0}, s{S_T0}, s{S_W}
s_lshl_b32 s{S_T0}, s{S_T0}, 7
s_load_dword s96, s[94:95], s{S_T0}
s_lshr_b32 s{S_T0}, s{S_T0}, 2
s_add_u32 s{S_T0}, s{S_T0}, 0x4000
s_load_dword s97, s[94:95], s{S_T0}
""")
    if cfg.codepf == 1:
        R("""
s_getpc_b64 s[%d:%d]
s_sub_u32 s44, s44, 0x1800
s_subb_u32 s45, s45, 0
v_lshlrev_b32 v16, 7, v0
v_min_u32 v16, CODE_BYTES, v16
global_load_dword v255, v16, s[%d:%d]
""" % (S_T0, S_T0 + 1, S_T0, S_T0 + 1))
    R(f"""
v_lshrrev_b32 v18, 5, v{ln}              ; h
v_bfe_u32 v19, v{ln}, 2, 2
v_xor_b32 v20, v18, v19                  ; h^g
v_lshlrev_b32 v20, 4, v20
v_and_b32 v21, 3, v{ln}
v_lshl_add_u32 v20, v21, 6, v20          ; (key&3)*64 + (h^g)*16
v_bfe_u32 v22, v{ln}, 2, 3               ; key>>2
v_lshl_add_u32 v{V_KL}, v22, 10, v20
v_bfe_u32 v22, v{ln}, 3, 2               ; tok>>3
v_lshl_add_u32 v23, v22, 10, v20
v_bfe_u32 v22, v{ln}, 2, 1
v_lshl_add_u32 v23, v22, 8, v23
s_and_b32 s{S_T0}, s{S_W}, 1
s_lshl_b32 s{S_T0}, s{S_T0}, 12
s_add_u32 s{S_T0}, s{S_T0}, {AUX}
v_add_u32 v{V_XL}, s{S_T0}, v23
v_bfe_u32 v22, v{ln}, 4, 1               ; G&1
v_lshlrev_b32 v22, 5, v22
v_lshl_add_u32 v22, v19, 6, v22          ; r*64 + (G&1)*32
v_lshl_add_u32 v23, v21, 3, v22          ; + c4*8
v_lshl_add_u32 v{V_VL}, v18, 10, v23
v_and_b32 v23, 1, v21
v_lshrrev_b32 v24, 1, v21
v_lshl_add_u32 v23, v23, 1, v24          ; bitswap(c4)
v_lshl_add_u32 v23, v23, 3, v22
s_lshr_b32 s{S_T0}, s{S_W}, 1
s_lshl_b32 s{S_T0}, s{S_T0}, 14
v_lshl_add_u32 v24, v18, 11, v23
v_add_u32 v{V_WQL}, s{S_T0}, v24
s_lshl_b32 s{S_T0}, s{S_W}, 8
v_lshl_add_u32 v24, v18, 10, v23
v_add_u32 v{V_WOL}, s{S_T0}, v24
s_mul_i32 s{S_T0}, s{S_W}, {SLOT}
s_add_u32 s{S_T0}, s{S_T0}, {AUX}
v_lshlrev_b32 v24, 4, v{ln}
v_add_u32 v{V_OW}, s{S_T0}, v24
s_lshr_b32 s{S_T0}, s{S_B}, 2            ; first head = b>>2
s_mul_i32 s{S_T0}, s{S_T0}, {2*SLOT}
s_add_u32 s{S_T0}, s{S_T0}, {AUX}
v_add_u32 v{V_OR}, s{S_T0}, v24          ; O read (first head, th=0)
s_lshl_b32 s{S_T0}, s{S_W}, 12
v_add_u32 v{V_ST}, s{S_T0}, v24          ; partial store voffset: w*4096 + lane*16
s_mov_b32 s{S_THR}, {hex(f2u(2.0**cfg.thr_log2 if not cfg.force_rare else 4.0))}
s_mov_b32 s{S_QS}, {hex(f2u(QSCALE))}
v_mov_b32 v{V_L}, 0
""")
    R(EPOCH)
    if cfg.prio:
        R(f"s_setprio {cfg.prio}")
    if cfg.itlb:
        R("%WARM%")
    stamp(st, cfg, 1)

    def addr_update(c):
        base = (c % 4) * SLOT
        if c < 8:
            return [f"v_add_u32 v{V_XA0}, {base}, v{V_XL}", f"v_add_u32 v{V_TA}, {base}, v{V_WQL}",
                    f"v_xor_b32 v{V_XA1}, 32, v{V_XA0}"]
        if c < 16:
            return [f"v_add_u32 v{V_XA0}, {base}, v{V_KL}", f"v_add_u32 v{V_TA}, {base}, v{V_VL}",
                    f"v_xor_b32 v{V_XA1}, 32, v{V_XA0}"]
        return [f"v_add_u32 v{V_TA}, {base}, v{V_WOL}"]

    fr_i = [0]

    def next_frag():
        f = FR + 4 * (fr_i[0] % 8)
        fr_i[0] += 1
        return f

    def tr_pair(f, off0, off1, chunk, lead=None):
        return RG([f"ds_read_b64_tr_b16 {vr(f,2)}, v{V_TA} offset:{off0}",
                   f"ds_read_b64_tr_b16 {vr(f+2,2)}, v{V_TA} offset:{off1}"], chunk, lead)

    mfs, wins, pre, shadow, bar = [], [], {}, {}, {}
    xi = 0
    for c in range(8):
        bar[len(mfs) - 1 - cfg.BL if c else -1] = c
        xr = []
        for s in range(4):
            xf = XF + 4 * (xi % 4)
            xi += 1
            xr.append((xf, RG([f"ds_read_b128 {vr(xf,4)}, v{V_XA0 + (s & 1)} offset:{(s >> 1) * 512}"], c, cfg.D1)))
        order = [(s, t) for s in range(4) for t in range(4)]
        if c == 7 and cfg.t1:
            order = [(s, t) for t in range(4) for s in range(4)]
        for s, t in order:
            f = next_frag()
            rg = tr_pair(f, (4 * s) * 1024 + t * 256, (4 * s + 1) * 1024 + t * 256, c, cfg.D1)
            cin = "0" if (c == 0 and s == 0) else ACC + 16 * t
            mfs.append(MF(mfma(ACC + 16 * t, f, xr[s][0], cin), [xr[s][1], rg], c))
    n1 = len(mfs)
    pre[n1] = [lambda: stamp(st, cfg, 2)] + (["s_waitcnt vmcnt(0)"] if cfg.codepf == 1 else [])
    for h in range(8):
        ops = [f"v_mul_f32 v{ACC+8*h+i}, s{S_QS}, v{ACC+8*h+i}" for i in range(8)]
        ops += [f"v_cvt_pk_bf16_f32 v{QR+4*h+i}, v{ACC+8*h+2*i}, v{ACC+8*h+2*i+1}" for i in range(4)]
        if cfg.t1:
            wins.append((ops, n1 - 16 + 4 * (h >> 1) + 5, n1 + h - 1))
        else:
            pre[n1] += ops
    items = [("K", 0)]
    for t in range(1, 16):
        items += [("K", t), ("V", t - 1)]
    items.append(("V", 15))
    start = {}
    for q, (kind, t) in enumerate(items):
        c = 8 + (q >> 2)
        tb = (q & 3) * 8192
        if (q & 3) == 0:
            bar[len(mfs) - 1 - cfg.BL] = c
        start[(kind, t)] = len(mfs)
        if kind == "K":
            S = SB[t & 1]
            for s in range(8):
                f = next_frag()
                rg = RG([f"ds_read_b128 {vr(f,4)}, v{V_XA0 + (s & 1)} offset:{tb + (s >> 1) * 256}"], c, cfg.D2)
                cin = S if s else ("0" if t < 2 else NEGM)
                mfs.append(MF(mfma(S, f, QR + 4 * s, cin), [rg], c))
        else:
            order = [(u, d) for u in range(2) for d in range(4)]
            if t == 15 and cfg.t3:
                order = [(u, d) for d in range(4) for u in range(2)]
            for u, d in order:
                if True:
                    f = next_frag()
                    rg = tr_pair(f, tb + (4 * u) * 1024 + d * 256, tb + (4 * u + 2) * 1024 + d * 256, c, cfg.D2)
                    cin = "0" if (t == 0 and u == 0) else ACC + 16 * d
                    mfs.append(MF(mfma(ACC + 16 * d, f, PB[t & 1] + 4 * u, cin), [rg], c))
    S = SB[0]
    ops0 = ["v_max3_f32 v%d, v%d, v%d, v%d" % (V_T0, S, S + 1, S + 2)]
    for i in range(3, 15, 2):
        ops0.append("v_max3_f32 v%d, v%d, v%d, v%d" % (V_T0, V_T0, S + i, S + i + 1))
    ops0.append("v_max_f32 v%d, v%d, v%d" % (V_T0, V_T0, S + 15))
    ops0.append("v_mov_b32 v%d, v%d" % (V_T1, V_T0))
    ops0.append("v_permlane32_swap_b32 v%d, v%d" % (V_T0, V_T1))
    ops0.append("v_max_f32 v%d, v%d, v%d" % (V_T0, V_T0, V_T1))
    ops0.append("v_sub_f32 v%d, 0, v%d" % (NEGM, V_T0))
    ops0 += softmax_ops(0, True)
    ops0.append("v_add_f32 v%d, v%d, v%d" % (V_L, V_LT, V_L))
    k1 = start[("K", 1)]
    wins.append((ops0, k1 + 1, k1 + 7))
    nb = ["v_mov_b32 v%d, v%d" % (NEGM + i, NEGM) for i in range(1, 16)]
    wins.append((nb, start[("V", 0)], start[("V", 0)] + 6))
    rare = []
    for t in range(1, 16):
        ops = softmax_ops(t, t == 1)
        g0 = start[("V", t - 1)] + 1
        pv = start[("V", t)]
        chk = ["v_cmp_nge_f32 vcc, s%d, v%d" % (S_THR, V_LT)]
        br = ["s_cbranch_vccnz L_rare%d" % t, "L_back%d:" % t]
        ladd = ["v_add_f32 v%d, v%d, v%d" % (V_L, V_LT, V_L)]
        if 1 < t < 15:
            wins.append((ops + chk, g0, pv - 2))
            shadow[pv - 1] = br
            wins.append((ladd, pv - 1, pv))
        else:
            wins.append((ops + chk + br, g0, pv - 1))
            wins.append((ladd, pv, pv))
        rare += rare_path(t)
    pv = start[("V", 15)]
    nend = len(mfs)
    lops = [f"v_mov_b32 v{V_T0}, v{V_L}", "s_nop 0", "s_nop 0", f"v_permlane32_swap_b32 v{V_L}, v{V_T0}",
            f"v_add_f32 v{V_L}, v{V_L}, v{V_T0}", f"v_rcp_f32 v{V_L}, v{V_L}"]

    def norm_ops(ks, packed):
        a = ACC + 8 * ks
        if packed:
            o = [f"v_pk_mul_f32 v[{a+2*i}:{a+2*i+1}], v[{a+2*i}:{a+2*i+1}], v[{V_L}:{V_L+1}] op_sel_hi:[1,0]" for i in range(4)]
        else:
            o = [f"v_mul_f32 v{a+i}, v{V_L}, v{a+i}" for i in range(8)]
        o += [f"v_cvt_pk_bf16_f32 v{QR+4*ks+i}, v{a+2*i}, v{a+2*i+1}" for i in range(4)]
        return o + [(f"ds_write_b128 v{V_OW}, {vr(QR+4*ks,4)} offset:{ks*1024}", 12)]
    if cfg.t3:
        wins.append((lops, pv, pv + 2))
        for ks in range(cfg.t3):
            wins.append((norm_ops(ks, False), pv + 3 + 2 * (ks >> 1), nend - 1))
        post = sum((norm_ops(ks, cfg.pk) for ks in range(cfg.t3, 8)), [])
    else:
        post = lops + sum((norm_ops(ks, cfg.pk) for ks in range(8)), [])
    emit_schedule(st, mfs, wins, pre, shadow, cfg, cfg.D2, bar, addr_update)
    stamp(st, cfg, 3)
    for o in pre.get(nend, []) + post:
        if isinstance(o, tuple):
            st.ds(o[0])
        else:
            R(o)
    R(f"s_lshr_b32 s{S_T0}, s{S_B}, 2\ns_xor_b32 s{S_T0}, s{S_T0}, 1\ns_mul_i32 s{S_T0}, s{S_T0}, {2*SLOT}\ns_add_u32 s{S_T0}, s{S_T0}, {AUX}")
    R(f"v_and_b32 v{V_OW+0}, 63, v0\nv_lshlrev_b32 v{V_T0}, 4, v{V_OW}")
    st.lines.pop(); st.lines.pop()
    R(f"v_and_b32 v{V_T1}, 63, v0\nv_lshlrev_b32 v{V_T1}, 4, v{V_T1}\nv_add_u32 v{V_XA0}, s{S_T0}, v{V_T1}")
    mfs, wins, pre, shadow, bar = [], [], {}, {}, {}
    orgs = {}
    for i in range(4):
        A = ACC + 32 * (i & 1)
        for kh in range(2):
            c = 16 + 2 * i + kh
            bar[len(mfs) - 1 - cfg.BL if c > 16 else -1] = c
            for ks in range(8):
                f = next_frag()
                rg = tr_pair(f, (4 * ks) * 1024, (4 * ks + 2) * 1024, c, cfg.D3)
                for th in range(2):
                    o = OF + 64 * kh + 32 * th + 4 * ks
                    reads = [rg]
                    if i == 0:
                        areg = V_OR if kh == 0 else V_XA0
                        reads.append(RG([f"ds_read_b128 {vr(o,4)}, v{areg} offset:{th*SLOT + ks*1024}"], 16, cfg.D3 - 2))
                        reads[-1].free = True
                    cin = "0" if (kh == 0 and ks == 0) else A + 16 * th
                    mfs.append(MF(mfma(A + 16 * th, f, o, cin), reads, c))

    def cvt_ops(i, f):
        A = ACC + 32 * (i & 1) + 8 * f
        return [f"v_cvt_pk_bf16_f32 v{PK+4*f+j}, v{A+2*j}, v{A+2*j+1}" for j in range(4)]

    def st_op(i, f):
        return [f"buffer_store_dwordx4 {vr(PK+4*f,4)}, v{V_ST}, s[{S_WS}:{S_WS+3}], s{S_NC0+i} offen offset:{f*1024} {cfg.st_pol}"]

    def flag_op(i):
        return f"buffer_store_dwordx2 v[{H_TAG}:{H_TAG+1}], v{H_FL}, s[{S_IN}:{S_IN+3}], 0 offen offset:{128*i} sc1"
    wins.append(([f"s_add_u32 s{S_NC0+i}, s{S_HPO}, {i*16384}" for i in range(4)], 33, 40))
    vq, sent = [], set()

    def vwait(tag):
        p = max(k for k, t in enumerate(vq) if t == tag)
        n = len(vq) - 1 - p
        del vq[:p + 1]
        return f"s_waitcnt vmcnt({n})"
    if cfg.stmode == "late":
        vq += [("st", 0)] * 3 + [("st", 1), ("st", 0)] + [("st", 1)] * 3 + [("st", 2)] * 4
        wins.append((sum((cvt_ops(0, f) for f in range(4)), []), 33, 60))
        wins.append((handoff_addr(3, "q"), 40, 78))
        g = 80 + cfg.ST0
        for f in range(4):
            wins.append((st_op(0, f), g + 2 * f, 94))
        for f in range(4):
            wins.append((cvt_ops(1, f) + st_op(1, f), g + 2 * f + 3, 94))
        for f in range(4):
            wins.append((cvt_ops(2, f) + st_op(2, f), 97 + 3 * f, 126))
    else:
        wins.append((handoff_addr(3, "q"), 33, 60))
        ev = []
        for i in range(3):
            for f in range(4):
                ev.append((32 * (i + 1) + 2 + cfg.STS * f, "st", i, f))
        ev.append((cfg.FL0, "fl", 0, 0))
        ev.append((cfg.FL1, "fl", 1, 0))
        for g, kind, i, f in sorted(ev):
            if kind == "st":
                wins.append((cvt_ops(i, f) + st_op(i, f), g, 32 * (i + 2) - 1))
                vq.append(("st", i))
            elif g < 128:
                wins.append(([vwait(("st", i)), flag_op(i)], g, 127))
                vq.append(("fl", i))
                sent.add(i)
    if cfg.endbar and cfg.EB < 128:
        shadow[cfg.EB] = ["s_barrier"]
    emit_schedule(st, mfs, wins, pre, shadow, cfg, cfg.D3, bar, addr_update, virtual={23})
    stamp(st, cfg, 4)
    if cfg.tst:
        R(tstamp(cfg, 0))
    if cfg.stamps:
        vq.append("stamp")
    for f in range(4):
        R("\n".join(cvt_ops(3, f) + st_op(3, f)))
        vq.append(("st", 3))
    if cfg.tst:
        R(tstamp(cfg, 1))
    for i in range(4):
        if i not in sent:
            if ("st", i) in vq:
                R(vwait(("st", i)))
            R(flag_op(i))
            vq.append(("fl", i))
        if i == 1 and cfg.endbar and cfg.EB >= 128:
            R("s_barrier")
        if i == 2 and cfg.tst:
            R(tstamp(cfg, 2))
    if cfg.tst:
        R(tstamp(cfg, 3))
    stamp(st, cfg, 8)
    if not cfg.seq:
        rc = reduce_code(cfg, 3, "q", "c").split("L_go_c:\n")
        R(rc[0] + "L_go_c:")
        stamp(st, cfg, 9)
        R(rc[1])
        R(EPOCH_NEXT)
    stamp(st, cfg, 10)
    if cfg.stamps:
        R("s_waitcnt vmcnt(0)")
        stamp(st, cfg, 5)
        R(f"s_memrealtime s[{S_STT}:{S_STT+1}]\ns_waitcnt lgkmcnt(0)\nv_mov_b32 v{V_T0}, s{S_STT}\nv_mov_b32 v{V_T1}, 28\nglobal_store_dword v{V_T1}, v{V_T0}, s[{S_STB}:{S_STB+1}]")
    if cfg.tst:
        R(tst_end(cfg, 0))
    if cfg.span:
        R(span_end(cfg, 0))
    R("s_endpgm")
    R("L_main_end:")
    R("\n".join(rare))
    if cfg.dbg:
        keep = []
        nmf = [0]
        for l in st.lines:
            t = l.strip()
            if "E" in cfg.dbg and t.startswith("v_exp"): continue
            if "A" in cfg.dbg and t.startswith("v_add_f32"): continue
            if "C" in cfg.dbg and t.startswith("v_cvt_pk") and (" v19" in t.split(",")[0] or " v20" in t.split(",")[0]): continue
            if "K" in cfg.dbg and t.startswith("ds_read_b128"): continue
            if "T" in cfg.dbg and t.startswith("ds_read_b64_tr"): continue
            if "W" in cfg.dbg and t.startswith("s_waitcnt lgkmcnt"): continue
            if "B" in cfg.dbg and (t.startswith("s_cbranch_vccnz") or t.startswith("v_cmp_nge")): continue
            if t.startswith("v_mfma"):
                nmf[0] += 1
                ph = 1 if nmf[0] <= 128 else 2 if nmf[0] <= 384 else 3
                if str(ph) in cfg.dbg:
                    m = re.match(r"v_mfma_f32_32x32x16_bf16 v\[(\d+):\d+\], (v\[\d+:\d+\]), (v\[\d+:\d+\]), (.*)", t)
                    d = int(m.group(1)) + 8 * (nmf[0] >> 2 & 1)
                    for q in range(2):
                        dd = "v[%d:%d]" % (d + 4 * q, d + 4 * q + 3)
                        keep.append("  v_mfma_f32_16x16x32_bf16 %s, %s, %s, %s" % (dd, m.group(2), m.group(3), dd if m.group(4) != "0" else "0"))
                    continue
            keep.append(l)
        st.lines = keep
    n0 = len(st.lines)
    st.lines = fix_hazards(st.lines)
    if cfg.verbose:
        print("hazard nops inserted:", len(st.lines) - n0, file=sys.stderr)
    return st.text()


def rest_setup():
    return f"""
s_lshl_b32 s{S_GRP}, s{S_BR}, 3
s_add_u32 s{S_GRP}, s{S_GRP}, s{S_B}
s_lshl_b32 s18, s{S_GRP}, 8
s_add_u32 s18, s18, 0x1040000
s_add_u32 s{S_EP}, s74, s18
s_addc_u32 s{S_EP+1}, s75, 0
s_load_dword s{S_EP+2}, s[{S_EP}:{S_EP+1}], 0
s_lshl_b32 s10, s{S_B}, 3
s_add_u32 s10, s10, s91
s_lshl_b32 s10, s10, 17
s_lshl_b32 s13, s{S_HP}, 18
s_lshl_b32 s14, s{S_GRP}, 20
s_lshl_b32 s{S_HPO}, s{S_HP}, 16
s_lshl_b32 s15, s{S_GRP}, 13
s_add_u32 s15, s15, 0x1000000
s_lshl_b32 s90, s{S_BR}, 10
s_lshl_b32 s19, s{S_B}, 17
s_add_u32 s19, s19, s90
s_add_u32 s{S_K}, s66, s10
s_addc_u32 s{S_K+1}, s67, 0
s_mov_b32 s{S_K+2}, 0x20000
s_mov_b32 s{S_K+3}, 0x20000
s_add_u32 s{S_V}, s68, s10
s_addc_u32 s{S_V+1}, s69, 0
s_mov_b32 s{S_V+2}, 0x20000
s_mov_b32 s{S_V+3}, 0x20000
s_add_u32 s{S_WO}, s72, s13
s_addc_u32 s{S_WO+1}, s73, 0
s_mov_b32 s{S_WO+2}, 0x40000
s_mov_b32 s{S_WO+3}, 0x20000
s_add_u32 s{S_WS}, s74, s14
s_addc_u32 s{S_WS+1}, s75, 0
s_mov_b32 s{S_WS+2}, 0x100000
s_mov_b32 s{S_WS+3}, 0x20000
s_add_u32 s{S_IN}, s74, s15
s_addc_u32 s{S_IN+1}, s75, 0
s_mov_b32 s{S_IN+2}, 0x2000
s_mov_b32 s{S_IN+3}, 0x20000
s_add_u32 s{S_OUT}, s92, s19
s_addc_u32 s{S_OUT+1}, s93, 0
s_sub_u32 s{S_OUT+2}, 0x20000, s90
s_mov_b32 s{S_OUT+3}, 0x20000
"""


def gen_loader(cfg):
    L = []
    R = lambda t: L.extend(("  " + l.strip()) if not l.endswith(":") else l for l in t.strip("\n").split("\n"))
    vWQ, vX, vK, vV, vWO = 1, 2, 3, 4, 5
    R(f"""
L_loader:
s_sub_u32 s{S_W}, s{S_W}, 4
s_lshl_b32 s5, s5, 1
s_add_u32 s5, s5, s{S_ROT}
%ROT%
s_lshl_b32 s11, s{S_B}, 16      ; x offset
s_lshl_b32 s12, s{S_HP}, 9
s_mov_b32 s{S_X+2}, 0x10000
s_mov_b32 s{S_X+3}, 0x20000
s_sub_u32 s{S_WQ+2}, 0x400000, s12
s_mov_b32 s{S_WQ+3}, 0x20000
v_and_b32 v10, 63, v0
v_lshrrev_b32 v11, 4, v10               ; t = i>>4
v_bfe_u32 v12, v10, 2, 2                ; r
v_and_b32 v13, 3, v10                   ; c
v_lshlrev_b32 v14, 6, v11
v_lshl_add_u32 v15, v13, 4, v14         ; t*64 + c*16
s_and_b32 s{S_T0}, s{S_W}, 1
s_lshl_b32 s{S_T0}, s{S_T0}, 18
s_lshr_b32 s{S_T1}, s{S_W}, 1
s_lshl_b32 s{S_T1}, s{S_T1}, 8
s_add_u32 s{S_T0}, s{S_T0}, s{S_T1}
v_lshl_add_u32 v16, v12, 13, v15
v_add_u32 v{vWQ}, s{S_T0}, v16
s_lshl_b32 s{S_M8}, s{S_W}, 13
s_lshl_b32 s{S_M1}, s{S_W}, 10
v_and_b32 v16, 1, v11                   ; tq
s_and_b32 s{S_T0}, s{S_W}, 1
s_lshl_b32 s{S_T0}, s{S_T0}, 1
v_or_b32 v17, s{S_T0}, v16              ; g
v_xor_b32 v17, v17, v13
v_lshlrev_b32 v17, 4, v17
v_lshrrev_b32 v18, 1, v11               ; ch
v_lshl_add_u32 v17, v18, 6, v17
v_lshl_add_u32 v18, v16, 2, v12         ; 4tq + t3
v_lshl_add_u32 v17, v18, 10, v17
v_add_u32 v{vX}, s{S_M8}, v17           ; + 8*lw*1024
s_waitcnt lgkmcnt(0)
s_add_u32 s{S_X}, s64, s11
s_addc_u32 s{S_X+1}, s65, 0
s_add_u32 s{S_WQ}, s70, s12
s_addc_u32 s{S_WQ+1}, s71, 0
""")
    vq = []

    def issue(c):
        base = (c % 4) * SLOT
        n = 0
        if c < 8:
            R(f"s_add_u32 s{S_T0}, s{S_ROT}, {c}\ns_and_b32 s{S_T0}, s{S_T0}, 7\ns_lshl_b32 s{S_T1}, s{S_T0}, 7\ns_lshl_b32 s{S_T0}, s{S_T0}, 19")
            for p in range(2):
                R(f"s_add_u32 m0, s{S_M1}, {base + AUX + p*4096}")
                R(f"s_add_u32 s{S_T2}, s{S_T1}, {p*32768}")
                R(f"buffer_load_dwordx4 v{vX}, s[{S_X}:{S_X+3}], s{S_T2} offen {cfg.nt_w} lds")
                n += 1
            for p in range(8):
                R(f"s_add_u32 m0, s{S_M8}, {base + p*1024}")
                R(f"s_add_u32 s{S_T2}, s{S_T0}, {p*32768}")
                R(f"buffer_load_dwordx4 v{vWQ}, s[{S_WQ}:{S_WQ+3}], s{S_T2} offen {cfg.nt_w} lds")
                n += 1
        elif c < 16:
            for j in range(4):
                q = (c - 8) * 4 + j
                if q == 0:
                    kind, t = "K", 0
                elif q == 31:
                    kind, t = "V", 15
                elif q & 1:
                    kind, t = "K", (q + 1) // 2
                else:
                    kind, t = "V", q // 2 - 1
                for p in range(2):
                    R(f"s_add_u32 m0, s{S_M1}, {base + j*8192 + p*4096}")
                    if not cfg.kvrot:
                        R(f"s_mov_b32 s{S_T2}, {t*8192 + p*4096}")
                    elif p == 0:
                        R(f"s_add_u32 s{S_T2}, s{S_KVR}, {t*8192}\ns_and_b32 s{S_T2}, s{S_T2}, 0x1ffff")
                    else:
                        R(f"s_add_u32 s{S_T2}, s{S_T2}, 4096")
                    v, s = (vK, S_K) if kind == "K" else (vV, S_V)
                    R(f"buffer_load_dwordx4 v{v}, s[{s}:{s+3}], s{S_T2} offen {cfg.nt_kv} lds")
                    n += 1
        else:
            i, kh = (c - 16) >> 1, (c - 16) & 1
            R(f"s_add_u32 s{S_T0}, s{S_B}, {i}\ns_and_b32 s{S_T0}, s{S_T0}, 3\ns_lshl_b32 s{S_T0}, s{S_T0}, 8")
            R(f"s_lshr_b32 s{S_T1}, s{S_B}, 2\ns_xor_b32 s{S_T1}, s{S_T1}, {kh}\ns_lshl_b32 s{S_T1}, s{S_T1}, 17\ns_add_u32 s{S_T0}, s{S_T0}, s{S_T1}")
            for p in range(8):
                R(f"s_add_u32 m0, s{S_M8}, {base + p*1024}")
                R(f"s_add_u32 s{S_T2}, s{S_T0}, {p*4096}")
                R(f"buffer_load_dwordx4 v{vWO}, s[{S_WO}:{S_WO+3}], s{S_T2} offen {cfg.nt_w} lds")
                if cfg.pace and c >= cfg.pace0:
                    R(cfg.pace.replace(";", "\n"))
                n += 1
        vq.extend([("c", c)] * n)

    def lstamp(i):
        if cfg.lstamps:
            R(f"s_memtime s[{S_STT}:{S_STT+1}]\ns_waitcnt lgkmcnt(0)\nv_writelane_b32 v120, s{S_STT}, {i}")
    lstamp(50)
    issue(0)
    lstamp(51)
    R(rest_setup())
    if cfg.kvrot == 1:
        R(f"s_lshl_b32 s{S_KVR}, s{S_B}, 1\ns_add_u32 s{S_KVR}, s{S_KVR}, s91\ns_lshl_b32 s{S_KVR}, s{S_KVR}, 13")
    elif cfg.kvrot == 2:
        R(f"s_mul_i32 s{S_KVR}, s91, 5\ns_mul_i32 s{S_T0}, s{S_B}, 3\ns_add_u32 s{S_KVR}, s{S_KVR}, s{S_T0}\ns_lshl_b32 s{S_KVR}, s{S_KVR}, 13")
    elif cfg.kvrot == 3:
        R(f"s_lshl_b32 s{S_KVR}, s{S_B}, 1\ns_add_u32 s{S_KVR}, s{S_KVR}, s91\ns_and_b32 s{S_T0}, s{S_HP}, 1\ns_mul_i32 s{S_T0}, s{S_T0}, {cfg.kvd}\ns_add_u32 s{S_KVR}, s{S_KVR}, s{S_T0}\ns_lshl_b32 s{S_KVR}, s{S_KVR}, 13")
    R(f"""
v_lshl_add_u32 v16, v12, 8, v15
v_add_u32 v{vV}, s{S_M1}, v16
v_xor_b32 v16, s{S_W}, v13
v_lshl_add_u32 v16, v16, 4, v14
v_lshl_add_u32 v16, v12, 8, v16
v_add_u32 v{vK}, s{S_M1}, v16
v_lshl_add_u32 v16, v12, 10, v15
s_lshl_b32 s{S_T0}, s{S_W}, 15
v_add_u32 v{vWO}, s{S_T0}, v16
""")
    if cfg.plan:
        depth = [int(ch) for ch in cfg.plan]
        depth += [depth[-1]] * (24 - len(depth))
    else:
        depth = [cfg.pro - 1] + [2] * 23
        depth = [cfg.pro - 1] + [max(2, 0)] * 23
    def wait_for(*tags):
        pos = [k for k, t in enumerate(vq) if t in tags]
        if pos:
            n = len(vq) - 1 - max(pos)
            R(f"s_waitcnt vmcnt({n})")
            del vq[:max(pos) + 1]

    tl = []
    for q in range(8):
        kind, t = (("K", 0) if q == 0 else ("K", (q + 1) // 2) if q & 1 else ("V", q // 2 - 1))
        tl.append((kind, t))
    tq = [(kind, t * 8192 + j * 128) for kind, t in tl for j in range(8)]
    if cfg.touch:
        R(f"""s_and_b32 s{S_T0}, s{S_HP}, 1
s_lshl_b32 s{S_T0}, s{S_T0}, 12
s_add_u32 s{S_T0}, s{S_T0}, s{S_M1}
s_add_u32 s94, s{S_K}, s{S_T0}
s_addc_u32 s95, s{S_K+1}, 0
s_add_u32 s96, s{S_V}, s{S_T0}
s_addc_u32 s97, s{S_V+1}, 0""")
    nxt = 1
    for s in range(23):
        tgt = min(23, s + depth[s])
        assert tgt <= max(3, s + 2)
        while nxt <= tgt:
            if nxt == 1 and cfg.prow >= 0:
                R(f"s_waitcnt vmcnt({cfg.prow})")
            issue(nxt)
            if s == 0:
                lstamp(51 + nxt)
            nxt += 1
        if s == 0:
            lstamp(48)
        if s < len(cfg.touch):
            for _ in range(int(cfg.touch[s], 16)):
                if tq:
                    kind, off = tq.pop(0)
                    R(f"s_load_dword s98, s[{94 if kind == 'K' else 96}:{95 if kind == 'K' else 97}], {off}")
        if s == 12:
            R(EPOCH)
        wait_for(("c", s if s < 22 else 23))
        lstamp(2 * s)
        R("s_barrier")
        if cfg.tst and s in (0, 8, 16):
            R(tstamp(cfg, s // 8) if not cfg.seq else tstamp(cfg, 6) if s == 16 else tstamp(cfg, 8 + s // 8))
        if cfg.cyc:
            if s:
                R(f"s_waitcnt lgkmcnt(0)\nv_writelane_b32 v120, s100, {2*s-2}\nv_writelane_b32 v120, s58, {2*s-1}")
            R("s_memtime s[100:101]\ns_memrealtime s[58:59]")
        lstamp(2 * s + 1)
    if not cfg.seq:
        R(f"s_cmp_eq_u32 s{S_W}, 3\ns_cbranch_scc1 L_ld_done")
    R("\n".join(handoff_addr(0, "q" if cfg.seq else "w")))
    R(f"s_lshl_b32 s{S_T1}, s{S_HP}, 9\nv_lshlrev_b32 v3, 3, v10\nv_add_u32 v3, s{S_T1}, v3")
    lstamp(46)
    if cfg.endbar:
        R("s_barrier")
    if cfg.tst:
        R(tstamp(cfg, 3))
    lstamp(47)
    R(reduce_dyn(cfg) if cfg.seq and cfg.dyn else reduce_seq(cfg) if cfg.seq else reduce_code(cfg, f"s{S_W}", "w", "l"))
    R("L_ld_done:")
    if cfg.lstamps or cfg.cyc:
        R(f"""s_waitcnt lgkmcnt(0)
v_writelane_b32 v120, s62, 49
v_writelane_b32 v120, s60, 50
s_lshl_b32 s14, s2, 2
s_add_u32 s14, s14, s{S_W}
s_lshl_b32 s14, s14, 8
s_add_u32 s14, s14, 0x2100000
s_add_u32 s{S_STT}, s74, s14
s_addc_u32 s{S_STT+1}, s75, 0
v_lshlrev_b32 v21, 2, v10
global_store_dword v21, v120, s[{S_STT}:{S_STT+1}]""")
    if cfg.tst:
        R(tst_end(cfg, 4))
    if cfg.span:
        R(span_end(cfg, 4))
    R("s_endpgm")
    return "\n".join(L) + "\n"


def gen_main(cfg):
    name = NAME + "_kernel"
    s = f""".globl {name}
.p2align 12
.p2align 8
.type {name},@function
{name}:
  s_cmp_ge_u32 s2, 256
  s_cbranch_scc1 L_exit
"""
    if cfg.stamps or cfg.lstamps or cfg.span or cfg.tst:
        s += f"  s_memrealtime s[60:61]\n  s_memtime s[62:63]\n"
    s += f"""
  s_bfe_u32 s{S_BR}, s2, 0x10002
  s_mul_i32 s5, s{S_BR}, 40
  s_add_u32 s8, s0, s5
  s_addc_u32 s9, s1, 0
  s_load_dwordx8 s[64:71], s[8:9], 0      ; x k v wq
  s_load_dwordx2 s[72:73], s[8:9], 32     ; wo
  s_load_dwordx2 s[74:75], s[0:1], 96     ; ws
  s_load_dwordx2 s[92:93], s[0:1], 80     ; out
  v_lshrrev_b32 v1, 6, v0
  s_lshr_b32 s4, s2, 3            ; slot
  s_and_b32 s{S_ROT}, s4, 1
  v_readfirstlane_b32 s{S_W}, v1
  s_and_b32 s91, s2, 3
  s_lshl_b32 s91, s91, 1
  s_add_u32 s91, s91, s{S_ROT}    ; hkv
  {f"s_lshr_b32 s{S_B}, s4, 2" if cfg.remap else f"s_bfe_u32 s{S_B}, s4, 0x30001"}   ; b
  {"s_bfe_u32 s5, s4, 0x10001" if cfg.remap else "s_lshr_b32 s5, s4, 4"}            ; half
  s_lshl_b32 s{S_HP}, s91, 1
  s_add_u32 s{S_HP}, s{S_HP}, s5  ; hp
"""
    if cfg.stamps:
        s += f"""
  s_waitcnt lgkmcnt(0)
  s_lshl_b32 s14, s2, 3
  s_add_u32 s14, s14, s{S_W}
  s_lshl_b32 s14, s14, 6
  s_add_u32 s14, s14, 0x2000000
  s_add_u32 s{S_STB}, s74, s14
  s_addc_u32 s{S_STB+1}, s75, 0
  v_mov_b32 v{V_T0}, s62
  v_mov_b32 v{V_T1}, 0
  global_store_dword v{V_T1}, v{V_T0}, s[{S_STB}:{S_STB+1}]
  v_mov_b32 v{V_T0}, s60
  v_mov_b32 v{V_T1}, 24
  global_store_dword v{V_T1}, v{V_T0}, s[{S_STB}:{S_STB+1}]
  s_waitcnt vmcnt(0)
"""
    s += f"""
  s_cmp_lt_u32 s{S_W}, 4
  s_cbranch_scc1 L_compute
"""
    s += gen_loader(cfg)
    comp = gen_compute(cfg)
    s += ".p2align 12\n" + comp
    s += "L_exit:\n  s_endpgm\nL_code_end:\n"
    s = s.replace("CODE_BYTES", "0x7f80")
    rot = {8: f"  s_lshl_b32 s5, s5, 1\n  s_add_u32 s{S_ROT}, s5, s{S_B}",
           -8: f"  s_mov_b32 s{S_ROT}, s{S_B}",
           4: f"  s_add_u32 s5, s5, s{S_B}\n  s_lshl_b32 s{S_ROT}, s5, 1",
           2: f"  s_add_u32 s5, s5, s{S_B}\n  s_lshl_b32 s{S_ROT}, s5, 2",
           1: f"  s_mov_b32 s{S_ROT}, 0"}[cfg.rot]
    s = s.replace("%ROT%", rot)
    return s


def gen_reduce(cfg):
    name = "reduce_kernel"
    s = f""".globl {name}
.p2align 8
.type {name},@function
{name}:
  s_cmp_ge_u32 s2, 256
  s_cbranch_scc1 L_rexit
  s_load_dwordx2 s[4:5], s[0:1], 96
  s_load_dwordx2 s[6:7], s[0:1], 80
  s_lshr_b32 s8, s2, 4            ; group
  s_and_b32 s9, s2, 15            ; slice
  s_lshl_b32 s10, s8, 20
  s_lshl_b32 s11, s9, 12
  s_add_u32 s10, s10, s11
  v_lshlrev_b32 v1, 4, v0
  s_mov_b32 s14, 0x100000
  s_mov_b32 s15, 0x20000
  s_mov_b32 s18, 0x100000
  s_mov_b32 s19, 0x20000
  s_waitcnt lgkmcnt(0)
  s_add_u32 s12, s4, s10
  s_addc_u32 s13, s5, 0
  s_mov_b32 s16, s6
  s_mov_b32 s17, s7
"""
    for p in range(16):
        s += f"  s_mov_b32 s20, {p*65536}\n  buffer_load_dwordx4 v[{16+4*p}:{19+4*p}], v1, s[12:15], s20 offen {cfg.red_pol}\n"
    s += """
  s_and_b32 s20, s8, 7
  s_lshl_b32 s20, s20, 17
  s_lshr_b32 s21, s8, 3
  s_lshl_b32 s21, s21, 10
  s_add_u32 s20, s20, s21
  s_and_b32 s21, s9, 1
  s_lshl_b32 s21, s21, 16
  s_add_u32 s20, s20, s21
  s_lshr_b32 s21, s9, 1
  s_lshl_b32 s21, s21, 7
  s_add_u32 s20, s20, s21
  v_and_b32 v2, 31, v0
  v_lshlrev_b32 v2, 11, v2
  v_lshrrev_b32 v3, 5, v0
  v_lshl_add_u32 v2, v3, 4, v2
  s_mov_b32 s22, 0xffff0000
"""
    for p in range(16):
        s += f"  s_waitcnt vmcnt({15-p})\n"
        for j in range(4):
            r = 16 + 4 * p + j
            if p == 0:
                s += f"  v_lshlrev_b32 v{4+2*j}, 16, v{r}\n  v_and_b32 v{5+2*j}, s22, v{r}\n"
            else:
                s += f"  v_lshlrev_b32 v12, 16, v{r}\n  v_and_b32 v13, s22, v{r}\n  v_add_f32 v{4+2*j}, v12, v{4+2*j}\n  v_add_f32 v{5+2*j}, v13, v{5+2*j}\n"
    for j in range(4):
        s += f"  v_cvt_pk_bf16_f32 v{12+j}, v{4+2*j}, v{5+2*j}\n"
    s += """  buffer_store_dwordx4 v[12:15], v2, s[16:19], s20 offen
L_rexit:
  s_endpgm
"""
    return s


def desc(name, nv, ns):
    return f""".p2align 6
.amdhsa_kernel {name}
  .amdhsa_next_free_vgpr {nv}
  .amdhsa_next_free_sgpr {ns}
  .amdhsa_accum_offset {nv}
  .amdhsa_group_segment_fixed_size 0
  .amdhsa_kernarg_size 104
  .amdhsa_user_sgpr_count 2
  .amdhsa_user_sgpr_kernarg_segment_ptr 1
  .amdhsa_system_sgpr_workgroup_id_x 1
.end_amdhsa_kernel
"""


def generate(cfg):
    ref = open("cdna_kernels/%s.s.ref" % NAME).read().split("\n")
    head = [l for l in ref if l.startswith(";") and "@launch" not in l and "Override launch" not in l and "grid=ceil" not in l]
    head = head[:14]
    s = "\n".join(head) + "\n"
    s += f"; @launch grid=(256,1,1) block=(512,1,1) lds=163840\n"
    s += '.amdgcn_target "amdgcn-amd-amdhsa--gfx950"\n.text\n'
    s += gen_main(cfg)
    s += '.section .rodata,"a"\n'
    s += desc(NAME + "_kernel", 256, 102)
    return s


def add_page_stubs(text):
    import subprocess, tempfile, os
    lines = text.split("\n")
    i0 = lines.index("L_compute:")
    i1 = lines.index("L_main_end:")
    iw = next(i for i, l in enumerate(lines) if l.strip() == "%WARM%")
    nwarm = 10
    probe = lines[:iw] + ["  s_nop 0"] * nwarm + lines[iw + 1:]
    d = tempfile.mkdtemp()
    open(d + "/p.s", "w").write("\n".join(probe))
    subprocess.check_call(["clang", "-x", "assembler", "-target", "amdgcn-amd-amdhsa", "-mcpu=gfx950", "-c", d + "/p.s", "-o", d + "/p.o"])
    dis = subprocess.check_output(["llvm-objdump", "-d", "--mcpu=gfx950", d + "/p.o"], text=True).split("\n")
    k = next(i for i, l in enumerate(dis) if l.endswith("<L_compute>:"))
    sizes = [4 * len(l.split("//")[1].split(":")[1].split()) for l in dis[k:] if "//" in l]
    out, addr, n, stubs = probe[:i0 + 1], 0, 0, []
    for l in probe[i0 + 1:i1 + nwarm - 1]:
        t = l.split(";")[0].strip()
        if t and not t.endswith(":"):
            if addr // 4096 > len(stubs):
                stubs.append(len(out))
                out.append(None)
                addr += 4
            addr += sizes[n]
            n += 1
        out.append(l)
    out += probe[i1 + nwarm - 1:]
    ns = len(stubs)
    for j, p in enumerate(stubs):
        tgt = "L_stub%d" % (j + 4) if j + 4 < ns else "L_warm_ret"
        out[p] = "L_stub%d:\n  s_cbranch_execz %s" % (j, tgt)
    warm = ["  s_mov_b64 exec, 0"]
    for w in range(4):
        warm += ["  s_cmp_eq_u32 s%d, %d" % (S_W, w), "  s_cbranch_scc1 %s" % ("L_stub%d" % w if w < ns else "L_warm_ret")]
    warm += ["L_warm_ret:\n  s_mov_b64 exec, -1"]
    out[iw:iw + nwarm] = warm
    return "\n".join(out)


if __name__ == "__main__":
    cfg = Cfg()
    out = sys.argv[1]
    for a in sys.argv[2:]:
        k, v = a.split("=")
        old = getattr(cfg, k)
        if isinstance(old, bool):
            v = v in ("1", "True", "true")
        elif isinstance(old, int):
            v = int(v)
        elif isinstance(old, float):
            v = float(v)
        else:
            v = v.replace("+", " ")
        setattr(cfg, k, v)
    txt = generate(cfg)
    if cfg.itlb:
        txt = add_page_stubs(txt)
    open(out, "w").write(txt)
```

```python
import sys, re, math

NAME = "concat_heads__gqa_block_cached__gqa_block_cached__near_ridge"
SLOT = 40960
AUX = 32768
QSCALE = math.log2(math.e) / math.sqrt(128.0)


def f2u(x):
    import struct
    return struct.unpack("<I", struct.pack("<f", x))[0]


class Cfg:
    nt_w = ""
    nt_kv = ""
    st_pol = "sc1"
    red_pol = "sc1"
    out_pol = ""
    spin = 2000000
    ST0 = 0
    kvrot = 0
    kvd = 0
    cyc = False
    prow = -1
    tlb = False
    seq = True
    dyn = False
    EB = 200
    t1 = True
    t3 = 2
    pk = True
    touch = ''
    part1 = 10
    FL0 = 90
    FL1 = 122
    endbar = True
    psleep = 0
    remap = True
    span = False
    tst = False
    itlb = True
    STS = 4
    stmode = 'spread'
    prio = 0
    pace = ''
    pace0 = 19
    D1 = 7
    D2 = 7
    D3 = 8
    BL = 3
    stamps = False
    lstamps = False
    codepf = 2
    thr_log2 = 24.0
    rot = 2
    WP = 2
    dbg = ''
    verbose = False
    CAP = 4
    CAPB = 2
    BARC = 4
    MINLEAD = 3
    WL = 3
    nodrain = False
    pro = 4
    plan = '1111111112'
    force_rare = False


class Stream:
    def __init__(self):
        self.lines = []
        self.dsq = []
        self.nid = 0

    def raw(self, t):
        for l in t.strip("\n").split("\n"):
            self.lines.append(l if l.endswith(":") else "  " + l.strip())

    def ds(self, t):
        if len(self.dsq) >= 15:
            self.lines.append("  s_waitcnt lgkmcnt(11)")
            self.dsq = self.dsq[-11:]
        self.nid += 1
        self.dsq.append(self.nid)
        self.lines.append("  " + t)
        return self.nid

    def need(self, ids):
        pos = [self.dsq.index(i) for i in ids if i in self.dsq]
        if not pos:
            return
        p = max(pos)
        n = len(self.dsq) - 1 - p
        self.lines.append("  s_waitcnt lgkmcnt(%d)" % n)
        self.dsq = self.dsq[p + 1:]

    def drain(self):
        if self.dsq:
            self.lines.append("  s_waitcnt lgkmcnt(0)")
        self.dsq = []

    def text(self):
        return "\n".join(self.lines) + "\n"


def vr(a, n=1):
    return "v%d" % a if n == 1 else "v[%d:%d]" % (a, a + n - 1)


def mfma(d, a, b, c):
    cs = c if isinstance(c, str) else vr(c, 16)
    return "v_mfma_f32_32x32x16_bf16 %s, %s, %s, %s" % (vr(d, 16), vr(a, 4), vr(b, 4), cs)


V_TID = 0
V_XA0, V_XA1 = 1, 2
V_TA = 3
V_XL, V_KL = 4, 5
V_WQL, V_VL, V_WOL = 6, 7, 8
V_OW, V_OR = 9, 10
V_ST = 11
V_L, V_LT = 12, 13
V_T0, V_T1 = 14, 15
V_PF = 255
FR = 16
XF = 48
ET = 48
PK = 48
ACC = 64
QR = 128
SB = [160, 176]
PB = [192, 200]
NEGM = 208
OF = 128

S_W = 3
S_B, S_HP, S_GRP, S_BR = 6, 7, 16, 17
S_X, S_K, S_V, S_WQ, S_WO = 20, 24, 28, 32, 36
S_WS = 40
S_T0, S_T1, S_T2 = 44, 45, 46
S_M8, S_M1 = 47, 48
S_NC0 = 50
S_THR = 54
S_QS = 55
S_ROT = 49
S_KVR = 83
S_IN, S_OUT = 76, 84
S_HPO = 88
S_CNT = 89
S_STB = 56
S_STT = 58


class MF:
    def __init__(self, text, reads=None, chunk=None):
        self.text = text
        self.reads = reads or []
        self.chunk = chunk


class RG:
    def __init__(self, texts, chunk, lead=None):
        self.texts = texts
        self.chunk = chunk
        self.ids = None
        self.lead = lead


def stamp(st, cfg, idx):
    if not cfg.stamps:
        return
    st_l = []
    st_l.append("s_memtime s[%d:%d]" % (S_STT, S_STT + 1))
    st_l.append("s_waitcnt lgkmcnt(0)")
    st_l.append("v_mov_b32 v%d, s%d" % (V_T0, S_STT))
    st_l.append("v_mov_b32 v%d, %d" % (V_T1, idx * 4))
    st_l.append("global_store_dword v%d, v%d, s[%d:%d]" % (V_T1, V_T0, S_STB, S_STB + 1))
    st.dsq = []
    st.raw("\n".join(st_l))


def vcost(t):
    if isinstance(t, tuple):
        return t[1]
    if not isinstance(t, str):
        return 0
    if t.endswith(":"):
        return 0
    if t.startswith(("v_exp", "v_rcp")):
        return 8
    if t.startswith("buffer_store"):
        return 12
    return 4


def emit_schedule(st, mfs, wins, pre, shadow, cfg, D, barrier_at, addr_update, virtual=()):
    n = len(mfs)
    open_gap = {c: g for g, c in barrier_at.items()}
    rd_at, rd_gap, seen, pend = {}, {}, set(), []
    for i, m in enumerate(mfs):
        for rg in m.reads:
            if id(rg) in seen:
                continue
            seen.add(id(rg))
            lead = rg.lead if rg.lead is not None else D
            pend.append((max(i - lead, open_gap[rg.chunk]), i, rg))
    g, k = -1, 0
    while k < len(pend):
        cap = 99 if g < 0 else (cfg.CAPB if g in barrier_at else cfg.CAP)
        used = 0
        while k < len(pend) and pend[k][0] <= g and (used + len(pend[k][2].texts) <= cap or pend[k][1] - g <= cfg.MINLEAD):
            rg = pend[k][2]
            rd_at.setdefault(g, []).append(rg)
            rd_gap[id(rg)] = g
            used += len(rg.texts)
            k += 1
        g += 1
    for _, i, rg in pend:
        if rg.chunk + 1 in open_gap and not getattr(rg, "free", False):
            assert rd_gap[id(rg)] < open_gap[rg.chunk + 1], "read of chunk %d after the next barrier" % rg.chunk
    budget = {}
    for g in range(n):
        b = 24 - 4 * sum(len(rg.texts) for rg in rd_at.get(g, []))
        if g in barrier_at:
            b -= cfg.BARC
        budget[g] = b
    gaps = {}
    upd_done = set()
    for g, c in barrier_at.items():
        if g >= 0 and not cfg.nodrain:
            lo = max(gg for gg, l in rd_at.items() if gg < g and any(not getattr(r, "free", False) for r in l))
            if lo <= g - 1:
                for j, t in enumerate(addr_update(c)):
                    gg = min(g - 1, lo + 1 + j)
                    gaps.setdefault(gg, []).append(t)
                    budget[gg] -= 4
                upd_done.add(g)
    over = 0
    for ops, g0, g1 in wins:
        g = g0
        for o in ops:
            c = vcost(o)
            while g <= g1 and budget[g] < c:
                g += 1
            if g > g1:
                pre.setdefault(g1 + 1, []).append(o)
                over += c
            else:
                gaps.setdefault(g, []).append(o)
                budget[g] -= c
    if cfg.verbose:
        print("window overflow cycles", over, "over-budget gaps", [(g, b) for g, b in budget.items() if b < 0], file=sys.stderr)
    for g in sorted(k for k in rd_at if k < 0):
        if g in barrier_at:
            st.drain()
            st.raw("s_barrier")
            for t in addr_update(barrier_at[g]):
                st.raw(t)
        for rg in rd_at[g]:
            rg.ids = [st.ds(t) for t in rg.texts]

    def emit(t):
        if isinstance(t, tuple):
            st.ds(t[0])
        elif callable(t):
            t()
        else:
            st.raw(t)

    for i, m in enumerate(mfs):
        for t in pre.get(i, []):
            emit(t)
        ids = []
        for rg in m.reads:
            assert rg.ids is not None, "read not issued before use at mfma %d" % i
            ids += rg.ids
        st.need(ids)
        st.raw(m.text)
        if i in shadow:
            for t in shadow[i]:
                emit(t)
        if i in barrier_at:
            if barrier_at[i] not in virtual:
                if not cfg.nodrain:
                    st.drain()
                st.raw("s_barrier")
            if i not in upd_done:
                for t in addr_update(barrier_at[i]):
                    st.raw(t)
        elif i not in shadow:
            ids = []
            for j in range(i + 1, min(n, i + 3)):
                for rg in mfs[j].reads:
                    if rg.ids is not None and (j == i + 1 or j - 1 in shadow or rd_gap[id(rg)] <= i - cfg.WL):
                        ids += rg.ids
            st.need(ids)
        for rg in rd_at.get(i, []):
            rg.ids = [st.ds(t) for t in rg.texts]
        for t in gaps.get(i, []):
            emit(t)


def softmax_ops(t, sub_first):
    S = SB[t & 1]
    P = PB[t & 1]
    ops = []
    e = lambda i: ET + (i % 8)
    seq = []
    for i in range(16):
        if sub_first:
            seq.append(("b", i))
        seq.append(("e", i))
    out = []
    pend = []
    for k, i in seq:
        if k == "b":
            out.append("v_add_f32 v%d, v%d, v%d" % (S + i, NEGM, S + i))
            continue
        out.append("v_exp_f32 v%d, v%d" % (e(i), S + i))
        j = i - 1
        if j >= 1:
            if j == 1:
                out.append("v_add_f32 v%d, v%d, v%d" % (V_LT, e(0), e(1)))
            else:
                out.append("v_add_f32 v%d, v%d, v%d" % (V_LT, e(j), V_LT))
            if j & 1:
                out.append("v_cvt_pk_bf16_f32 v%d, v%d, v%d" % (P + j // 2, e(j - 1), e(j)))
    out.append("v_add_f32 v%d, v%d, v%d" % (V_LT, e(15), V_LT))
    out.append("v_cvt_pk_bf16_f32 v%d, v%d, v%d" % (P + 7, e(14), e(15)))
    return out


def rare_path(t):
    S = SB[t & 1]
    S2 = SB[(t + 1) & 1]
    L = ["L_rare%d:" % t, "s_nop 15", "s_nop 3"]
    L.append("v_max3_f32 v%d, v%d, v%d, v%d" % (V_T0, S, S + 1, S + 2))
    for i in range(3, 15, 2):
        L.append("v_max3_f32 v%d, v%d, v%d, v%d" % (V_T0, V_T0, S + i, S + i + 1))
    L.append("v_max3_f32 v%d, v%d, v%d, 0" % (V_T0, V_T0, S + 15))
    L.append("v_mov_b32 v%d, v%d" % (V_T1, V_T0))
    L.append("s_nop 1")
    L.append("v_permlane32_swap_b32 v%d, v%d" % (V_T0, V_T1))
    L.append("v_max_f32 v%d, v%d, v%d" % (V_T0, V_T0, V_T1))
    L.append("v_sub_f32 v%d, 0, v%d" % (V_T1, V_T0))
    L.append("v_exp_f32 v%d, v%d" % (V_T1, V_T1))
    for i in range(16):
        L.append("v_sub_f32 v%d, v%d, v%d" % (NEGM + i, NEGM + i, V_T0))
        L.append("v_sub_f32 v%d, v%d, v%d" % (S + i, S + i, V_T0))
        if t < 15:
            L.append("v_sub_f32 v%d, v%d, v%d" % (S2 + i, S2 + i, V_T0))
    L.append("v_mul_f32 v%d, v%d, v%d" % (V_L, V_L, V_T1))
    for i in range(64):
        L.append("v_mul_f32 v%d, v%d, v%d" % (ACC + i, ACC + i, V_T1))
    L += softmax_ops(t, False)
    L.append("s_nop 1")
    L.append("s_branch L_back%d" % t)
    return L


S_EP = 80
EPOCH = f"""
s_waitcnt lgkmcnt(0)
s_mul_i32 s{S_EP+2}, s{S_EP+2}, 1664525
s_add_u32 s{S_EP+2}, s{S_EP+2}, 1013904223
"""
EPOCH_NEXT = f"""s_or_b32 s{S_T0}, s{S_HP}, s{S_W}
s_cmp_lg_u32 s{S_T0}, 0
s_cbranch_scc1 L_noep
v_mov_b32 v12, 0
global_store_dword v12, v6, s[{S_EP}:{S_EP+1}]
L_noep:
"""
H_FL, H_TAG, H_PL, H_RD, H_OUT = 1, 6, 4, 5, 2


def handoff_addr(i, mode):
    o = f"""
v_and_b32 v12, 63, v0
s_lshl_b32 s{S_T1}, s{S_W}, 11
s_lshl_b32 s{S_T2}, s{S_HP}, 3
s_add_u32 s{S_T1}, s{S_T1}, s{S_T2}
v_lshlrev_b32 v13, 9, v12
v_add_u32 v13, s{S_T1}, v13
v_mov_b32 v14, 0x7fff0000
v_cmp_gt_u32 vcc, 4, v12
v_mov_b32 v{H_TAG}, s{S_EP+2}
s_lshl_b32 s{S_T1}, s{S_HP}, 9
v_cndmask_b32 v{H_FL}, v14, v13, vcc
v_not_b32 v{H_TAG+1}, v{H_TAG}
v_and_b32 v13, 15, v12
v_lshlrev_b32 v14, 3, v13
v_add_u32 v{H_PL}, s{S_T1}, v14
s_lshr_b32 s{S_T1}, s{S_HP}, 1
s_lshl_b32 s{S_T1}, s{S_T1}, 11
s_and_b32 s{S_T2}, s{S_HP}, 1
s_lshl_b32 s{S_T2}, s{S_T2}, 8
s_add_u32 s{S_T1}, s{S_T1}, s{S_T2}
v_lshrrev_b32 v14, 4, v12
"""
    if mode == "q":
        o += f"""
s_lshl_b32 s{S_T2}, s{S_W}, 6
s_add_u32 s{S_T1}, s{S_T1}, s{S_T2}
v_lshlrev_b32 v15, 9, v14
v_lshl_add_u32 v15, v13, 2, v15
v_add_u32 v{H_RD}, s{S_T1}, v15
v_lshrrev_b32 v15, 2, v13
v_lshlrev_b32 v15, 11, v15
v_lshl_add_u32 v15, v14, 4, v15
v_and_b32 v13, 3, v13
v_lshl_add_u32 v15, v13, 2, v15
s_lshl_b32 s{S_T2}, s{S_W}, 13
"""
    else:
        o += f"""
v_lshlrev_b32 v15, 9, v14
v_lshl_add_u32 v15, v13, 4, v15
v_add_u32 v{H_RD}, s{S_T1}, v15
v_lshlrev_b32 v15, 11, v13
v_lshl_add_u32 v15, v14, 4, v15
s_mov_b32 s{S_T2}, 0
"""
    o += f"""
s_and_b32 s{S_T1}, s{S_HP}, 3
s_lshl_b32 s{S_T1}, s{S_T1}, 15
s_add_u32 s{S_T2}, s{S_T2}, s{S_T1}
s_lshr_b32 s{S_T1}, s{S_HP}, 2
s_lshl_b32 s{S_T1}, s{S_T1}, 6
s_add_u32 s{S_T2}, s{S_T2}, s{S_T1}
v_add_u32 v{H_OUT}, s{S_T2}, v15
"""
    return [l.strip() for l in o.strip().split("\n") if l.strip()]


def reduce_code(cfg, i, mode, tag):
    nd = 1 if mode == "q" else 4
    B = 16
    if isinstance(i, int):
        o = f"s_mov_b32 s{S_T0}, {i}\n"
    else:
        o = f"s_mov_b32 s{S_T0}, {i}\n"
    o += f"""
s_lshl_b32 s{S_T1}, s{S_T0}, 7
s_mov_b32 s{S_CNT}, 0
L_poll_{tag}:
buffer_load_dwordx2 v[12:13], v{H_PL}, s[{S_IN}:{S_IN+3}], s{S_T1} offen sc1
s_add_u32 s{S_CNT}, s{S_CNT}, 1
s_cmp_gt_u32 s{S_CNT}, {cfg.spin}
s_cbranch_scc1 L_go_{tag}
{"s_sleep %d" % cfg.psleep if cfg.psleep and tag == "l" else ""}
s_waitcnt vmcnt(0)
v_cmp_ne_u64 vcc, v[12:13], v[{H_TAG}:{H_TAG+1}]
s_cbranch_vccnz L_poll_{tag}
L_go_{tag}:
{tstamp(cfg, 4)}
s_lshl_b32 s{S_T1}, s{S_T0}, 14
"""
    sfx = "dword" if nd == 1 else "dwordx4"
    for p in range(16):
        o += f"buffer_load_{sfx} {vr(B + nd*p, nd)}, v{H_RD}, s[{S_WS}:{S_WS+3}], s{S_T1} offen {cfg.red_pol}\n"
        if p < 15:
            o += f"s_add_u32 s{S_T1}, s{S_T1}, 0x10000\n"
    o += f"""
s_add_u32 s{S_T0}, s{S_T0}, s{S_B}
s_and_b32 s{S_T0}, s{S_T0}, 3
s_lshl_b32 s{S_T0}, s{S_T0}, 8
s_mov_b32 s{S_T2}, 0xffff0000
"""
    A = B + 16 * nd
    for p in range(16):
        o += f"s_waitcnt vmcnt({15-p})\n"
        for j in range(nd):
            r = B + nd * p + j
            if p == 0:
                o += f"v_lshlrev_b32 v{A+2*j}, 16, v{r}\nv_and_b32 v{A+2*j+1}, s{S_T2}, v{r}\n"
            else:
                o += f"v_lshlrev_b32 v12, 16, v{r}\nv_and_b32 v13, s{S_T2}, v{r}\nv_add_f32 v{A+2*j}, v12, v{A+2*j}\nv_add_f32 v{A+2*j+1}, v13, v{A+2*j+1}\n"
    o += tstamp(cfg, 5) + "\n"
    for j in range(nd):
        o += f"v_cvt_pk_bf16_f32 v{12+j}, v{A+2*j}, v{A+2*j+1}\n"
    o += f"buffer_store_{sfx} {vr(12, nd)}, v{H_OUT}, s[{S_OUT}:{S_OUT+3}], s{S_T0} offen {cfg.out_pol}\n"
    return o


def reduce_dyn(cfg):
    B, A = 16, 80
    S_TODO, S_NOW = 94, 95
    poll = f"buffer_load_dwordx2 v[8:9], v3, s[{S_IN}:{S_IN+3}], 0 offen sc1\n"
    o = f"""s_mov_b32 s{S_T2}, 0xffff0000
s_mov_b32 s{S_TODO}, 15
s_mov_b32 s{S_CNT}, 0
{poll}s_waitcnt vmcnt(0)
L_dyn:
v_cmp_ne_u64 vcc, v[8:9], v[{H_TAG}:{H_TAG+1}]
s_add_u32 s{S_CNT}, s{S_CNT}, 1
s_cmp_gt_u32 s{S_CNT}, {cfg.spin}
s_cselect_b64 vcc, 0, vcc
s_mov_b32 s{S_NOW}, 0
"""
    for i in range(4):
        half = "vcc_lo" if i < 2 else "vcc_hi"
        o += f"""s_bitcmp1_b32 s{S_TODO}, {i}
s_cbranch_scc0 L_dn{i}
s_bfe_u32 s{S_T0}, {half}, {hex(0x100000 + 16*(i & 1))}
s_cbranch_scc1 L_dn{i}
s_bitset1_b32 s{S_NOW}, {i}
{tstamp(cfg, (4, 0, 1, 2)[i])}
s_mov_b32 s{S_T1}, {i*16384}
{"s_waitcnt vmcnt(46)" if i == 3 else ""}
"""
        for p in range(16):
            o += f"buffer_load_dword v{B+16*i+p}, v{H_RD}, s[{S_WS}:{S_WS+3}], s{S_T1} offen {cfg.red_pol}\n"
            if p < 15:
                o += f"s_add_u32 s{S_T1}, s{S_T1}, 0x10000\n"
        o += f"L_dn{i}:\n"
    o += f"""s_andn2_b32 s{S_TODO}, s{S_TODO}, s{S_NOW}
s_cbranch_scc0 L_dnp
{poll}L_dnp:
s_waitcnt vmcnt(0)
"""
    for i in range(4):
        o += f"s_bitcmp1_b32 s{S_NOW}, {i}\ns_cbranch_scc0 L_ds{i}\n"
        o += f"s_add_u32 s{S_T0}, s{S_B}, {i}\ns_and_b32 s{S_T0}, s{S_T0}, 3\ns_lshl_b32 s{S_T0}, s{S_T0}, 8\n"
        r = B + 16 * i
        o += f"v_lshlrev_b32 v{A}, 16, v{r}\nv_and_b32 v{A+1}, s{S_T2}, v{r}\n"
        for p in range(1, 16):
            o += f"v_lshlrev_b32 v12, 16, v{r+p}\nv_and_b32 v13, s{S_T2}, v{r+p}\nv_add_f32 v{A}, v12, v{A}\nv_add_f32 v{A+1}, v13, v{A+1}\n"
        o += f"v_cvt_pk_bf16_f32 v{A+2+i}, v{A}, v{A+1}\n"
        o += f"buffer_store_dword v{A+2+i}, v{H_OUT}, s[{S_OUT}:{S_OUT+3}], s{S_T0} offen {cfg.out_pol}\nL_ds{i}:\n"
    o += f"""s_cmp_lg_u32 s{S_TODO}, 0
s_cbranch_scc1 L_dyn
{tstamp(cfg, 5)}
"""
    o += EPOCH_NEXT
    return o


def reduce_seq(cfg):
    B, A = 16, 32
    o = f"s_mov_b32 s{S_T2}, 0xffff0000\n"
    poll = lambda i: f"buffer_load_dwordx2 v[8:9], v{H_PL}, s[{S_IN}:{S_IN+3}], 0 offen offset:{128*i} sc1\n"
    o += poll(0) + "s_waitcnt vmcnt(0)\n"
    for i in range(4):
        o += f"""s_mov_b32 s{S_CNT}, 0
L_sp{i}:
v_cmp_ne_u64 vcc, v[8:9], v[{H_TAG}:{H_TAG+1}]
s_cbranch_vccz L_sg{i}
{poll(i)}s_add_u32 s{S_CNT}, s{S_CNT}, 1
s_cmp_lt_u32 s{S_CNT}, {cfg.spin}
s_waitcnt vmcnt(0)
s_cbranch_scc1 L_sp{i}
L_sg{i}:
{tstamp(cfg, (4, 0, 1, 2)[i]) if i in (0, 3) or True else ""}
s_mov_b32 s{S_T1}, {i*16384}
"""
        for p in range(16):
            o += f"buffer_load_dword v{B+p}, v{H_RD}, s[{S_WS}:{S_WS+3}], s{S_T1} offen {cfg.red_pol}\n"
            if p < 15:
                o += f"s_add_u32 s{S_T1}, s{S_T1}, 0x10000\n"
        k = 0
        if i < 3:
            o += poll(i + 1)
            k = 1
        o += f"s_add_u32 s{S_T0}, s{S_B}, {i}\ns_and_b32 s{S_T0}, s{S_T0}, 3\ns_lshl_b32 s{S_T0}, s{S_T0}, 8\n"
        for p in range(16):
            o += f"s_waitcnt vmcnt({15-p+k})\n"
            r = B + p
            if p == 0:
                o += f"v_lshlrev_b32 v{A}, 16, v{r}\nv_and_b32 v{A+1}, s{S_T2}, v{r}\n"
            else:
                o += f"v_lshlrev_b32 v12, 16, v{r}\nv_and_b32 v13, s{S_T2}, v{r}\nv_add_f32 v{A}, v12, v{A}\nv_add_f32 v{A+1}, v13, v{A+1}\n"
        o += f"v_cvt_pk_bf16_f32 v12, v{A}, v{A+1}\n"
        if i < 3:
            o += "s_waitcnt vmcnt(0)\n"
        else:
            o += tstamp(cfg, 5) + "\n"
        o += f"buffer_store_dword v12, v{H_OUT}, s[{S_OUT}:{S_OUT+3}], s{S_T0} offen {cfg.out_pol}\n"
    o += EPOCH_NEXT
    return o


REG = re.compile(r"v\[(\d+):(\d+)\]|v(\d+)")


def regs_of(tok):
    m = REG.fullmatch(tok.strip().lstrip("-"))
    if not m:
        return set()
    if m.group(3):
        return {int(m.group(3))}
    return set(range(int(m.group(1)), int(m.group(2)) + 1))


def parse(line):
    l = line.split(";")[0].strip()
    if not l or l.endswith(":") or l.startswith("."):
        return None
    op, _, rest = l.partition(" ")
    toks = [t.strip() for t in rest.split(",")] if rest else []
    toks = [t.split(" ")[0] for t in toks]
    rd, wr = set(), set()
    if op.startswith("v_cmp"):
        for t in toks[1:]:
            rd |= regs_of(t)
    elif op.startswith("v_permlane"):
        rd = wr = regs_of(toks[0]) | regs_of(toks[1])
    elif op.startswith(("v_readfirstlane", "v_readlane")):
        rd = regs_of(toks[1])
    elif op.startswith("v_"):
        wr = regs_of(toks[0])
        for t in toks[1:]:
            rd |= regs_of(t)
        if op.startswith(("v_fmac", "v_writelane")):
            rd |= wr
    elif op.startswith("ds_read"):
        wr = regs_of(toks[0]); rd = regs_of(toks[1])
    elif op.startswith("ds_write"):
        rd = regs_of(toks[0]) | regs_of(toks[1])
    elif op.startswith(("buffer_store", "buffer_atomic", "global_store", "global_atomic")):
        for t in toks:
            rd |= regs_of(t)
    elif op.startswith(("buffer_load", "global_load")):
        if "lds" in l.split():
            rd = regs_of(toks[0])
        else:
            wr = regs_of(toks[0]); rd = regs_of(toks[1])
    return op, rd, wr, toks


def fix_hazards(lines):
    out = []
    hist = []
    t = 0
    last_mf = -100
    for line in lines:
        p = parse(line)
        if p is None:
            out.append(line)
            continue
        op, rd, wr, toks = p
        is_mf = op.startswith("v_mfma")
        is_valu = op.startswith("v_") and not is_mf
        is_mem = op.startswith(("ds_", "buffer_", "global_"))
        need = 0
        tt = max(t, last_mf + 8) if is_mf else t
        dist = 0
        for (o2, r2, w2, k2, st2, t2) in reversed(hist[-40:]):
            m2 = o2.startswith("v_mfma")
            v2 = o2.startswith("v_") and not m2
            req = 0
            d = dist
            if v2 and o2.startswith(("v_exp", "v_rcp", "v_log", "v_rsq")) and is_valu and not op.startswith(("v_exp", "v_rcp")) and (w2 & rd):
                req = 1
            if v2 and is_mf and (w2 & rd):
                req = 2
            if v2 and op.startswith("v_permlane") and (w2 & rd):
                req = 2
            if v2 and op.startswith(("v_readfirstlane", "v_readlane")) and (w2 & rd):
                req = 1
            if o2.startswith(("buffer_store_dwordx4", "global_store_dwordx4")) and is_valu and (regs_of(k2[0] if o2.startswith("buffer") else k2[1]) & wr):
                req = 2
            if m2 and (is_valu or is_mem) and (w2 & (rd | wr)):
                req = 12
                d = tt - t2 - 1
            if m2 and is_mf and (w2 & (regs_of(toks[1]) | regs_of(toks[2]))):
                req = 12
                d = tt - t2 - 1
            if m2 and is_mf and (w2 & regs_of(toks[3])) and regs_of(toks[3]) != w2:
                req = 10
                d = tt - t2 - 1
            if m2 and is_valu and (regs_of(k2[3]) & wr):
                req = max(req, 7)
                d = tt - t2 - 1
            if req > d:
                need = max(need, req - d)
            dist += st2
        while need > 0:
            k = min(need, 16)
            out.append("  s_nop %d" % (k - 1))
            hist.append(("s_nop", set(), set(), [], k, t))
            t += k
            need -= k
        tt = max(t, last_mf + 8) if is_mf else t
        st_ = int(toks[0]) + 1 if op == "s_nop" else 1
        hist.append((op, rd, wr, toks, st_, tt))
        t = tt + st_
        if is_mf:
            last_mf = tt
        out.append(line)
    return out


TS = [4, 8, 10, 64, 66, 68, 70, 72, 96, 98]


def tstamp(cfg, k):
    return f"s_memrealtime s[{TS[k]}:{TS[k]+1}]" if cfg.tst else ""


def tst_end(cfg, base):
    o = f"""s_waitcnt vmcnt(0)
{tstamp(cfg, 7)}
s_lshl_b32 s14, s2, 3
s_add_u32 s14, s14, s{S_W}
s_add_u32 s14, s14, {base}
s_lshl_b32 s14, s14, 6
s_add_u32 s14, s14, 0x2300000
s_add_u32 s12, s74, s14
s_addc_u32 s13, s75, 0
s_waitcnt lgkmcnt(0)
v_mov_b32 v14, 0
"""
    for k in range(8):
        o += f"v_mov_b32 v{16+k}, s{TS[k]}\n"
    o += f"""v_mov_b32 v24, s60
v_mov_b32 v25, s{S_CNT}
global_store_dwordx4 v14, v[16:19], s[12:13]
global_store_dwordx4 v14, v[20:23], s[12:13] offset:16
v_mov_b32 v26, s96
v_mov_b32 v27, s98
global_store_dwordx4 v14, v[24:27], s[12:13] offset:32
"""
    return o


def span_end(cfg, base):
    if not cfg.span:
        return ""
    return f"""s_waitcnt vmcnt(0)
s_memrealtime s[{S_STT}:{S_STT+1}]
s_lshl_b32 s14, s2, 3
s_add_u32 s14, s14, s{S_W}
s_lshl_b32 s14, s14, 3
s_add_u32 s14, s14, {0x2200000 + base*8}
s_add_u32 s12, s74, s14
s_addc_u32 s13, s75, 0
s_waitcnt lgkmcnt(0)
v_mov_b32 v12, s60
v_mov_b32 v13, s{S_STT}
v_mov_b32 v14, 0
global_store_dwordx2 v14, v[12:13], s[12:13]
"""


def gen_compute(cfg):
    st = Stream()
    R = st.raw
    R("""
L_compute:
v_and_b32 v%(ln)d, 63, v0
""" % dict(ln=V_T0))
    ln = V_T0
    t1 = V_T1
    R("s_waitcnt lgkmcnt(0)")
    R(rest_setup())
    if cfg.tlb:
        R(f"""s_load_dword s96, s[{S_K}:{S_K+1}], 0
s_load_dword s96, s[{S_V}:{S_V+1}], 0
s_load_dword s96, s[{S_WO}:{S_WO+1}], 0
s_load_dword s96, s[{S_WS}:{S_WS+1}], s{S_HPO}
s_load_dword s96, s[{S_OUT}:{S_OUT+1}], 0""")
    if cfg.codepf == 2:
        R(f"""
s_getpc_b64 s[94:95]
s_lshr_b32 s{S_T0}, s2, 3
s_lshl_b32 s{S_T0}, s{S_T0}, 2
s_add_u32 s{S_T0}, s{S_T0}, s{S_W}
s_lshl_b32 s{S_T0}, s{S_T0}, 7
s_load_dword s96, s[94:95], s{S_T0}
s_lshr_b32 s{S_T0}, s{S_T0}, 2
s_add_u32 s{S_T0}, s{S_T0}, 0x4000
s_load_dword s97, s[94:95], s{S_T0}
""")
    if cfg.codepf == 1:
        R("""
s_getpc_b64 s[%d:%d]
s_sub_u32 s44, s44, 0x1800
s_subb_u32 s45, s45, 0
v_lshlrev_b32 v16, 7, v0
v_min_u32 v16, CODE_BYTES, v16
global_load_dword v255, v16, s[%d:%d]
""" % (S_T0, S_T0 + 1, S_T0, S_T0 + 1))
    R(f"""
v_lshrrev_b32 v18, 5, v{ln}              ; h
v_bfe_u32 v19, v{ln}, 2, 2
v_xor_b32 v20, v18, v19                  ; h^g
v_lshlrev_b32 v20, 4, v20
v_and_b32 v21, 3, v{ln}
v_lshl_add_u32 v20, v21, 6, v20          ; (key&3)*64 + (h^g)*16
v_bfe_u32 v22, v{ln}, 2, 3               ; key>>2
v_lshl_add_u32 v{V_KL}, v22, 10, v20
v_bfe_u32 v22, v{ln}, 3, 2               ; tok>>3
v_lshl_add_u32 v23, v22, 10, v20
v_bfe_u32 v22, v{ln}, 2, 1
v_lshl_add_u32 v23, v22, 8, v23
s_and_b32 s{S_T0}, s{S_W}, 1
s_lshl_b32 s{S_T0}, s{S_T0}, 12
s_add_u32 s{S_T0}, s{S_T0}, {AUX}
v_add_u32 v{V_XL}, s{S_T0}, v23
v_bfe_u32 v22, v{ln}, 4, 1               ; G&1
v_lshlrev_b32 v22, 5, v22
v_lshl_add_u32 v22, v19, 6, v22          ; r*64 + (G&1)*32
v_lshl_add_u32 v23, v21, 3, v22          ; + c4*8
v_lshl_add_u32 v{V_VL}, v18, 10, v23
v_and_b32 v23, 1, v21
v_lshrrev_b32 v24, 1, v21
v_lshl_add_u32 v23, v23, 1, v24          ; bitswap(c4)
v_lshl_add_u32 v23, v23, 3, v22
s_lshr_b32 s{S_T0}, s{S_W}, 1
s_lshl_b32 s{S_T0}, s{S_T0}, 14
v_lshl_add_u32 v24, v18, 11, v23
v_add_u32 v{V_WQL}, s{S_T0}, v24
s_lshl_b32 s{S_T0}, s{S_W}, 8
v_lshl_add_u32 v24, v18, 10, v23
v_add_u32 v{V_WOL}, s{S_T0}, v24
s_mul_i32 s{S_T0}, s{S_W}, {SLOT}
s_add_u32 s{S_T0}, s{S_T0}, {AUX}
v_lshlrev_b32 v24, 4, v{ln}
v_add_u32 v{V_OW}, s{S_T0}, v24
s_lshr_b32 s{S_T0}, s{S_B}, 2            ; first head = b>>2
s_mul_i32 s{S_T0}, s{S_T0}, {2*SLOT}
s_add_u32 s{S_T0}, s{S_T0}, {AUX}
v_add_u32 v{V_OR}, s{S_T0}, v24          ; O read (first head, th=0)
s_lshl_b32 s{S_T0}, s{S_W}, 12
v_add_u32 v{V_ST}, s{S_T0}, v24          ; partial store voffset: w*4096 + lane*16
s_mov_b32 s{S_THR}, {hex(f2u(2.0**cfg.thr_log2 if not cfg.force_rare else 4.0))}
s_mov_b32 s{S_QS}, {hex(f2u(QSCALE))}
v_mov_b32 v{V_L}, 0
""")
    R(EPOCH)
    if cfg.prio:
        R(f"s_setprio {cfg.prio}")
    if cfg.itlb:
        R("%WARM%")
    stamp(st, cfg, 1)

    def addr_update(c):
        base = (c % 4) * SLOT
        if c < 8:
            return [f"v_add_u32 v{V_XA0}, {base}, v{V_XL}", f"v_add_u32 v{V_TA}, {base}, v{V_WQL}",
                    f"v_xor_b32 v{V_XA1}, 32, v{V_XA0}"]
        if c < 16:
            return [f"v_add_u32 v{V_XA0}, {base}, v{V_KL}", f"v_add_u32 v{V_TA}, {base}, v{V_VL}",
                    f"v_xor_b32 v{V_XA1}, 32, v{V_XA0}"]
        return [f"v_add_u32 v{V_TA}, {base}, v{V_WOL}"]

    fr_i = [0]

    def next_frag():
        f = FR + 4 * (fr_i[0] % 8)
        fr_i[0] += 1
        return f

    def tr_pair(f, off0, off1, chunk, lead=None):
        return RG([f"ds_read_b64_tr_b16 {vr(f,2)}, v{V_TA} offset:{off0}",
                   f"ds_read_b64_tr_b16 {vr(f+2,2)}, v{V_TA} offset:{off1}"], chunk, lead)

    mfs, wins, pre, shadow, bar = [], [], {}, {}, {}
    xi = 0
    for c in range(8):
        bar[len(mfs) - 1 - cfg.BL if c else -1] = c
        xr = []
        for s in range(4):
            xf = XF + 4 * (xi % 4)
            xi += 1
            xr.append((xf, RG([f"ds_read_b128 {vr(xf,4)}, v{V_XA0 + (s & 1)} offset:{(s >> 1) * 512}"], c, cfg.D1)))
        order = [(s, t) for s in range(4) for t in range(4)]
        if c == 7 and cfg.t1:
            order = [(s, t) for t in range(4) for s in range(4)]
        for s, t in order:
            f = next_frag()
            rg = tr_pair(f, (4 * s) * 1024 + t * 256, (4 * s + 1) * 1024 + t * 256, c, cfg.D1)
            cin = "0" if (c == 0 and s == 0) else ACC + 16 * t
            mfs.append(MF(mfma(ACC + 16 * t, f, xr[s][0], cin), [xr[s][1], rg], c))
    n1 = len(mfs)
    pre[n1] = [lambda: stamp(st, cfg, 2)] + (["s_waitcnt vmcnt(0)"] if cfg.codepf == 1 else [])
    for h in range(8):
        ops = [f"v_mul_f32 v{ACC+8*h+i}, s{S_QS}, v{ACC+8*h+i}" for i in range(8)]
        ops += [f"v_cvt_pk_bf16_f32 v{QR+4*h+i}, v{ACC+8*h+2*i}, v{ACC+8*h+2*i+1}" for i in range(4)]
        if cfg.t1:
            wins.append((ops, n1 - 16 + 4 * (h >> 1) + 5, n1 + h - 1))
        else:
            pre[n1] += ops
    items = [("K", 0)]
    for t in range(1, 16):
        items += [("K", t), ("V", t - 1)]
    items.append(("V", 15))
    start = {}
    for q, (kind, t) in enumerate(items):
        c = 8 + (q >> 2)
        tb = (q & 3) * 8192
        if (q & 3) == 0:
            bar[len(mfs) - 1 - cfg.BL] = c
        start[(kind, t)] = len(mfs)
        if kind == "K":
            S = SB[t & 1]
            for s in range(8):
                f = next_frag()
                rg = RG([f"ds_read_b128 {vr(f,4)}, v{V_XA0 + (s & 1)} offset:{tb + (s >> 1) * 256}"], c, cfg.D2)
                cin = S if s else ("0" if t < 2 else NEGM)
                mfs.append(MF(mfma(S, f, QR + 4 * s, cin), [rg], c))
        else:
            order = [(u, d) for u in range(2) for d in range(4)]
            if t == 15 and cfg.t3:
                order = [(u, d) for d in range(4) for u in range(2)]
            for u, d in order:
                if True:
                    f = next_frag()
                    rg = tr_pair(f, tb + (4 * u) * 1024 + d * 256, tb + (4 * u + 2) * 1024 + d * 256, c, cfg.D2)
                    cin = "0" if (t == 0 and u == 0) else ACC + 16 * d
                    mfs.append(MF(mfma(ACC + 16 * d, f, PB[t & 1] + 4 * u, cin), [rg], c))
    S = SB[0]
    ops0 = ["v_max3_f32 v%d, v%d, v%d, v%d" % (V_T0, S, S + 1, S + 2)]
    for i in range(3, 15, 2):
        ops0.append("v_max3_f32 v%d, v%d, v%d, v%d" % (V_T0, V_T0, S + i, S + i + 1))
    ops0.append("v_max_f32 v%d, v%d, v%d" % (V_T0, V_T0, S + 15))
    ops0.append("v_mov_b32 v%d, v%d" % (V_T1, V_T0))
    ops0.append("v_permlane32_swap_b32 v%d, v%d" % (V_T0, V_T1))
    ops0.append("v_max_f32 v%d, v%d, v%d" % (V_T0, V_T0, V_T1))
    ops0.append("v_sub_f32 v%d, 0, v%d" % (NEGM, V_T0))
    ops0 += softmax_ops(0, True)
    ops0.append("v_add_f32 v%d, v%d, v%d" % (V_L, V_LT, V_L))
    k1 = start[("K", 1)]
    wins.append((ops0, k1 + 1, k1 + 7))
    nb = ["v_mov_b32 v%d, v%d" % (NEGM + i, NEGM) for i in range(1, 16)]
    wins.append((nb, start[("V", 0)], start[("V", 0)] + 6))
    rare = []
    for t in range(1, 16):
        ops = softmax_ops(t, t == 1)
        g0 = start[("V", t - 1)] + 1
        pv = start[("V", t)]
        chk = ["v_cmp_nge_f32 vcc, s%d, v%d" % (S_THR, V_LT)]
        br = ["s_cbranch_vccnz L_rare%d" % t, "L_back%d:" % t]
        ladd = ["v_add_f32 v%d, v%d, v%d" % (V_L, V_LT, V_L)]
        if 1 < t < 15:
            wins.append((ops + chk, g0, pv - 2))
            shadow[pv - 1] = br
            wins.append((ladd, pv - 1, pv))
        else:
            wins.append((ops + chk + br, g0, pv - 1))
            wins.append((ladd, pv, pv))
        rare += rare_path(t)
    pv = start[("V", 15)]
    nend = len(mfs)
    lops = [f"v_mov_b32 v{V_T0}, v{V_L}", "s_nop 0", "s_nop 0", f"v_permlane32_swap_b32 v{V_L}, v{V_T0}",
            f"v_add_f32 v{V_L}, v{V_L}, v{V_T0}", f"v_rcp_f32 v{V_L}, v{V_L}"]

    def norm_ops(ks, packed):
        a = ACC + 8 * ks
        if packed:
            o = [f"v_pk_mul_f32 v[{a+2*i}:{a+2*i+1}], v[{a+2*i}:{a+2*i+1}], v[{V_L}:{V_L+1}] op_sel_hi:[1,0]" for i in range(4)]
        else:
            o = [f"v_mul_f32 v{a+i}, v{V_L}, v{a+i}" for i in range(8)]
        o += [f"v_cvt_pk_bf16_f32 v{QR+4*ks+i}, v{a+2*i}, v{a+2*i+1}" for i in range(4)]
        return o + [(f"ds_write_b128 v{V_OW}, {vr(QR+4*ks,4)} offset:{ks*1024}", 12)]
    if cfg.t3:
        wins.append((lops, pv, pv + 2))
        for ks in range(cfg.t3):
            wins.append((norm_ops(ks, False), pv + 3 + 2 * (ks >> 1), nend - 1))
        post = sum((norm_ops(ks, cfg.pk) for ks in range(cfg.t3, 8)), [])
    else:
        post = lops + sum((norm_ops(ks, cfg.pk) for ks in range(8)), [])
    emit_schedule(st, mfs, wins, pre, shadow, cfg, cfg.D2, bar, addr_update)
    stamp(st, cfg, 3)
    for o in pre.get(nend, []) + post:
        if isinstance(o, tuple):
            st.ds(o[0])
        else:
            R(o)
    R(f"s_lshr_b32 s{S_T0}, s{S_B}, 2\ns_xor_b32 s{S_T0}, s{S_T0}, 1\ns_mul_i32 s{S_T0}, s{S_T0}, {2*SLOT}\ns_add_u32 s{S_T0}, s{S_T0}, {AUX}")
    R(f"v_and_b32 v{V_OW+0}, 63, v0\nv_lshlrev_b32 v{V_T0}, 4, v{V_OW}")
    st.lines.pop(); st.lines.pop()
    R(f"v_and_b32 v{V_T1}, 63, v0\nv_lshlrev_b32 v{V_T1}, 4, v{V_T1}\nv_add_u32 v{V_XA0}, s{S_T0}, v{V_T1}")
    mfs, wins, pre, shadow, bar = [], [], {}, {}, {}
    orgs = {}
    for i in range(4):
        A = ACC + 32 * (i & 1)
        for kh in range(2):
            c = 16 + 2 * i + kh
            bar[len(mfs) - 1 - cfg.BL if c > 16 else -1] = c
            for ks in range(8):
                f = next_frag()
                rg = tr_pair(f, (4 * ks) * 1024, (4 * ks + 2) * 1024, c, cfg.D3)
                for th in range(2):
                    o = OF + 64 * kh + 32 * th + 4 * ks
                    reads = [rg]
                    if i == 0:
                        areg = V_OR if kh == 0 else V_XA0
                        reads.append(RG([f"ds_read_b128 {vr(o,4)}, v{areg} offset:{th*SLOT + ks*1024}"], 16, cfg.D3 - 2))
                        reads[-1].free = True
                    cin = "0" if (kh == 0 and ks == 0) else A + 16 * th
                    mfs.append(MF(mfma(A + 16 * th, f, o, cin), reads, c))

    def cvt_ops(i, f):
        A = ACC + 32 * (i & 1) + 8 * f
        return [f"v_cvt_pk_bf16_f32 v{PK+4*f+j}, v{A+2*j}, v{A+2*j+1}" for j in range(4)]

    def st_op(i, f):
        return [f"buffer_store_dwordx4 {vr(PK+4*f,4)}, v{V_ST}, s[{S_WS}:{S_WS+3}], s{S_NC0+i} offen offset:{f*1024} {cfg.st_pol}"]

    def flag_op(i):
        return f"buffer_store_dwordx2 v[{H_TAG}:{H_TAG+1}], v{H_FL}, s[{S_IN}:{S_IN+3}], 0 offen offset:{128*i} sc1"
    wins.append(([f"s_add_u32 s{S_NC0+i}, s{S_HPO}, {i*16384}" for i in range(4)], 33, 40))
    vq, sent = [], set()

    def vwait(tag):
        p = max(k for k, t in enumerate(vq) if t == tag)
        n = len(vq) - 1 - p
        del vq[:p + 1]
        return f"s_waitcnt vmcnt({n})"
    if cfg.stmode == "late":
        vq += [("st", 0)] * 3 + [("st", 1), ("st", 0)] + [("st", 1)] * 3 + [("st", 2)] * 4
        wins.append((sum((cvt_ops(0, f) for f in range(4)), []), 33, 60))
        wins.append((handoff_addr(3, "q"), 40, 78))
        g = 80 + cfg.ST0
        for f in range(4):
            wins.append((st_op(0, f), g + 2 * f, 94))
        for f in range(4):
            wins.append((cvt_ops(1, f) + st_op(1, f), g + 2 * f + 3, 94))
        for f in range(4):
            wins.append((cvt_ops(2, f) + st_op(2, f), 97 + 3 * f, 126))
    else:
        wins.append((handoff_addr(3, "q"), 33, 60))
        ev = []
        for i in range(3):
            for f in range(4):
                ev.append((32 * (i + 1) + 2 + cfg.STS * f, "st", i, f))
        ev.append((cfg.FL0, "fl", 0, 0))
        ev.append((cfg.FL1, "fl", 1, 0))
        for g, kind, i, f in sorted(ev):
            if kind == "st":
                wins.append((cvt_ops(i, f) + st_op(i, f), g, 32 * (i + 2) - 1))
                vq.append(("st", i))
            elif g < 128:
                wins.append(([vwait(("st", i)), flag_op(i)], g, 127))
                vq.append(("fl", i))
                sent.add(i)
    if cfg.endbar and cfg.EB < 128:
        shadow[cfg.EB] = ["s_barrier"]
    emit_schedule(st, mfs, wins, pre, shadow, cfg, cfg.D3, bar, addr_update, virtual={23})
    stamp(st, cfg, 4)
    if cfg.tst:
        R(tstamp(cfg, 0))
    if cfg.stamps:
        vq.append("stamp")
    for f in range(4):
        R("\n".join(cvt_ops(3, f) + st_op(3, f)))
        vq.append(("st", 3))
    if cfg.tst:
        R(tstamp(cfg, 1))
    for i in range(4):
        if i not in sent:
            if ("st", i) in vq:
                R(vwait(("st", i)))
            R(flag_op(i))
            vq.append(("fl", i))
        if i == 1 and cfg.endbar and cfg.EB >= 128:
            R("s_barrier")
        if i == 2 and cfg.tst:
            R(tstamp(cfg, 2))
    if cfg.tst:
        R(tstamp(cfg, 3))
    stamp(st, cfg, 8)
    if not cfg.seq:
        rc = reduce_code(cfg, 3, "q", "c").split("L_go_c:\n")
        R(rc[0] + "L_go_c:")
        stamp(st, cfg, 9)
        R(rc[1])
        R(EPOCH_NEXT)
    stamp(st, cfg, 10)
    if cfg.stamps:
        R("s_waitcnt vmcnt(0)")
        stamp(st, cfg, 5)
        R(f"s_memrealtime s[{S_STT}:{S_STT+1}]\ns_waitcnt lgkmcnt(0)\nv_mov_b32 v{V_T0}, s{S_STT}\nv_mov_b32 v{V_T1}, 28\nglobal_store_dword v{V_T1}, v{V_T0}, s[{S_STB}:{S_STB+1}]")
    if cfg.tst:
        R(tst_end(cfg, 0))
    if cfg.span:
        R(span_end(cfg, 0))
    R("s_endpgm")
    R("L_main_end:")
    R("\n".join(rare))
    if cfg.dbg:
        keep = []
        nmf = [0]
        for l in st.lines:
            t = l.strip()
            if "E" in cfg.dbg and t.startswith("v_exp"): continue
            if "A" in cfg.dbg and t.startswith("v_add_f32"): continue
            if "C" in cfg.dbg and t.startswith("v_cvt_pk") and (" v19" in t.split(",")[0] or " v20" in t.split(",")[0]): continue
            if "K" in cfg.dbg and t.startswith("ds_read_b128"): continue
            if "T" in cfg.dbg and t.startswith("ds_read_b64_tr"): continue
            if "W" in cfg.dbg and t.startswith("s_waitcnt lgkmcnt"): continue
            if "B" in cfg.dbg and (t.startswith("s_cbranch_vccnz") or t.startswith("v_cmp_nge")): continue
            if t.startswith("v_mfma"):
                nmf[0] += 1
                ph = 1 if nmf[0] <= 128 else 2 if nmf[0] <= 384 else 3
                if "xyz"[ph - 1] in cfg.dbg:
                    continue
                if str(ph) in cfg.dbg:
                    m = re.match(r"v_mfma_f32_32x32x16_bf16 v\[(\d+):\d+\], (v\[\d+:\d+\]), (v\[\d+:\d+\]), (.*)", t)
                    d = int(m.group(1)) + 8 * (nmf[0] >> 2 & 1)
                    for q in range(2):
                        dd = "v[%d:%d]" % (d + 4 * q, d + 4 * q + 3)
                        keep.append("  v_mfma_f32_16x16x32_bf16 %s, %s, %s, %s" % (dd, m.group(2), m.group(3), dd if m.group(4) != "0" else "0"))
                    continue
            keep.append(l)
        st.lines = keep
    n0 = len(st.lines)
    st.lines = fix_hazards(st.lines)
    if cfg.verbose:
        print("hazard nops inserted:", len(st.lines) - n0, file=sys.stderr)
    return st.text()


def rest_setup():
    return f"""
s_lshl_b32 s{S_GRP}, s{S_BR}, 3
s_add_u32 s{S_GRP}, s{S_GRP}, s{S_B}
s_lshl_b32 s18, s{S_GRP}, 8
s_add_u32 s18, s18, 0x1040000
s_add_u32 s{S_EP}, s74, s18
s_addc_u32 s{S_EP+1}, s75, 0
s_load_dword s{S_EP+2}, s[{S_EP}:{S_EP+1}], 0
s_lshl_b32 s10, s{S_B}, 3
s_add_u32 s10, s10, s91
s_lshl_b32 s10, s10, 17
s_lshl_b32 s13, s{S_HP}, 18
s_lshl_b32 s14, s{S_GRP}, 20
s_lshl_b32 s{S_HPO}, s{S_HP}, 16
s_lshl_b32 s15, s{S_GRP}, 13
s_add_u32 s15, s15, 0x1000000
s_lshl_b32 s90, s{S_BR}, 10
s_lshl_b32 s19, s{S_B}, 17
s_add_u32 s19, s19, s90
s_add_u32 s{S_K}, s66, s10
s_addc_u32 s{S_K+1}, s67, 0
s_mov_b32 s{S_K+2}, 0x20000
s_mov_b32 s{S_K+3}, 0x20000
s_add_u32 s{S_V}, s68, s10
s_addc_u32 s{S_V+1}, s69, 0
s_mov_b32 s{S_V+2}, 0x20000
s_mov_b32 s{S_V+3}, 0x20000
s_add_u32 s{S_WO}, s72, s13
s_addc_u32 s{S_WO+1}, s73, 0
s_mov_b32 s{S_WO+2}, 0x40000
s_mov_b32 s{S_WO+3}, 0x20000
s_add_u32 s{S_WS}, s74, s14
s_addc_u32 s{S_WS+1}, s75, 0
s_mov_b32 s{S_WS+2}, 0x100000
s_mov_b32 s{S_WS+3}, 0x20000
s_add_u32 s{S_IN}, s74, s15
s_addc_u32 s{S_IN+1}, s75, 0
s_mov_b32 s{S_IN+2}, 0x2000
s_mov_b32 s{S_IN+3}, 0x20000
s_add_u32 s{S_OUT}, s92, s19
s_addc_u32 s{S_OUT+1}, s93, 0
s_sub_u32 s{S_OUT+2}, 0x20000, s90
s_mov_b32 s{S_OUT+3}, 0x20000
"""


def gen_loader(cfg):
    L = []
    R = lambda t: L.extend(("  " + l.strip()) if not l.endswith(":") else l for l in t.strip("\n").split("\n"))
    vWQ, vX, vK, vV, vWO = 1, 2, 3, 4, 5
    R(f"""
L_loader:
s_sub_u32 s{S_W}, s{S_W}, 4
s_lshl_b32 s5, s5, 1
s_add_u32 s5, s5, s{S_ROT}
%ROT%
s_lshl_b32 s11, s{S_B}, 16      ; x offset
s_lshl_b32 s12, s{S_HP}, 9
s_mov_b32 s{S_X+2}, 0x10000
s_mov_b32 s{S_X+3}, 0x20000
s_sub_u32 s{S_WQ+2}, 0x400000, s12
s_mov_b32 s{S_WQ+3}, 0x20000
v_and_b32 v10, 63, v0
v_lshrrev_b32 v11, 4, v10               ; t = i>>4
v_bfe_u32 v12, v10, 2, 2                ; r
v_and_b32 v13, 3, v10                   ; c
v_lshlrev_b32 v14, 6, v11
v_lshl_add_u32 v15, v13, 4, v14         ; t*64 + c*16
s_and_b32 s{S_T0}, s{S_W}, 1
s_lshl_b32 s{S_T0}, s{S_T0}, 18
s_lshr_b32 s{S_T1}, s{S_W}, 1
s_lshl_b32 s{S_T1}, s{S_T1}, 8
s_add_u32 s{S_T0}, s{S_T0}, s{S_T1}
v_lshl_add_u32 v16, v12, 13, v15
v_add_u32 v{vWQ}, s{S_T0}, v16
s_lshl_b32 s{S_M8}, s{S_W}, 13
s_lshl_b32 s{S_M1}, s{S_W}, 10
v_and_b32 v16, 1, v11                   ; tq
s_and_b32 s{S_T0}, s{S_W}, 1
s_lshl_b32 s{S_T0}, s{S_T0}, 1
v_or_b32 v17, s{S_T0}, v16              ; g
v_xor_b32 v17, v17, v13
v_lshlrev_b32 v17, 4, v17
v_lshrrev_b32 v18, 1, v11               ; ch
v_lshl_add_u32 v17, v18, 6, v17
v_lshl_add_u32 v18, v16, 2, v12         ; 4tq + t3
v_lshl_add_u32 v17, v18, 10, v17
v_add_u32 v{vX}, s{S_M8}, v17           ; + 8*lw*1024
s_waitcnt lgkmcnt(0)
s_add_u32 s{S_X}, s64, s11
s_addc_u32 s{S_X+1}, s65, 0
s_add_u32 s{S_WQ}, s70, s12
s_addc_u32 s{S_WQ+1}, s71, 0
""")
    vq = []

    def issue(c):
        base = (c % 4) * SLOT
        n = 0
        if c < 8:
            R(f"s_add_u32 s{S_T0}, s{S_ROT}, {c}\ns_and_b32 s{S_T0}, s{S_T0}, 7\ns_lshl_b32 s{S_T1}, s{S_T0}, 7\ns_lshl_b32 s{S_T0}, s{S_T0}, 19")
            for p in range(2):
                R(f"s_add_u32 m0, s{S_M1}, {base + AUX + p*4096}")
                R(f"s_add_u32 s{S_T2}, s{S_T1}, {p*32768}")
                R(f"buffer_load_dwordx4 v{vX}, s[{S_X}:{S_X+3}], s{S_T2} offen {cfg.nt_w} lds")
                n += 1
            for p in range(8):
                R(f"s_add_u32 m0, s{S_M8}, {base + p*1024}")
                R(f"s_add_u32 s{S_T2}, s{S_T0}, {p*32768}")
                R(f"buffer_load_dwordx4 v{vWQ}, s[{S_WQ}:{S_WQ+3}], s{S_T2} offen {cfg.nt_w} lds")
                n += 1
        elif c < 16:
            for j in range(4):
                q = (c - 8) * 4 + j
                if q == 0:
                    kind, t = "K", 0
                elif q == 31:
                    kind, t = "V", 15
                elif q & 1:
                    kind, t = "K", (q + 1) // 2
                else:
                    kind, t = "V", q // 2 - 1
                for p in range(2):
                    R(f"s_add_u32 m0, s{S_M1}, {base + j*8192 + p*4096}")
                    if not cfg.kvrot:
                        R(f"s_mov_b32 s{S_T2}, {t*8192 + p*4096}")
                    elif p == 0:
                        R(f"s_add_u32 s{S_T2}, s{S_KVR}, {t*8192}\ns_and_b32 s{S_T2}, s{S_T2}, 0x1ffff")
                    else:
                        R(f"s_add_u32 s{S_T2}, s{S_T2}, 4096")
                    v, s = (vK, S_K) if kind == "K" else (vV, S_V)
                    R(f"buffer_load_dwordx4 v{v}, s[{s}:{s+3}], s{S_T2} offen {cfg.nt_kv} lds")
                    n += 1
        else:
            i, kh = (c - 16) >> 1, (c - 16) & 1
            R(f"s_add_u32 s{S_T0}, s{S_B}, {i}\ns_and_b32 s{S_T0}, s{S_T0}, 3\ns_lshl_b32 s{S_T0}, s{S_T0}, 8")
            R(f"s_lshr_b32 s{S_T1}, s{S_B}, 2\ns_xor_b32 s{S_T1}, s{S_T1}, {kh}\ns_lshl_b32 s{S_T1}, s{S_T1}, 17\ns_add_u32 s{S_T0}, s{S_T0}, s{S_T1}")
            for p in range(8):
                R(f"s_add_u32 m0, s{S_M8}, {base + p*1024}")
                R(f"s_add_u32 s{S_T2}, s{S_T0}, {p*4096}")
                R(f"buffer_load_dwordx4 v{vWO}, s[{S_WO}:{S_WO+3}], s{S_T2} offen {cfg.nt_w} lds")
                if cfg.pace and c >= cfg.pace0:
                    R(cfg.pace.replace(";", "\n"))
                n += 1
        vq.extend([("c", c)] * n)

    def lstamp(i):
        if cfg.lstamps:
            R(f"s_memtime s[{S_STT}:{S_STT+1}]\ns_waitcnt lgkmcnt(0)\nv_writelane_b32 v120, s{S_STT}, {i}")
    lstamp(50)
    issue(0)
    lstamp(51)
    R(rest_setup())
    if cfg.kvrot == 1:
        R(f"s_lshl_b32 s{S_KVR}, s{S_B}, 1\ns_add_u32 s{S_KVR}, s{S_KVR}, s91\ns_lshl_b32 s{S_KVR}, s{S_KVR}, 13")
    elif cfg.kvrot == 2:
        R(f"s_mul_i32 s{S_KVR}, s91, 5\ns_mul_i32 s{S_T0}, s{S_B}, 3\ns_add_u32 s{S_KVR}, s{S_KVR}, s{S_T0}\ns_lshl_b32 s{S_KVR}, s{S_KVR}, 13")
    elif cfg.kvrot == 3:
        R(f"s_lshl_b32 s{S_KVR}, s{S_B}, 1\ns_add_u32 s{S_KVR}, s{S_KVR}, s91\ns_and_b32 s{S_T0}, s{S_HP}, 1\ns_mul_i32 s{S_T0}, s{S_T0}, {cfg.kvd}\ns_add_u32 s{S_KVR}, s{S_KVR}, s{S_T0}\ns_lshl_b32 s{S_KVR}, s{S_KVR}, 13")
    R(f"""
v_lshl_add_u32 v16, v12, 8, v15
v_add_u32 v{vV}, s{S_M1}, v16
v_xor_b32 v16, s{S_W}, v13
v_lshl_add_u32 v16, v16, 4, v14
v_lshl_add_u32 v16, v12, 8, v16
v_add_u32 v{vK}, s{S_M1}, v16
v_lshl_add_u32 v16, v12, 10, v15
s_lshl_b32 s{S_T0}, s{S_W}, 15
v_add_u32 v{vWO}, s{S_T0}, v16
""")
    if cfg.plan:
        depth = [int(ch) for ch in cfg.plan]
        depth += [depth[-1]] * (24 - len(depth))
    else:
        depth = [cfg.pro - 1] + [2] * 23
        depth = [cfg.pro - 1] + [max(2, 0)] * 23
    def wait_for(*tags):
        pos = [k for k, t in enumerate(vq) if t in tags]
        if pos:
            n = len(vq) - 1 - max(pos)
            R(f"s_waitcnt vmcnt({n})")
            del vq[:max(pos) + 1]

    tl = []
    for q in range(8):
        kind, t = (("K", 0) if q == 0 else ("K", (q + 1) // 2) if q & 1 else ("V", q // 2 - 1))
        tl.append((kind, t))
    tq = [(kind, t * 8192 + j * 128) for kind, t in tl for j in range(8)]
    if cfg.touch:
        R(f"""s_and_b32 s{S_T0}, s{S_HP}, 1
s_lshl_b32 s{S_T0}, s{S_T0}, 12
s_add_u32 s{S_T0}, s{S_T0}, s{S_M1}
s_add_u32 s50, s{S_K}, s{S_T0}
s_addc_u32 s51, s{S_K+1}, 0
s_add_u32 s52, s{S_V}, s{S_T0}
s_addc_u32 s53, s{S_V+1}, 0""")
        assert cfg.kvrot == 0
    nxt = 1
    for s in range(23):
        tgt = min(23, s + depth[s])
        assert tgt <= max(3, s + 2)
        while nxt <= tgt:
            if nxt == 1 and cfg.prow >= 0:
                R(f"s_waitcnt vmcnt({cfg.prow})")
            issue(nxt)
            if s == 0:
                lstamp(51 + nxt)
            nxt += 1
        if s == 0:
            lstamp(48)
        if s < len(cfg.touch):
            for _ in range(int(cfg.touch[s], 16)):
                if tq:
                    kind, off = tq.pop(0)
                    R(f"s_load_dword s54, s[{50 if kind == 'K' else 52}:{51 if kind == 'K' else 53}], {off}")
        if s == 12:
            R(EPOCH)
        wait_for(("c", s if s < 22 else 23))
        lstamp(2 * s)
        R("s_barrier")
        if cfg.tst and s in (0, 8, 16):
            R(tstamp(cfg, s // 8) if not cfg.seq else tstamp(cfg, 6) if s == 16 else tstamp(cfg, 8 + s // 8))
        if cfg.cyc:
            if s:
                R(f"s_waitcnt lgkmcnt(0)\nv_writelane_b32 v120, s100, {2*s-2}\nv_writelane_b32 v120, s58, {2*s-1}")
            R("s_memtime s[100:101]\ns_memrealtime s[58:59]")
        lstamp(2 * s + 1)
    if not cfg.seq:
        R(f"s_cmp_eq_u32 s{S_W}, 3\ns_cbranch_scc1 L_ld_done")
    R("\n".join(handoff_addr(0, "q" if cfg.seq else "w")))
    R(f"s_lshl_b32 s{S_T1}, s{S_HP}, 9\nv_lshlrev_b32 v3, 3, v10\nv_add_u32 v3, s{S_T1}, v3")
    lstamp(46)
    if cfg.endbar:
        R("s_barrier")
    if cfg.tst:
        R(tstamp(cfg, 3))
    lstamp(47)
    R(reduce_dyn(cfg) if cfg.seq and cfg.dyn else reduce_seq(cfg) if cfg.seq else reduce_code(cfg, f"s{S_W}", "w", "l"))
    R("L_ld_done:")
    if cfg.lstamps or cfg.cyc:
        R(f"""s_waitcnt lgkmcnt(0)
v_writelane_b32 v120, s62, 49
v_writelane_b32 v120, s60, 50
s_lshl_b32 s14, s2, 2
s_add_u32 s14, s14, s{S_W}
s_lshl_b32 s14, s14, 8
s_add_u32 s14, s14, 0x2100000
s_add_u32 s{S_STT}, s74, s14
s_addc_u32 s{S_STT+1}, s75, 0
v_lshlrev_b32 v21, 2, v10
global_store_dword v21, v120, s[{S_STT}:{S_STT+1}]""")
    if cfg.tst:
        R(tst_end(cfg, 4))
    if cfg.span:
        R(span_end(cfg, 4))
    R("s_endpgm")
    return "\n".join(L) + "\n"


def gen_main(cfg):
    name = NAME + "_kernel"
    s = f""".globl {name}
.p2align 12
.p2align 8
.type {name},@function
{name}:
  s_cmp_ge_u32 s2, 256
  s_cbranch_scc1 L_exit
"""
    if cfg.stamps or cfg.lstamps or cfg.span or cfg.tst:
        s += f"  s_memrealtime s[60:61]\n  s_memtime s[62:63]\n"
    s += f"""
  s_bfe_u32 s{S_BR}, s2, 0x10002
  s_mul_i32 s5, s{S_BR}, 40
  s_add_u32 s8, s0, s5
  s_addc_u32 s9, s1, 0
  s_load_dwordx8 s[64:71], s[8:9], 0      ; x k v wq
  s_load_dwordx2 s[72:73], s[8:9], 32     ; wo
  s_load_dwordx2 s[74:75], s[0:1], 96     ; ws
  s_load_dwordx2 s[92:93], s[0:1], 80     ; out
  v_lshrrev_b32 v1, 6, v0
  s_lshr_b32 s4, s2, 3            ; slot
  s_and_b32 s{S_ROT}, s4, 1
  v_readfirstlane_b32 s{S_W}, v1
  s_and_b32 s91, s2, 3
  s_lshl_b32 s91, s91, 1
  s_add_u32 s91, s91, s{S_ROT}    ; hkv
  {f"s_lshr_b32 s{S_B}, s4, 2" if cfg.remap else f"s_bfe_u32 s{S_B}, s4, 0x30001"}   ; b
  {"s_bfe_u32 s5, s4, 0x10001" if cfg.remap else "s_lshr_b32 s5, s4, 4"}            ; half
  s_lshl_b32 s{S_HP}, s91, 1
  s_add_u32 s{S_HP}, s{S_HP}, s5  ; hp
"""
    if cfg.stamps:
        s += f"""
  s_waitcnt lgkmcnt(0)
  s_lshl_b32 s14, s2, 3
  s_add_u32 s14, s14, s{S_W}
  s_lshl_b32 s14, s14, 6
  s_add_u32 s14, s14, 0x2000000
  s_add_u32 s{S_STB}, s74, s14
  s_addc_u32 s{S_STB+1}, s75, 0
  v_mov_b32 v{V_T0}, s62
  v_mov_b32 v{V_T1}, 0
  global_store_dword v{V_T1}, v{V_T0}, s[{S_STB}:{S_STB+1}]
  v_mov_b32 v{V_T0}, s60
  v_mov_b32 v{V_T1}, 24
  global_store_dword v{V_T1}, v{V_T0}, s[{S_STB}:{S_STB+1}]
  s_waitcnt vmcnt(0)
"""
    s += f"""
  s_cmp_lt_u32 s{S_W}, 4
  s_cbranch_scc1 L_compute
"""
    s += gen_loader(cfg)
    comp = gen_compute(cfg)
    s += ".p2align 12\n" + comp
    s += "L_exit:\n  s_endpgm\nL_code_end:\n"
    s = s.replace("CODE_BYTES", "0x7f80")
    rot = {8: f"  s_lshl_b32 s5, s5, 1\n  s_add_u32 s{S_ROT}, s5, s{S_B}",
           -8: f"  s_mov_b32 s{S_ROT}, s{S_B}",
           4: f"  s_add_u32 s5, s5, s{S_B}\n  s_lshl_b32 s{S_ROT}, s5, 1",
           2: f"  s_add_u32 s5, s5, s{S_B}\n  s_lshl_b32 s{S_ROT}, s5, 2",
           1: f"  s_mov_b32 s{S_ROT}, 0"}[cfg.rot]
    s = s.replace("%ROT%", rot)
    return s


def gen_reduce(cfg):
    name = "reduce_kernel"
    s = f""".globl {name}
.p2align 8
.type {name},@function
{name}:
  s_cmp_ge_u32 s2, 256
  s_cbranch_scc1 L_rexit
  s_load_dwordx2 s[4:5], s[0:1], 96
  s_load_dwordx2 s[6:7], s[0:1], 80
  s_lshr_b32 s8, s2, 4            ; group
  s_and_b32 s9, s2, 15            ; slice
  s_lshl_b32 s10, s8, 20
  s_lshl_b32 s11, s9, 12
  s_add_u32 s10, s10, s11
  v_lshlrev_b32 v1, 4, v0
  s_mov_b32 s14, 0x100000
  s_mov_b32 s15, 0x20000
  s_mov_b32 s18, 0x100000
  s_mov_b32 s19, 0x20000
  s_waitcnt lgkmcnt(0)
  s_add_u32 s12, s4, s10
  s_addc_u32 s13, s5, 0
  s_mov_b32 s16, s6
  s_mov_b32 s17, s7
"""
    for p in range(16):
        s += f"  s_mov_b32 s20, {p*65536}\n  buffer_load_dwordx4 v[{16+4*p}:{19+4*p}], v1, s[12:15], s20 offen {cfg.red_pol}\n"
    s += """
  s_and_b32 s20, s8, 7
  s_lshl_b32 s20, s20, 17
  s_lshr_b32 s21, s8, 3
  s_lshl_b32 s21, s21, 10
  s_add_u32 s20, s20, s21
  s_and_b32 s21, s9, 1
  s_lshl_b32 s21, s21, 16
  s_add_u32 s20, s20, s21
  s_lshr_b32 s21, s9, 1
  s_lshl_b32 s21, s21, 7
  s_add_u32 s20, s20, s21
  v_and_b32 v2, 31, v0
  v_lshlrev_b32 v2, 11, v2
  v_lshrrev_b32 v3, 5, v0
  v_lshl_add_u32 v2, v3, 4, v2
  s_mov_b32 s22, 0xffff0000
"""
    for p in range(16):
        s += f"  s_waitcnt vmcnt({15-p})\n"
        for j in range(4):
            r = 16 + 4 * p + j
            if p == 0:
                s += f"  v_lshlrev_b32 v{4+2*j}, 16, v{r}\n  v_and_b32 v{5+2*j}, s22, v{r}\n"
            else:
                s += f"  v_lshlrev_b32 v12, 16, v{r}\n  v_and_b32 v13, s22, v{r}\n  v_add_f32 v{4+2*j}, v12, v{4+2*j}\n  v_add_f32 v{5+2*j}, v13, v{5+2*j}\n"
    for j in range(4):
        s += f"  v_cvt_pk_bf16_f32 v{12+j}, v{4+2*j}, v{5+2*j}\n"
    s += """  buffer_store_dwordx4 v[12:15], v2, s[16:19], s20 offen
L_rexit:
  s_endpgm
"""
    return s


def desc(name, nv, ns):
    return f""".p2align 6
.amdhsa_kernel {name}
  .amdhsa_next_free_vgpr {nv}
  .amdhsa_next_free_sgpr {ns}
  .amdhsa_accum_offset {nv}
  .amdhsa_group_segment_fixed_size 0
  .amdhsa_kernarg_size 104
  .amdhsa_user_sgpr_count 2
  .amdhsa_user_sgpr_kernarg_segment_ptr 1
  .amdhsa_system_sgpr_workgroup_id_x 1
.end_amdhsa_kernel
"""


def generate(cfg):
    ref = open("cdna_kernels/%s.s.ref" % NAME).read().split("\n")
    head = [l for l in ref if l.startswith(";") and "@launch" not in l and "Override launch" not in l and "grid=ceil" not in l]
    head = head[:14]
    s = "\n".join(head) + "\n"
    s += f"; @launch grid=(256,1,1) block=(512,1,1) lds=163840\n"
    s += '.amdgcn_target "amdgcn-amd-amdhsa--gfx950"\n.text\n'
    s += gen_main(cfg)
    s += '.section .rodata,"a"\n'
    s += desc(NAME + "_kernel", 256, 102)
    return s


def add_page_stubs(text):
    import subprocess, tempfile, os
    lines = text.split("\n")
    i0 = lines.index("L_compute:")
    i1 = lines.index("L_main_end:")
    iw = next(i for i, l in enumerate(lines) if l.strip() == "%WARM%")
    nwarm = 10
    probe = lines[:iw] + ["  s_nop 0"] * nwarm + lines[iw + 1:]
    d = tempfile.mkdtemp()
    open(d + "/p.s", "w").write("\n".join(probe))
    subprocess.check_call(["clang", "-x", "assembler", "-target", "amdgcn-amd-amdhsa", "-mcpu=gfx950", "-c", d + "/p.s", "-o", d + "/p.o"])
    dis = subprocess.check_output(["llvm-objdump", "-d", "--mcpu=gfx950", d + "/p.o"], text=True).split("\n")
    k = next(i for i, l in enumerate(dis) if l.endswith("<L_compute>:"))
    sizes = [4 * len(l.split("//")[1].split(":")[1].split()) for l in dis[k:] if "//" in l]
    out, addr, n, stubs = probe[:i0 + 1], 0, 0, []
    for l in probe[i0 + 1:i1 + nwarm - 1]:
        t = l.split(";")[0].strip()
        if t and not t.endswith(":"):
            if addr // 4096 > len(stubs):
                stubs.append(len(out))
                out.append(None)
                addr += 4
            addr += sizes[n]
            n += 1
        out.append(l)
    out += probe[i1 + nwarm - 1:]
    ns = len(stubs)
    for j, p in enumerate(stubs):
        tgt = "L_stub%d" % (j + 4) if j + 4 < ns else "L_warm_ret"
        out[p] = "L_stub%d:\n  s_cbranch_execz %s" % (j, tgt)
    warm = ["  s_mov_b64 exec, 0"]
    for w in range(4):
        warm += ["  s_cmp_eq_u32 s%d, %d" % (S_W, w), "  s_cbranch_scc1 %s" % ("L_stub%d" % w if w < ns else "L_warm_ret")]
    warm += ["L_warm_ret:\n  s_mov_b64 exec, -1"]
    out[iw:iw + nwarm] = warm
    return "\n".join(out)


if __name__ == "__main__":
    cfg = Cfg()
    out = sys.argv[1]
    for a in sys.argv[2:]:
        k, v = a.split("=")
        old = getattr(cfg, k)
        if isinstance(old, bool):
            v = v in ("1", "True", "true")
        elif isinstance(old, int):
            v = int(v)
        elif isinstance(old, float):
            v = float(v)
        else:
            v = v.replace("+", " ")
        setattr(cfg, k, v)
    txt = generate(cfg)
    if cfg.itlb:
        txt = add_page_stubs(txt)
    open(out, "w").write(txt)
```

```python
import sys, re, math

NAME = "concat_heads__gqa_block_cached__gqa_block_cached__near_ridge"
SLOT = 40960
AUX = 32768
QSCALE = math.log2(math.e) / math.sqrt(128.0)


def f2u(x):
    import struct
    return struct.unpack("<I", struct.pack("<f", x))[0]


class Cfg:
    nt_w = ""
    nt_kv = ""
    st_pol = "sc1"
    red_pol = "sc1"
    out_pol = ""
    spin = 2000000
    ST0 = 0
    kvrot = 0
    kvd = 0
    cyc = False
    prow = -1
    tlb = False
    seq = True
    dyn = False
    EB = 200
    t1 = True
    t3 = 2
    pk = True
    touch = ''
    part1 = 10
    FL0 = 90
    FL1 = 122
    endbar = True
    psleep = 0
    remap = True
    span = False
    tst = False
    itlb = True
    STS = 4
    stmode = 'spread'
    prio = 0
    pace = ''
    pace0 = 19
    D1 = 7
    D2 = 7
    D3 = 8
    BL = 3
    stamps = False
    lstamps = False
    codepf = 2
    thr_log2 = 24.0
    rot = 2
    WP = 2
    dbg = ''
    verbose = False
    CAP = 4
    CAPB = 2
    BARC = 4
    MINLEAD = 3
    WL = 3
    nodrain = False
    pro = 4
    plan = '44444444456678'
    ppol = 'sc1'
    fpol = 'sc1'
    rounds = '0,1,2,3'
    khrot = False
    rst = 22
    rplan = 'g4'
    openin = 1
    openout = -1
    force_rare = False


class Stream:
    def __init__(self):
        self.lines = []
        self.dsq = []
        self.nid = 0

    def raw(self, t):
        for l in t.strip("\n").split("\n"):
            self.lines.append(l if l.endswith(":") else "  " + l.strip())

    def ds(self, t):
        if len(self.dsq) >= 15:
            self.lines.append("  s_waitcnt lgkmcnt(11)")
            self.dsq = self.dsq[-11:]
        self.nid += 1
        self.dsq.append(self.nid)
        self.lines.append("  " + t)
        return self.nid

    def need(self, ids):
        pos = [self.dsq.index(i) for i in ids if i in self.dsq]
        if not pos:
            return
        p = max(pos)
        n = len(self.dsq) - 1 - p
        self.lines.append("  s_waitcnt lgkmcnt(%d)" % n)
        self.dsq = self.dsq[p + 1:]

    def drain(self):
        if self.dsq:
            self.lines.append("  s_waitcnt lgkmcnt(0)")
        self.dsq = []

    def text(self):
        return "\n".join(self.lines) + "\n"


def vr(a, n=1):
    return "v%d" % a if n == 1 else "v[%d:%d]" % (a, a + n - 1)


def mfma(d, a, b, c):
    cs = c if isinstance(c, str) else vr(c, 16)
    return "v_mfma_f32_32x32x16_bf16 %s, %s, %s, %s" % (vr(d, 16), vr(a, 4), vr(b, 4), cs)


V_TID = 0
V_XA0, V_XA1 = 1, 2
V_TA = 3
V_XL, V_KL = 4, 5
V_WQL, V_VL, V_WOL = 6, 7, 8
V_OW, V_OR = 9, 10
V_ST = 11
V_L, V_LT = 12, 13
V_T0, V_T1 = 14, 15
V_PF = 255
FR = 16
XF = 48
ET = 48
PK = 48
ACC = 64
QR = 128
SB = [160, 176]
PB = [192, 200]
NEGM = 208
OF = 128

S_W = 3
S_B, S_HP, S_GRP, S_BR = 6, 7, 16, 17
S_X, S_K, S_V, S_WQ, S_WO = 20, 24, 28, 32, 36
S_WS = 40
S_T0, S_T1, S_T2 = 44, 45, 46
S_M8, S_M1 = 47, 48
S_NC0 = 50
S_THR = 54
S_QS = 55
S_ROT = 49
S_KVR = 83
S_IN, S_OUT = 76, 84
S_HPO = 88
S_CNT = 89
S_STB = 56
S_STT = 58


class MF:
    def __init__(self, text, reads=None, chunk=None):
        self.text = text
        self.reads = reads or []
        self.chunk = chunk


class RG:
    def __init__(self, texts, chunk, lead=None):
        self.texts = texts
        self.chunk = chunk
        self.ids = None
        self.lead = lead


def stamp(st, cfg, idx):
    if not cfg.stamps:
        return
    st_l = []
    st_l.append("s_memtime s[%d:%d]" % (S_STT, S_STT + 1))
    st_l.append("s_waitcnt lgkmcnt(0)")
    st_l.append("v_mov_b32 v%d, s%d" % (V_T0, S_STT))
    st_l.append("v_mov_b32 v%d, %d" % (V_T1, idx * 4))
    st_l.append("global_store_dword v%d, v%d, s[%d:%d]" % (V_T1, V_T0, S_STB, S_STB + 1))
    st.dsq = []
    st.raw("\n".join(st_l))


def vcost(t):
    if isinstance(t, tuple):
        return t[1]
    if not isinstance(t, str):
        return 0
    if t.endswith(":"):
        return 0
    if t.startswith(("v_exp", "v_rcp")):
        return 8
    if t.startswith("buffer_store"):
        return 12
    return 4


def emit_schedule(st, mfs, wins, pre, shadow, cfg, D, barrier_at, addr_update, virtual=()):
    n = len(mfs)
    open_gap = {c: g for g, c in barrier_at.items()}
    rd_at, rd_gap, seen, pend = {}, {}, set(), []
    for i, m in enumerate(mfs):
        for rg in m.reads:
            if id(rg) in seen:
                continue
            seen.add(id(rg))
            lead = rg.lead if rg.lead is not None else D
            pend.append((max(i - lead, open_gap[rg.chunk]), i, rg))
    g, k = -1, 0
    while k < len(pend):
        cap = 99 if g < 0 else (cfg.CAPB if g in barrier_at else cfg.CAP)
        used = 0
        while k < len(pend) and pend[k][0] <= g and (used + len(pend[k][2].texts) <= cap or pend[k][1] - g <= cfg.MINLEAD):
            rg = pend[k][2]
            rd_at.setdefault(g, []).append(rg)
            rd_gap[id(rg)] = g
            used += len(rg.texts)
            k += 1
        g += 1
    for _, i, rg in pend:
        if rg.chunk + 1 in open_gap and not getattr(rg, "free", False):
            assert rd_gap[id(rg)] < open_gap[rg.chunk + 1], "read of chunk %d after the next barrier" % rg.chunk
    budget = {}
    for g in range(n):
        b = 24 - 4 * sum(len(rg.texts) for rg in rd_at.get(g, []))
        if g in barrier_at:
            b -= cfg.BARC
        budget[g] = b
    gaps = {}
    upd_done = set()
    for g, c in barrier_at.items():
        if g >= 0 and not cfg.nodrain:
            lo = max(gg for gg, l in rd_at.items() if gg < g and any(not getattr(r, "free", False) for r in l))
            if lo <= g - 1:
                for j, t in enumerate(addr_update(c)):
                    gg = min(g - 1, lo + 1 + j)
                    gaps.setdefault(gg, []).append(t)
                    budget[gg] -= 4
                upd_done.add(g)
    over = 0
    for ops, g0, g1 in wins:
        g = g0
        for o in ops:
            c = vcost(o)
            while g <= g1 and budget[g] < c:
                g += 1
            if g > g1:
                pre.setdefault(g1 + 1, []).append(o)
                over += c
            else:
                gaps.setdefault(g, []).append(o)
                budget[g] -= c
    if cfg.verbose:
        print("window overflow cycles", over, "over-budget gaps", [(g, b) for g, b in budget.items() if b < 0], file=sys.stderr)
    for g in sorted(k for k in rd_at if k < 0):
        if g in barrier_at:
            st.drain()
            st.raw("s_barrier")
            for t in addr_update(barrier_at[g]):
                st.raw(t)
        for rg in rd_at[g]:
            rg.ids = [st.ds(t) for t in rg.texts]

    def emit(t):
        if isinstance(t, tuple):
            st.ds(t[0])
        elif callable(t):
            t()
        else:
            st.raw(t)

    for i, m in enumerate(mfs):
        for t in pre.get(i, []):
            emit(t)
        ids = []
        for rg in m.reads:
            assert rg.ids is not None, "read not issued before use at mfma %d" % i
            ids += rg.ids
        st.need(ids)
        st.raw(m.text)
        if i in shadow:
            for t in shadow[i]:
                emit(t)
        if i in barrier_at:
            if barrier_at[i] not in virtual:
                if not cfg.nodrain:
                    st.drain()
                st.raw("s_barrier")
            if i not in upd_done:
                for t in addr_update(barrier_at[i]):
                    st.raw(t)
        elif i not in shadow:
            ids = []
            for j in range(i + 1, min(n, i + 3)):
                for rg in mfs[j].reads:
                    if rg.ids is not None and (j == i + 1 or j - 1 in shadow or rd_gap[id(rg)] <= i - cfg.WL):
                        ids += rg.ids
            st.need(ids)
        for rg in rd_at.get(i, []):
            rg.ids = [st.ds(t) for t in rg.texts]
        for t in gaps.get(i, []):
            emit(t)


def kv_items(cfg):
    items = [("K", 0)]
    for t in range(1, 16):
        items += [("K", t), ("V", t - 1)]
    items.append(("V", 15))
    return items


def softmax_ops(t, sub_first):
    S = SB[t & 1]
    P = PB[t & 1]
    ops = []
    e = lambda i: ET + (i % 8)
    seq = []
    for i in range(16):
        if sub_first:
            seq.append(("b", i))
        seq.append(("e", i))
    out = []
    pend = []
    for k, i in seq:
        if k == "b":
            out.append("v_add_f32 v%d, v%d, v%d" % (S + i, NEGM, S + i))
            continue
        out.append("v_exp_f32 v%d, v%d" % (e(i), S + i))
        j = i - 1
        if j >= 1:
            if j == 1:
                out.append("v_add_f32 v%d, v%d, v%d" % (V_LT, e(0), e(1)))
            else:
                out.append("v_add_f32 v%d, v%d, v%d" % (V_LT, e(j), V_LT))
            if j & 1:
                out.append("v_cvt_pk_bf16_f32 v%d, v%d, v%d" % (P + j // 2, e(j - 1), e(j)))
    out.append("v_add_f32 v%d, v%d, v%d" % (V_LT, e(15), V_LT))
    out.append("v_cvt_pk_bf16_f32 v%d, v%d, v%d" % (P + 7, e(14), e(15)))
    return out


def rare_path(t):
    S = SB[t & 1]
    S2 = SB[(t + 1) & 1]
    L = ["L_rare%d:" % t, "s_nop 15", "s_nop 3"]
    L.append("v_max3_f32 v%d, v%d, v%d, v%d" % (V_T0, S, S + 1, S + 2))
    for i in range(3, 15, 2):
        L.append("v_max3_f32 v%d, v%d, v%d, v%d" % (V_T0, V_T0, S + i, S + i + 1))
    L.append("v_max3_f32 v%d, v%d, v%d, 0" % (V_T0, V_T0, S + 15))
    L.append("v_mov_b32 v%d, v%d" % (V_T1, V_T0))
    L.append("s_nop 1")
    L.append("v_permlane32_swap_b32 v%d, v%d" % (V_T0, V_T1))
    L.append("v_max_f32 v%d, v%d, v%d" % (V_T0, V_T0, V_T1))
    L.append("v_sub_f32 v%d, 0, v%d" % (V_T1, V_T0))
    L.append("v_exp_f32 v%d, v%d" % (V_T1, V_T1))
    for i in range(16):
        L.append("v_sub_f32 v%d, v%d, v%d" % (NEGM + i, NEGM + i, V_T0))
        L.append("v_sub_f32 v%d, v%d, v%d" % (S + i, S + i, V_T0))
        if t < 15:
            L.append("v_sub_f32 v%d, v%d, v%d" % (S2 + i, S2 + i, V_T0))
    L.append("v_mul_f32 v%d, v%d, v%d" % (V_L, V_L, V_T1))
    for i in range(64):
        L.append("v_mul_f32 v%d, v%d, v%d" % (ACC + i, ACC + i, V_T1))
    L += softmax_ops(t, False)
    L.append("s_nop 1")
    L.append("s_branch L_back%d" % t)
    return L


S_EP = 80
EPOCH = f"""
s_waitcnt lgkmcnt(0)
s_mul_i32 s{S_EP+2}, s{S_EP+2}, 1664525
s_add_u32 s{S_EP+2}, s{S_EP+2}, 1013904223
"""
EPOCH_NEXT = f"""s_or_b32 s{S_T0}, s{S_HP}, s{S_W}
s_cmp_lg_u32 s{S_T0}, 0
s_cbranch_scc1 L_noep
v_mov_b32 v12, 0
global_store_dword v12, v6, s[{S_EP}:{S_EP+1}]
L_noep:
"""
H_FL, H_TAG, H_PL, H_RD, H_OUT = 1, 6, 4, 5, 2


def handoff_addr(i, mode):
    o = f"""
v_and_b32 v12, 63, v0
s_lshl_b32 s{S_T1}, s{S_W}, 11
s_lshl_b32 s{S_T2}, s{S_HP}, 3
s_add_u32 s{S_T1}, s{S_T1}, s{S_T2}
v_lshlrev_b32 v13, 9, v12
v_add_u32 v13, s{S_T1}, v13
v_mov_b32 v14, 0x7fff0000
v_cmp_gt_u32 vcc, 4, v12
v_mov_b32 v{H_TAG}, s{S_EP+2}
s_lshl_b32 s{S_T1}, s{S_HP}, 9
v_cndmask_b32 v{H_FL}, v14, v13, vcc
v_not_b32 v{H_TAG+1}, v{H_TAG}
v_and_b32 v13, 15, v12
v_lshlrev_b32 v14, 3, v13
v_add_u32 v{H_PL}, s{S_T1}, v14
s_lshr_b32 s{S_T1}, s{S_HP}, 1
s_lshl_b32 s{S_T1}, s{S_T1}, 11
s_and_b32 s{S_T2}, s{S_HP}, 1
s_lshl_b32 s{S_T2}, s{S_T2}, 8
s_add_u32 s{S_T1}, s{S_T1}, s{S_T2}
v_lshrrev_b32 v14, 4, v12
"""
    if mode == "q":
        o += f"""
s_lshl_b32 s{S_T2}, s{S_W}, 6
s_add_u32 s{S_T1}, s{S_T1}, s{S_T2}
v_lshlrev_b32 v15, 9, v14
v_lshl_add_u32 v15, v13, 2, v15
v_add_u32 v{H_RD}, s{S_T1}, v15
v_lshrrev_b32 v15, 2, v13
v_lshlrev_b32 v15, 11, v15
v_lshl_add_u32 v15, v14, 4, v15
v_and_b32 v13, 3, v13
v_lshl_add_u32 v15, v13, 2, v15
s_lshl_b32 s{S_T2}, s{S_W}, 13
"""
    else:
        o += f"""
v_lshlrev_b32 v15, 9, v14
v_lshl_add_u32 v15, v13, 4, v15
v_add_u32 v{H_RD}, s{S_T1}, v15
v_lshlrev_b32 v15, 11, v13
v_lshl_add_u32 v15, v14, 4, v15
s_mov_b32 s{S_T2}, 0
"""
    o += f"""
s_and_b32 s{S_T1}, s{S_HP}, 3
s_lshl_b32 s{S_T1}, s{S_T1}, 15
s_add_u32 s{S_T2}, s{S_T2}, s{S_T1}
s_lshr_b32 s{S_T1}, s{S_HP}, 2
s_lshl_b32 s{S_T1}, s{S_T1}, 6
s_add_u32 s{S_T2}, s{S_T2}, s{S_T1}
v_add_u32 v{H_OUT}, s{S_T2}, v15
"""
    return [l.strip() for l in o.strip().split("\n") if l.strip()]


def reduce_code(cfg, i, mode, tag):
    nd = 1 if mode == "q" else 4
    B = 16
    if isinstance(i, int):
        o = f"s_mov_b32 s{S_T0}, {i}\n"
    else:
        o = f"s_mov_b32 s{S_T0}, {i}\n"
    o += f"""
s_lshl_b32 s{S_T1}, s{S_T0}, 7
s_mov_b32 s{S_CNT}, 0
L_poll_{tag}:
buffer_load_dwordx2 v[12:13], v{H_PL}, s[{S_IN}:{S_IN+3}], s{S_T1} offen sc1
s_add_u32 s{S_CNT}, s{S_CNT}, 1
s_cmp_gt_u32 s{S_CNT}, {cfg.spin}
s_cbranch_scc1 L_go_{tag}
{"s_sleep %d" % cfg.psleep if cfg.psleep and tag == "l" else ""}
s_waitcnt vmcnt(0)
v_cmp_ne_u64 vcc, v[12:13], v[{H_TAG}:{H_TAG+1}]
s_cbranch_vccnz L_poll_{tag}
L_go_{tag}:
{tstamp(cfg, 4)}
s_lshl_b32 s{S_T1}, s{S_T0}, 14
"""
    sfx = "dword" if nd == 1 else "dwordx4"
    for p in range(16):
        o += f"buffer_load_{sfx} {vr(B + nd*p, nd)}, v{H_RD}, s[{S_WS}:{S_WS+3}], s{S_T1} offen {cfg.red_pol}\n"
        if p < 15:
            o += f"s_add_u32 s{S_T1}, s{S_T1}, 0x10000\n"
    o += f"""
s_add_u32 s{S_T0}, s{S_T0}, s{S_B}
s_and_b32 s{S_T0}, s{S_T0}, 3
s_lshl_b32 s{S_T0}, s{S_T0}, 8
s_mov_b32 s{S_T2}, 0xffff0000
"""
    A = B + 16 * nd
    for p in range(16):
        o += f"s_waitcnt vmcnt({15-p})\n"
        for j in range(nd):
            r = B + nd * p + j
            if p == 0:
                o += f"v_lshlrev_b32 v{A+2*j}, 16, v{r}\nv_and_b32 v{A+2*j+1}, s{S_T2}, v{r}\n"
            else:
                o += f"v_lshlrev_b32 v12, 16, v{r}\nv_and_b32 v13, s{S_T2}, v{r}\nv_add_f32 v{A+2*j}, v12, v{A+2*j}\nv_add_f32 v{A+2*j+1}, v13, v{A+2*j+1}\n"
    o += tstamp(cfg, 5) + "\n"
    for j in range(nd):
        o += f"v_cvt_pk_bf16_f32 v{12+j}, v{A+2*j}, v{A+2*j+1}\n"
    o += f"buffer_store_{sfx} {vr(12, nd)}, v{H_OUT}, s[{S_OUT}:{S_OUT+3}], s{S_T0} offen {cfg.out_pol}\n"
    return o


def reduce_dyn(cfg):
    B, A = 16, 80
    S_TODO, S_NOW = 94, 95
    poll = f"buffer_load_dwordx2 v[8:9], v3, s[{S_IN}:{S_IN+3}], 0 offen {cfg.ppol}\n"
    o = f"""s_mov_b32 s{S_T2}, 0xffff0000
s_mov_b32 s{S_TODO}, 15
s_mov_b32 s{S_CNT}, 0
{poll}s_waitcnt vmcnt(0)
L_dyn:
v_cmp_ne_u64 vcc, v[8:9], v[{H_TAG}:{H_TAG+1}]
s_add_u32 s{S_CNT}, s{S_CNT}, 1
s_cmp_gt_u32 s{S_CNT}, {cfg.spin}
s_cselect_b64 vcc, 0, vcc
s_mov_b32 s{S_NOW}, 0
"""
    for i in range(4):
        half = "vcc_lo" if i < 2 else "vcc_hi"
        o += f"""s_bitcmp1_b32 s{S_TODO}, {i}
s_cbranch_scc0 L_dn{i}
s_bfe_u32 s{S_T0}, {half}, {hex(0x100000 + 16*(i & 1))}
s_cbranch_scc1 L_dn{i}
s_bitset1_b32 s{S_NOW}, {i}
{tstamp(cfg, (4, 0, 1, 2)[i])}
s_mov_b32 s{S_T1}, {i*16384}
{"s_waitcnt vmcnt(46)" if i == 3 else ""}
"""
        for p in range(16):
            o += f"buffer_load_dword v{B+16*i+p}, v{H_RD}, s[{S_WS}:{S_WS+3}], s{S_T1} offen {cfg.red_pol}\n"
            if p < 15:
                o += f"s_add_u32 s{S_T1}, s{S_T1}, 0x10000\n"
        o += f"L_dn{i}:\n"
    o += f"""s_andn2_b32 s{S_TODO}, s{S_TODO}, s{S_NOW}
s_cbranch_scc0 L_dnp
{poll}L_dnp:
s_waitcnt vmcnt(0)
"""
    for i in range(4):
        o += f"s_bitcmp1_b32 s{S_NOW}, {i}\ns_cbranch_scc0 L_ds{i}\n"
        o += f"s_add_u32 s{S_T0}, s{S_B}, {i}\ns_and_b32 s{S_T0}, s{S_T0}, 3\ns_lshl_b32 s{S_T0}, s{S_T0}, 8\n"
        r = B + 16 * i
        o += f"v_lshlrev_b32 v{A}, 16, v{r}\nv_and_b32 v{A+1}, s{S_T2}, v{r}\n"
        for p in range(1, 16):
            o += f"v_lshlrev_b32 v12, 16, v{r+p}\nv_and_b32 v13, s{S_T2}, v{r+p}\nv_add_f32 v{A}, v12, v{A}\nv_add_f32 v{A+1}, v13, v{A+1}\n"
        o += f"v_cvt_pk_bf16_f32 v{A+2+i}, v{A}, v{A+1}\n"
        o += f"buffer_store_dword v{A+2+i}, v{H_OUT}, s[{S_OUT}:{S_OUT+3}], s{S_T0} offen {cfg.out_pol}\nL_ds{i}:\n"
    o += f"""s_cmp_lg_u32 s{S_TODO}, 0
s_cbranch_scc1 L_dyn
{tstamp(cfg, 5)}
"""
    o += EPOCH_NEXT
    return o


def reduce_seq(cfg):
    B, A = 16, 80
    rounds = [[int(ch) for ch in r] for r in cfg.rounds.split(",")]
    o = f"s_mov_b32 s{S_T2}, 0xffff0000\n"
    poll = lambda r: f"buffer_load_dwordx2 v[8:9], v{H_PL if len(r) == 1 else 3}, s[{S_IN}:{S_IN+3}], 0 offen offset:{128*r[0]} {cfg.ppol}\n"
    o += poll(rounds[0]) + "s_waitcnt vmcnt(0)\n"
    for n, r in enumerate(rounds):
        o += f"""s_mov_b32 s{S_CNT}, 0
L_sp{n}:
v_cmp_ne_u64 vcc, v[8:9], v[{H_TAG}:{H_TAG+1}]
s_cbranch_vccz L_sg{n}
{poll(r)}s_add_u32 s{S_CNT}, s{S_CNT}, 1
s_cmp_lt_u32 s{S_CNT}, {cfg.spin}
s_waitcnt vmcnt(0)
s_cbranch_scc1 L_sp{n}
L_sg{n}:
"""
        for i in r:
            o += tstamp(cfg, (4, 0, 1, 2)[i]) + f"\ns_mov_b32 s{S_T1}, {i*16384}\n"
            for p in range(16):
                o += f"buffer_load_dword v{B+16*i+p}, v{H_RD}, s[{S_WS}:{S_WS+3}], s{S_T1} offen {cfg.red_pol}\n"
                if p < 15:
                    o += f"s_add_u32 s{S_T1}, s{S_T1}, 0x10000\n"
        k = 0
        if n + 1 < len(rounds):
            o += poll(rounds[n + 1])
            k = 1
        left = 16 * len(r) + k
        for i in r:
            o += f"s_add_u32 s{S_T0}, s{S_B}, {i}\ns_and_b32 s{S_T0}, s{S_T0}, 3\ns_lshl_b32 s{S_T0}, s{S_T0}, 8\n"
            for p in range(16):
                left -= 1
                o += f"s_waitcnt vmcnt({left})\n"
                q = B + 16 * i + p
                if p == 0:
                    o += f"v_lshlrev_b32 v{A}, 16, v{q}\nv_and_b32 v{A+1}, s{S_T2}, v{q}\n"
                else:
                    o += f"v_lshlrev_b32 v12, 16, v{q}\nv_and_b32 v13, s{S_T2}, v{q}\nv_add_f32 v{A}, v12, v{A}\nv_add_f32 v{A+1}, v13, v{A+1}\n"
            o += f"v_cvt_pk_bf16_f32 v{A+2+i}, v{A}, v{A+1}\ns_mov_b32 s{50+i}, s{S_T0}\n"
        if k:
            o += "s_waitcnt vmcnt(0)\n"
        else:
            o += tstamp(cfg, 5) + "\n"
        for i in r:
            o += f"buffer_store_dword v{A+2+i}, v{H_OUT}, s[{S_OUT}:{S_OUT+3}], s{50+i} offen {cfg.out_pol}\n"
    o += EPOCH_NEXT
    return o


REG = re.compile(r"v\[(\d+):(\d+)\]|v(\d+)")


def regs_of(tok):
    m = REG.fullmatch(tok.strip().lstrip("-"))
    if not m:
        return set()
    if m.group(3):
        return {int(m.group(3))}
    return set(range(int(m.group(1)), int(m.group(2)) + 1))


def parse(line):
    l = line.split(";")[0].strip()
    if not l or l.endswith(":") or l.startswith("."):
        return None
    op, _, rest = l.partition(" ")
    toks = [t.strip() for t in rest.split(",")] if rest else []
    toks = [t.split(" ")[0] for t in toks]
    rd, wr = set(), set()
    if op.startswith("v_cmp"):
        for t in toks[1:]:
            rd |= regs_of(t)
    elif op.startswith("v_permlane"):
        rd = wr = regs_of(toks[0]) | regs_of(toks[1])
    elif op.startswith(("v_readfirstlane", "v_readlane")):
        rd = regs_of(toks[1])
    elif op.startswith("v_"):
        wr = regs_of(toks[0])
        for t in toks[1:]:
            rd |= regs_of(t)
        if op.startswith(("v_fmac", "v_writelane")):
            rd |= wr
    elif op.startswith("ds_read"):
        wr = regs_of(toks[0]); rd = regs_of(toks[1])
    elif op.startswith("ds_write"):
        rd = regs_of(toks[0]) | regs_of(toks[1])
    elif op.startswith(("buffer_store", "buffer_atomic", "global_store", "global_atomic")):
        for t in toks:
            rd |= regs_of(t)
    elif op.startswith(("buffer_load", "global_load")):
        if "lds" in l.split():
            rd = regs_of(toks[0])
        else:
            wr = regs_of(toks[0]); rd = regs_of(toks[1])
    return op, rd, wr, toks


def fix_hazards(lines):
    out = []
    hist = []
    t = 0
    last_mf = -100
    for line in lines:
        p = parse(line)
        if p is None:
            out.append(line)
            continue
        op, rd, wr, toks = p
        is_mf = op.startswith("v_mfma")
        is_valu = op.startswith("v_") and not is_mf
        is_mem = op.startswith(("ds_", "buffer_", "global_"))
        need = 0
        tt = max(t, last_mf + 8) if is_mf else t
        dist = 0
        for (o2, r2, w2, k2, st2, t2) in reversed(hist[-40:]):
            m2 = o2.startswith("v_mfma")
            v2 = o2.startswith("v_") and not m2
            req = 0
            d = dist
            if v2 and o2.startswith(("v_exp", "v_rcp", "v_log", "v_rsq")) and is_valu and not op.startswith(("v_exp", "v_rcp")) and (w2 & rd):
                req = 1
            if v2 and is_mf and (w2 & rd):
                req = 2
            if v2 and op.startswith("v_permlane") and (w2 & rd):
                req = 2
            if v2 and op.startswith(("v_readfirstlane", "v_readlane")) and (w2 & rd):
                req = 1
            if o2.startswith(("buffer_store_dwordx4", "global_store_dwordx4")) and is_valu and (regs_of(k2[0] if o2.startswith("buffer") else k2[1]) & wr):
                req = 2
            if m2 and (is_valu or is_mem) and (w2 & (rd | wr)):
                req = 12
                d = tt - t2 - 1
            if m2 and is_mf and (w2 & (regs_of(toks[1]) | regs_of(toks[2]))):
                req = 12
                d = tt - t2 - 1
            if m2 and is_mf and (w2 & regs_of(toks[3])) and regs_of(toks[3]) != w2:
                req = 10
                d = tt - t2 - 1
            if m2 and is_valu and (regs_of(k2[3]) & wr):
                req = max(req, 7)
                d = tt - t2 - 1
            if req > d:
                need = max(need, req - d)
            dist += st2
        while need > 0:
            k = min(need, 16)
            out.append("  s_nop %d" % (k - 1))
            hist.append(("s_nop", set(), set(), [], k, t))
            t += k
            need -= k
        tt = max(t, last_mf + 8) if is_mf else t
        st_ = int(toks[0]) + 1 if op == "s_nop" else 1
        hist.append((op, rd, wr, toks, st_, tt))
        t = tt + st_
        if is_mf:
            last_mf = tt
        out.append(line)
    return out


TS = [4, 8, 10, 64, 66, 68, 70, 72, 96, 98]


def tstamp(cfg, k):
    return f"s_memrealtime s[{TS[k]}:{TS[k]+1}]" if cfg.tst else ""


def tst_end(cfg, base):
    o = f"""s_waitcnt vmcnt(0)
{tstamp(cfg, 7)}
s_lshl_b32 s14, s2, 3
s_add_u32 s14, s14, s{S_W}
s_add_u32 s14, s14, {base}
s_lshl_b32 s14, s14, 6
s_add_u32 s14, s14, 0x2300000
s_add_u32 s12, s74, s14
s_addc_u32 s13, s75, 0
s_waitcnt lgkmcnt(0)
v_mov_b32 v14, 0
"""
    for k in range(8):
        o += f"v_mov_b32 v{16+k}, s{TS[k]}\n"
    o += f"""v_mov_b32 v24, s60
v_mov_b32 v25, s{S_CNT}
global_store_dwordx4 v14, v[16:19], s[12:13]
global_store_dwordx4 v14, v[20:23], s[12:13] offset:16
v_mov_b32 v26, s96
v_mov_b32 v27, s98
global_store_dwordx4 v14, v[24:27], s[12:13] offset:32
"""
    return o


def span_end(cfg, base):
    if not cfg.span:
        return ""
    return f"""s_waitcnt vmcnt(0)
s_memrealtime s[{S_STT}:{S_STT+1}]
s_lshl_b32 s14, s2, 3
s_add_u32 s14, s14, s{S_W}
s_lshl_b32 s14, s14, 3
s_add_u32 s14, s14, {0x2200000 + base*8}
s_add_u32 s12, s74, s14
s_addc_u32 s13, s75, 0
s_waitcnt lgkmcnt(0)
v_mov_b32 v12, s60
v_mov_b32 v13, s{S_STT}
v_mov_b32 v14, 0
global_store_dwordx2 v14, v[12:13], s[12:13]
"""


def gen_compute(cfg):
    st = Stream()
    R = st.raw
    R("""
L_compute:
v_and_b32 v%(ln)d, 63, v0
""" % dict(ln=V_T0))
    ln = V_T0
    t1 = V_T1
    R("s_waitcnt lgkmcnt(0)")
    R(rest_setup())
    if cfg.tlb:
        R(f"""s_load_dword s96, s[{S_K}:{S_K+1}], 0
s_load_dword s96, s[{S_V}:{S_V+1}], 0
s_load_dword s96, s[{S_WO}:{S_WO+1}], 0
s_load_dword s96, s[{S_WS}:{S_WS+1}], s{S_HPO}
s_load_dword s96, s[{S_OUT}:{S_OUT+1}], 0""")
    if cfg.codepf == 2:
        R(f"""
s_getpc_b64 s[94:95]
s_lshr_b32 s{S_T0}, s2, 3
s_lshl_b32 s{S_T0}, s{S_T0}, 2
s_add_u32 s{S_T0}, s{S_T0}, s{S_W}
s_lshl_b32 s{S_T0}, s{S_T0}, 7
s_load_dword s96, s[94:95], s{S_T0}
s_lshr_b32 s{S_T0}, s{S_T0}, 2
s_add_u32 s{S_T0}, s{S_T0}, 0x4000
s_load_dword s97, s[94:95], s{S_T0}
""")
    if cfg.codepf == 1:
        R("""
s_getpc_b64 s[%d:%d]
s_sub_u32 s44, s44, 0x1800
s_subb_u32 s45, s45, 0
v_lshlrev_b32 v16, 7, v0
v_min_u32 v16, CODE_BYTES, v16
global_load_dword v255, v16, s[%d:%d]
""" % (S_T0, S_T0 + 1, S_T0, S_T0 + 1))
    R(f"""
v_lshrrev_b32 v18, 5, v{ln}              ; h
v_bfe_u32 v19, v{ln}, 2, 2
v_xor_b32 v20, v18, v19                  ; h^g
v_lshlrev_b32 v20, 4, v20
v_and_b32 v21, 3, v{ln}
v_lshl_add_u32 v20, v21, 6, v20          ; (key&3)*64 + (h^g)*16
v_bfe_u32 v22, v{ln}, 2, 3               ; key>>2
v_lshl_add_u32 v{V_KL}, v22, 10, v20
v_bfe_u32 v22, v{ln}, 3, 2               ; tok>>3
v_lshl_add_u32 v23, v22, 10, v20
v_bfe_u32 v22, v{ln}, 2, 1
v_lshl_add_u32 v23, v22, 8, v23
s_and_b32 s{S_T0}, s{S_W}, 1
s_lshl_b32 s{S_T0}, s{S_T0}, 12
s_add_u32 s{S_T0}, s{S_T0}, {AUX}
v_add_u32 v{V_XL}, s{S_T0}, v23
v_bfe_u32 v22, v{ln}, 4, 1               ; G&1
v_lshlrev_b32 v22, 5, v22
v_lshl_add_u32 v22, v19, 6, v22          ; r*64 + (G&1)*32
v_lshl_add_u32 v23, v21, 3, v22          ; + c4*8
v_lshl_add_u32 v{V_VL}, v18, 10, v23
v_and_b32 v23, 1, v21
v_lshrrev_b32 v24, 1, v21
v_lshl_add_u32 v23, v23, 1, v24          ; bitswap(c4)
v_lshl_add_u32 v23, v23, 3, v22
s_lshr_b32 s{S_T0}, s{S_W}, 1
s_lshl_b32 s{S_T0}, s{S_T0}, 14
v_lshl_add_u32 v24, v18, 11, v23
v_add_u32 v{V_WQL}, s{S_T0}, v24
s_lshl_b32 s{S_T0}, s{S_W}, 8
v_lshl_add_u32 v24, v18, 10, v23
v_add_u32 v{V_WOL}, s{S_T0}, v24
s_mul_i32 s{S_T0}, s{S_W}, {SLOT}
s_add_u32 s{S_T0}, s{S_T0}, {AUX}
v_lshlrev_b32 v24, 4, v{ln}
v_add_u32 v{V_OW}, s{S_T0}, v24
{f"s_lshr_b32 s{S_T0}, s{S_B}, 2" if cfg.khrot else f"s_mov_b32 s{S_T0}, 0"}            ; first head
s_mul_i32 s{S_T0}, s{S_T0}, {2*SLOT}
s_add_u32 s{S_T0}, s{S_T0}, {AUX}
v_add_u32 v{V_OR}, s{S_T0}, v24          ; O read (first head, th=0)
s_lshl_b32 s{S_T0}, s{S_W}, 12
v_add_u32 v{V_ST}, s{S_T0}, v24          ; partial store voffset: w*4096 + lane*16
s_mov_b32 s{S_THR}, {hex(f2u(2.0**cfg.thr_log2 if not cfg.force_rare else 4.0))}
s_mov_b32 s{S_QS}, {hex(f2u(QSCALE))}
v_mov_b32 v{V_L}, 0
""")
    R(EPOCH)
    if cfg.prio:
        R(f"s_setprio {cfg.prio}")
    if cfg.itlb:
        R("%WARM%")
    stamp(st, cfg, 1)

    def addr_update(c):
        base = (c % 4) * SLOT
        if c < 8:
            return [f"v_add_u32 v{V_XA0}, {base}, v{V_XL}", f"v_add_u32 v{V_TA}, {base}, v{V_WQL}",
                    f"v_xor_b32 v{V_XA1}, 32, v{V_XA0}"]
        if c < 16:
            return [f"v_add_u32 v{V_XA0}, {base}, v{V_KL}", f"v_add_u32 v{V_TA}, {base}, v{V_VL}",
                    f"v_xor_b32 v{V_XA1}, 32, v{V_XA0}"]
        return [f"v_add_u32 v{V_TA}, {base}, v{V_WOL}"]

    fr_i = [0]

    def next_frag():
        f = FR + 4 * (fr_i[0] % 8)
        fr_i[0] += 1
        return f

    def tr_pair(f, off0, off1, chunk, lead=None):
        return RG([f"ds_read_b64_tr_b16 {vr(f,2)}, v{V_TA} offset:{off0}",
                   f"ds_read_b64_tr_b16 {vr(f+2,2)}, v{V_TA} offset:{off1}"], chunk, lead)

    mfs, wins, pre, shadow, bar = [], [], {}, {}, {}
    xi = 0
    for c in range(8):
        bar[len(mfs) - 1 - cfg.BL if c else -1] = c
        xr = []
        for s in range(4):
            xf = XF + 4 * (xi % 4)
            xi += 1
            xr.append((xf, RG([f"ds_read_b128 {vr(xf,4)}, v{V_XA0 + (s & 1)} offset:{(s >> 1) * 512}"], c, cfg.D1)))
        order = [(s, t) for s in range(4) for t in range(4)]
        if c == 7 and cfg.t1:
            order = [(s, t) for t in range(4) for s in range(4)]
        for s, t in order:
            f = next_frag()
            rg = tr_pair(f, (4 * s) * 1024 + t * 256, (4 * s + 1) * 1024 + t * 256, c, cfg.D1)
            cin = "0" if (c == 0 and s == 0) else ACC + 16 * t
            mfs.append(MF(mfma(ACC + 16 * t, f, xr[s][0], cin), [xr[s][1], rg], c))
    n1 = len(mfs)
    pre[n1] = [lambda: stamp(st, cfg, 2)] + (["s_waitcnt vmcnt(0)"] if cfg.codepf == 1 else [])
    for h in range(8):
        ops = [f"v_mul_f32 v{ACC+8*h+i}, s{S_QS}, v{ACC+8*h+i}" for i in range(8)]
        ops += [f"v_cvt_pk_bf16_f32 v{QR+4*h+i}, v{ACC+8*h+2*i}, v{ACC+8*h+2*i+1}" for i in range(4)]
        if cfg.t1:
            wins.append((ops, n1 - 16 + 4 * (h >> 1) + 5, n1 + h - 1))
        else:
            pre[n1] += ops
    items = kv_items(cfg)
    start = {}
    for q, (kind, t) in enumerate(items):
        c = 8 + (q >> 2)
        tb = (q & 3) * 8192
        if (q & 3) == 0:
            bar[len(mfs) - 1 - cfg.BL] = c
        start[(kind, t)] = len(mfs)
        if kind == "K":
            S = SB[t & 1]
            for s in range(8):
                f = next_frag()
                rg = RG([f"ds_read_b128 {vr(f,4)}, v{V_XA0 + (s & 1)} offset:{tb + (s >> 1) * 256}"], c, cfg.D2)
                cin = S if s else ("0" if t < 2 else NEGM)
                mfs.append(MF(mfma(S, f, QR + 4 * s, cin), [rg], c))
        else:
            order = [(u, d) for u in range(2) for d in range(4)]
            if t == 15 and cfg.t3:
                order = [(u, d) for d in range(4) for u in range(2)]
            for u, d in order:
                if True:
                    f = next_frag()
                    rg = tr_pair(f, tb + (4 * u) * 1024 + d * 256, tb + (4 * u + 2) * 1024 + d * 256, c, cfg.D2)
                    cin = "0" if (t == 0 and u == 0) else ACC + 16 * d
                    mfs.append(MF(mfma(ACC + 16 * d, f, PB[t & 1] + 4 * u, cin), [rg], c))
    S = SB[0]
    ops0 = ["v_max3_f32 v%d, v%d, v%d, v%d" % (V_T0, S, S + 1, S + 2)]
    for i in range(3, 15, 2):
        ops0.append("v_max3_f32 v%d, v%d, v%d, v%d" % (V_T0, V_T0, S + i, S + i + 1))
    ops0.append("v_max_f32 v%d, v%d, v%d" % (V_T0, V_T0, S + 15))
    ops0.append("v_mov_b32 v%d, v%d" % (V_T1, V_T0))
    ops0.append("v_permlane32_swap_b32 v%d, v%d" % (V_T0, V_T1))
    ops0.append("v_max_f32 v%d, v%d, v%d" % (V_T0, V_T0, V_T1))
    ops0.append("v_sub_f32 v%d, 0, v%d" % (NEGM, V_T0))
    ops0 += softmax_ops(0, True)
    ops0.append("v_add_f32 v%d, v%d, v%d" % (V_L, V_LT, V_L))
    k1 = start[("K", 1)]
    wins.append((ops0, k1 + 1, k1 + 7))
    nb = ["v_mov_b32 v%d, v%d" % (NEGM + i, NEGM) for i in range(1, 16)]
    wins.append((nb, start[("V", 0)], start[("V", 0)] + 6))
    rare = []
    for t in range(1, 16):
        ops = softmax_ops(t, t == 1)
        g0 = start[("V", t - 1)] + 1
        pv = start[("V", t)]
        chk = ["v_cmp_nge_f32 vcc, s%d, v%d" % (S_THR, V_LT)]
        br = ["s_cbranch_vccnz L_rare%d" % t, "L_back%d:" % t]
        ladd = ["v_add_f32 v%d, v%d, v%d" % (V_L, V_LT, V_L)]
        if 1 < t < 15:
            wins.append((ops + chk, g0, pv - 2))
            shadow[pv - 1] = br
            wins.append((ladd, pv - 1, pv))
        else:
            wins.append((ops + chk + br, g0, pv - 1))
            wins.append((ladd, pv, pv))
        rare += rare_path(t)
    pv = start[("V", 15)]
    nend = len(mfs)
    lops = [f"v_mov_b32 v{V_T0}, v{V_L}", "s_nop 0", "s_nop 0", f"v_permlane32_swap_b32 v{V_L}, v{V_T0}",
            f"v_add_f32 v{V_L}, v{V_L}, v{V_T0}", f"v_rcp_f32 v{V_L}, v{V_L}"]

    def norm_ops(ks, packed):
        a = ACC + 8 * ks
        if packed:
            o = [f"v_pk_mul_f32 v[{a+2*i}:{a+2*i+1}], v[{a+2*i}:{a+2*i+1}], v[{V_L}:{V_L+1}] op_sel_hi:[1,0]" for i in range(4)]
        else:
            o = [f"v_mul_f32 v{a+i}, v{V_L}, v{a+i}" for i in range(8)]
        o += [f"v_cvt_pk_bf16_f32 v{QR+4*ks+i}, v{a+2*i}, v{a+2*i+1}" for i in range(4)]
        return o + [(f"ds_write_b128 v{V_OW}, {vr(QR+4*ks,4)} offset:{ks*1024}", 12)]
    if cfg.t3:
        wins.append((lops, pv, pv + 2))
        for ks in range(cfg.t3):
            wins.append((norm_ops(ks, False), pv + 3 + 2 * (ks >> 1), nend - 1))
        post = sum((norm_ops(ks, cfg.pk) for ks in range(cfg.t3, 8)), [])
    else:
        post = lops + sum((norm_ops(ks, cfg.pk) for ks in range(8)), [])
    emit_schedule(st, mfs, wins, pre, shadow, cfg, cfg.D2, bar, addr_update)
    stamp(st, cfg, 3)
    for o in pre.get(nend, []) + post:
        if isinstance(o, tuple):
            st.ds(o[0])
        else:
            R(o)
    R((f"s_lshr_b32 s{S_T0}, s{S_B}, 2" if cfg.khrot else f"s_mov_b32 s{S_T0}, 0") + f"\ns_xor_b32 s{S_T0}, s{S_T0}, 1\ns_mul_i32 s{S_T0}, s{S_T0}, {2*SLOT}\ns_add_u32 s{S_T0}, s{S_T0}, {AUX}")
    R(f"v_and_b32 v{V_OW+0}, 63, v0\nv_lshlrev_b32 v{V_T0}, 4, v{V_OW}")
    st.lines.pop(); st.lines.pop()
    R(f"v_and_b32 v{V_T1}, 63, v0\nv_lshlrev_b32 v{V_T1}, 4, v{V_T1}\nv_add_u32 v{V_XA0}, s{S_T0}, v{V_T1}")
    mfs, wins, pre, shadow, bar = [], [], {}, {}, {}
    orgs = {}
    for i in range(4):
        A = ACC + 32 * (i & 1)
        for kh in range(2):
            c = 16 + 2 * i + kh
            bar[len(mfs) - 1 - cfg.BL if c > 16 else -1] = c
            for ks in range(8):
                f = next_frag()
                rg = tr_pair(f, (4 * ks) * 1024, (4 * ks + 2) * 1024, c, cfg.D3)
                for th in range(2):
                    o = OF + 64 * kh + 32 * th + 4 * ks
                    reads = [rg]
                    if i == 0:
                        areg = V_OR if kh == 0 else V_XA0
                        reads.append(RG([f"ds_read_b128 {vr(o,4)}, v{areg} offset:{th*SLOT + ks*1024}"], 16, cfg.D3 - 2))
                        reads[-1].free = True
                    cin = "0" if (kh == 0 and ks == 0) else A + 16 * th
                    mfs.append(MF(mfma(A + 16 * th, f, o, cin), reads, c))

    def cvt_ops(i, f):
        A = ACC + 32 * (i & 1) + 8 * f
        return [f"v_cvt_pk_bf16_f32 v{PK+4*f+j}, v{A+2*j}, v{A+2*j+1}" for j in range(4)]

    def st_op(i, f):
        return [f"buffer_store_dwordx4 {vr(PK+4*f,4)}, v{V_ST}, s[{S_WS}:{S_WS+3}], s{S_NC0+i} offen offset:{f*1024} {cfg.st_pol}"]

    def flag_op(i):
        return f"buffer_store_dwordx2 v[{H_TAG}:{H_TAG+1}], v{H_FL}, s[{S_IN}:{S_IN+3}], 0 offen offset:{128*i} {cfg.fpol}"
    wins.append(([f"s_add_u32 s{S_NC0+i}, s{S_HPO}, {i*16384}" for i in range(4)], 33, 40))
    vq, sent = [], set()

    def vwait(tag):
        p = max(k for k, t in enumerate(vq) if t == tag)
        n = len(vq) - 1 - p
        del vq[:p + 1]
        return f"s_waitcnt vmcnt({n})"
    if cfg.stmode == "late":
        vq += [("st", 0)] * 3 + [("st", 1), ("st", 0)] + [("st", 1)] * 3 + [("st", 2)] * 4
        wins.append((sum((cvt_ops(0, f) for f in range(4)), []), 33, 60))
        wins.append((handoff_addr(3, "q"), 40, 78))
        g = 80 + cfg.ST0
        for f in range(4):
            wins.append((st_op(0, f), g + 2 * f, 94))
        for f in range(4):
            wins.append((cvt_ops(1, f) + st_op(1, f), g + 2 * f + 3, 94))
        for f in range(4):
            wins.append((cvt_ops(2, f) + st_op(2, f), 97 + 3 * f, 126))
    else:
        wins.append((handoff_addr(3, "q"), 33, 60))
        ev = []
        for i in range(3):
            for f in range(4):
                ev.append((32 * (i + 1) + 2 + cfg.STS * f, "st", i, f))
        ev.append((cfg.FL0, "fl", 0, 0))
        ev.append((cfg.FL1, "fl", 1, 0))
        for g, kind, i, f in sorted(ev):
            if kind == "st":
                wins.append((cvt_ops(i, f) + st_op(i, f), g, 32 * (i + 2) - 1))
                vq.append(("st", i))
            elif g < 128:
                wins.append(([vwait(("st", i)), flag_op(i)], g, 127))
                vq.append(("fl", i))
                sent.add(i)
    if cfg.endbar and cfg.EB < 128:
        shadow[cfg.EB] = ["s_barrier"]
    emit_schedule(st, mfs, wins, pre, shadow, cfg, cfg.D3, bar, addr_update, virtual={23})
    stamp(st, cfg, 4)
    if cfg.tst:
        R(tstamp(cfg, 0))
    if cfg.stamps:
        vq.append("stamp")
    for f in range(4):
        R("\n".join(cvt_ops(3, f) + st_op(3, f)))
        vq.append(("st", 3))
    if cfg.tst:
        R(tstamp(cfg, 1))
    for i in range(4):
        if i not in sent:
            if ("st", i) in vq:
                R(vwait(("st", i)))
            R(flag_op(i))
            vq.append(("fl", i))
        if i == 1 and cfg.endbar and cfg.EB >= 128:
            R("s_barrier")
        if i == 2 and cfg.tst:
            R(tstamp(cfg, 2))
    if cfg.tst:
        R(tstamp(cfg, 3))
    stamp(st, cfg, 8)
    if not cfg.seq:
        rc = reduce_code(cfg, 3, "q", "c").split("L_go_c:\n")
        R(rc[0] + "L_go_c:")
        stamp(st, cfg, 9)
        R(rc[1])
        R(EPOCH_NEXT)
    stamp(st, cfg, 10)
    if cfg.stamps:
        R("s_waitcnt vmcnt(0)")
        stamp(st, cfg, 5)
        R(f"s_memrealtime s[{S_STT}:{S_STT+1}]\ns_waitcnt lgkmcnt(0)\nv_mov_b32 v{V_T0}, s{S_STT}\nv_mov_b32 v{V_T1}, 28\nglobal_store_dword v{V_T1}, v{V_T0}, s[{S_STB}:{S_STB+1}]")
    if cfg.tst:
        R(tst_end(cfg, 0))
    if cfg.span:
        R(span_end(cfg, 0))
    R("s_endpgm")
    R("L_main_end:")
    R("\n".join(rare))
    if cfg.dbg:
        keep = []
        nmf = [0]
        for l in st.lines:
            t = l.strip()
            if "E" in cfg.dbg and t.startswith("v_exp"): continue
            if "A" in cfg.dbg and t.startswith("v_add_f32"): continue
            if "C" in cfg.dbg and t.startswith("v_cvt_pk") and (" v19" in t.split(",")[0] or " v20" in t.split(",")[0]): continue
            if "K" in cfg.dbg and t.startswith("ds_read_b128"): continue
            if "T" in cfg.dbg and t.startswith("ds_read_b64_tr"): continue
            if "W" in cfg.dbg and t.startswith("s_waitcnt lgkmcnt"): continue
            if "B" in cfg.dbg and (t.startswith("s_cbranch_vccnz") or t.startswith("v_cmp_nge")): continue
            if t.startswith("v_mfma"):
                nmf[0] += 1
                ph = 1 if nmf[0] <= 128 else 2 if nmf[0] <= 384 else 3
                if "xyz"[ph - 1] in cfg.dbg:
                    continue
                if str(ph) in cfg.dbg:
                    m = re.match(r"v_mfma_f32_32x32x16_bf16 v\[(\d+):\d+\], (v\[\d+:\d+\]), (v\[\d+:\d+\]), (.*)", t)
                    d = int(m.group(1)) + 8 * (nmf[0] >> 2 & 1)
                    for q in range(2):
                        dd = "v[%d:%d]" % (d + 4 * q, d + 4 * q + 3)
                        keep.append("  v_mfma_f32_16x16x32_bf16 %s, %s, %s, %s" % (dd, m.group(2), m.group(3), dd if m.group(4) != "0" else "0"))
                    continue
            keep.append(l)
        st.lines = keep
    n0 = len(st.lines)
    st.lines = fix_hazards(st.lines)
    if cfg.verbose:
        print("hazard nops inserted:", len(st.lines) - n0, file=sys.stderr)
    return st.text()


def rest_setup():
    return f"""
s_lshl_b32 s{S_GRP}, s{S_BR}, 3
s_add_u32 s{S_GRP}, s{S_GRP}, s{S_B}
s_lshl_b32 s18, s{S_GRP}, 8
s_add_u32 s18, s18, 0x1040000
s_add_u32 s{S_EP}, s74, s18
s_addc_u32 s{S_EP+1}, s75, 0
s_load_dword s{S_EP+2}, s[{S_EP}:{S_EP+1}], 0
s_lshl_b32 s10, s{S_B}, 3
s_add_u32 s10, s10, s91
s_lshl_b32 s10, s10, 17
s_lshl_b32 s13, s{S_HP}, 18
s_lshl_b32 s14, s{S_GRP}, 20
s_lshl_b32 s{S_HPO}, s{S_HP}, 16
s_lshl_b32 s15, s{S_GRP}, 13
s_add_u32 s15, s15, 0x1000000
s_lshl_b32 s90, s{S_BR}, 10
s_lshl_b32 s19, s{S_B}, 17
s_add_u32 s19, s19, s90
s_add_u32 s{S_K}, s66, s10
s_addc_u32 s{S_K+1}, s67, 0
s_mov_b32 s{S_K+2}, 0x20000
s_mov_b32 s{S_K+3}, 0x20000
s_add_u32 s{S_V}, s68, s10
s_addc_u32 s{S_V+1}, s69, 0
s_mov_b32 s{S_V+2}, 0x20000
s_mov_b32 s{S_V+3}, 0x20000
s_add_u32 s{S_WO}, s72, s13
s_addc_u32 s{S_WO+1}, s73, 0
s_mov_b32 s{S_WO+2}, 0x40000
s_mov_b32 s{S_WO+3}, 0x20000
s_add_u32 s{S_WS}, s74, s14
s_addc_u32 s{S_WS+1}, s75, 0
s_mov_b32 s{S_WS+2}, 0x100000
s_mov_b32 s{S_WS+3}, 0x20000
s_add_u32 s{S_IN}, s74, s15
s_addc_u32 s{S_IN+1}, s75, 0
s_mov_b32 s{S_IN+2}, 0x2000
s_mov_b32 s{S_IN+3}, 0x20000
s_add_u32 s{S_OUT}, s92, s19
s_addc_u32 s{S_OUT+1}, s93, 0
s_sub_u32 s{S_OUT+2}, 0x20000, s90
s_mov_b32 s{S_OUT+3}, 0x20000
"""


def gen_loader(cfg):
    L = []
    R = lambda t: L.extend(("  " + l.strip()) if not l.endswith(":") else l for l in t.strip("\n").split("\n"))
    vWQ, vX, vK, vV, vWO = 1, 2, 3, 4, 5
    R(f"""
L_loader:
s_sub_u32 s{S_W}, s{S_W}, 4
s_lshl_b32 s5, s5, 1
s_add_u32 s5, s5, s{S_ROT}
%ROT%
s_lshl_b32 s11, s{S_B}, 16      ; x offset
s_lshl_b32 s12, s{S_HP}, 9
s_mov_b32 s{S_X+2}, 0x10000
s_mov_b32 s{S_X+3}, 0x20000
s_sub_u32 s{S_WQ+2}, 0x400000, s12
s_mov_b32 s{S_WQ+3}, 0x20000
v_and_b32 v10, 63, v0
v_lshrrev_b32 v11, 4, v10               ; t = i>>4
v_bfe_u32 v12, v10, 2, 2                ; r
v_and_b32 v13, 3, v10                   ; c
v_lshlrev_b32 v14, 6, v11
v_lshl_add_u32 v15, v13, 4, v14         ; t*64 + c*16
s_and_b32 s{S_T0}, s{S_W}, 1
s_lshl_b32 s{S_T0}, s{S_T0}, 18
s_lshr_b32 s{S_T1}, s{S_W}, 1
s_lshl_b32 s{S_T1}, s{S_T1}, 8
s_add_u32 s{S_T0}, s{S_T0}, s{S_T1}
v_lshl_add_u32 v16, v12, 13, v15
v_add_u32 v{vWQ}, s{S_T0}, v16
s_lshl_b32 s{S_M8}, s{S_W}, 13
s_lshl_b32 s{S_M1}, s{S_W}, 10
v_and_b32 v16, 1, v11                   ; tq
s_and_b32 s{S_T0}, s{S_W}, 1
s_lshl_b32 s{S_T0}, s{S_T0}, 1
v_or_b32 v17, s{S_T0}, v16              ; g
v_xor_b32 v17, v17, v13
v_lshlrev_b32 v17, 4, v17
v_lshrrev_b32 v18, 1, v11               ; ch
v_lshl_add_u32 v17, v18, 6, v17
v_lshl_add_u32 v18, v16, 2, v12         ; 4tq + t3
v_lshl_add_u32 v17, v18, 10, v17
v_add_u32 v{vX}, s{S_M8}, v17           ; + 8*lw*1024
s_waitcnt lgkmcnt(0)
s_add_u32 s{S_X}, s64, s11
s_addc_u32 s{S_X+1}, s65, 0
s_add_u32 s{S_WQ}, s70, s12
s_addc_u32 s{S_WQ+1}, s71, 0
""")
    vq = []

    def pieces(c):
        base = (c % 4) * SLOT
        sa, sb = (50 + 2 * (c & 1), 51 + 2 * (c & 1)) if c < cfg.rst else (54, 55)
        P = []
        if c < 8:
            pro = f"s_add_u32 s{sa}, s{S_ROT}, {c}\ns_and_b32 s{sa}, s{sa}, 7\ns_lshl_b32 s{sb}, s{sa}, 7\ns_lshl_b32 s{sa}, s{sa}, 19\n"
            for p in range(2):
                P.append(f"s_add_u32 m0, s{S_M1}, {base + AUX + p*4096}\ns_add_u32 s{S_T2}, s{sb}, {p*32768}\n"
                         f"buffer_load_dwordx4 v{vX}, s[{S_X}:{S_X+3}], s{S_T2} offen {cfg.nt_w} lds")
            for p in range(8):
                P.append(f"s_add_u32 m0, s{S_M8}, {base + p*1024}\ns_add_u32 s{S_T2}, s{sa}, {p*32768}\n"
                         f"buffer_load_dwordx4 v{vWQ}, s[{S_WQ}:{S_WQ+3}], s{S_T2} offen {cfg.nt_w} lds")
        elif c < 16:
            pro = ""
            for j in range(4):
                kind, t = kv_items(cfg)[(c - 8) * 4 + j]
                v, sr = (vK, S_K) if kind == "K" else (vV, S_V)
                for p in range(2):
                    if cfg.kvrot:
                        off = f"s_add_u32 s{S_T2}, s{S_KVR}, {t*8192 + p*4096}\ns_and_b32 s{S_T2}, s{S_T2}, 0x1ffff"
                    else:
                        off = f"s_mov_b32 s{S_T2}, {t*8192 + p*4096}"
                    P.append(f"s_add_u32 m0, s{S_M1}, {base + j*8192 + p*4096}\n{off}\n"
                             f"buffer_load_dwordx4 v{v}, s[{sr}:{sr+3}], s{S_T2} offen {cfg.nt_kv} lds")
        else:
            i, kh = (c - 16) >> 1, (c - 16) & 1
            pro = f"s_add_u32 s{sa}, s{S_B}, {i}\ns_and_b32 s{sa}, s{sa}, 3\ns_lshl_b32 s{sa}, s{sa}, 8\n"
            if cfg.khrot:
                pro += f"s_lshr_b32 s{sb}, s{S_B}, 2\ns_xor_b32 s{sb}, s{sb}, {kh}\ns_lshl_b32 s{sb}, s{sb}, 17\ns_add_u32 s{sa}, s{sa}, s{sb}\n"
            for p in range(8):
                if c >= cfg.rst:
                    rg = 256 - 32 * (24 - c) + 4 * p
                    P.append(f"s_add_u32 s{S_T2}, s{sa}, {p*4096 + (0 if cfg.khrot else kh << 17)}\n"
                             f"buffer_load_dwordx4 v[{rg}:{rg+3}], v{vWO}, s[{S_WO}:{S_WO+3}], s{S_T2} offen {cfg.nt_w}")
                    continue
                P.append(f"s_add_u32 m0, s{S_M8}, {base + p*1024}\ns_add_u32 s{S_T2}, s{sa}, {p*4096 + (0 if cfg.khrot else kh << 17)}\n"
                         f"buffer_load_dwordx4 v{vWO}, s[{S_WO}:{S_WO+3}], s{S_T2} offen {cfg.nt_w} lds")
        P[0] = pro + P[0]
        return P

    todo = [(c, k, len(pieces(c)), t) for c in range(cfg.rst) for k, t in enumerate(pieces(c))]
    rtodo = [(c, t) for c in range(cfg.rst, 24) for t in pieces(c)]
    rcum = {int(e[0], 36): int(e[1:]) for e in cfg.rplan.split(",") if e}
    nstaged = [0]

    def issue_staged(s):
        want = rcum.get(s, 0) * 4 if s in rcum else 0
        if s == max(rcum, default=16):
            want = 999
        while rtodo and nstaged[0] < want:
            c, t = rtodo.pop(0)
            R(t)
            vq.append(("r", c))
            nstaged[0] += 1

    def write_staged(c):
        wait_for(("r", c))
        R(f"v_add_u32 v9, {(c % 4) * SLOT}, v11")
        for p in range(8):
            rg = 256 - 32 * (24 - c) + 4 * p
            R(f"ds_write_b128 v9, v[{rg}:{rg+3}] offset:{p*1024}")

    def issue_to(pos):
        while todo and todo[0][0] + (todo[0][1] + 1) / todo[0][2] <= pos + 1e-6:
            c, k, n, t = todo.pop(0)
            if c == 1 and k == 0 and cfg.prow >= 0:
                R(f"s_waitcnt vmcnt({cfg.prow})")
            R(t)
            vq.append(("c", c))

    def lstamp(i):
        if cfg.lstamps:
            R(f"s_memtime s[{S_STT}:{S_STT+1}]\ns_waitcnt lgkmcnt(0)\nv_writelane_b32 v90, s{S_STT}, {i}")
    lstamp(50)
    issue_to(1)
    lstamp(51)
    R(rest_setup())
    R(f"v_lshlrev_b32 v11, 4, v10\nv_add_u32 v11, s{S_M8}, v11") if False else None
    if cfg.kvrot == 1:
        R(f"s_lshl_b32 s{S_KVR}, s{S_B}, 1\ns_add_u32 s{S_KVR}, s{S_KVR}, s91\ns_lshl_b32 s{S_KVR}, s{S_KVR}, 13")
    elif cfg.kvrot == 2:
        R(f"s_mul_i32 s{S_KVR}, s91, 5\ns_mul_i32 s{S_T0}, s{S_B}, 3\ns_add_u32 s{S_KVR}, s{S_KVR}, s{S_T0}\ns_lshl_b32 s{S_KVR}, s{S_KVR}, 13")
    elif cfg.kvrot == 3:
        R(f"s_lshl_b32 s{S_KVR}, s{S_B}, 1\ns_add_u32 s{S_KVR}, s{S_KVR}, s91\ns_and_b32 s{S_T0}, s{S_HP}, 1\ns_mul_i32 s{S_T0}, s{S_T0}, {cfg.kvd}\ns_add_u32 s{S_KVR}, s{S_KVR}, s{S_T0}\ns_lshl_b32 s{S_KVR}, s{S_KVR}, 13")
    R(f"""
v_lshl_add_u32 v16, v12, 8, v15
v_add_u32 v{vV}, s{S_M1}, v16
v_xor_b32 v16, s{S_W}, v13
v_lshl_add_u32 v16, v16, 4, v14
v_lshl_add_u32 v16, v12, 8, v16
v_add_u32 v{vK}, s{S_M1}, v16
v_lshl_add_u32 v16, v12, 10, v15
s_lshl_b32 s{S_T0}, s{S_W}, 15
v_add_u32 v{vWO}, s{S_T0}, v16
v_lshlrev_b32 v11, 4, v10
v_add_u32 v11, s{S_M8}, v11
""")
    depth = [int(ch, 16) / 4 for ch in cfg.plan]
    depth += [depth[-1]] * (24 - len(depth))

    def wait_for(*tags):
        pos = [k for k, t in enumerate(vq) if t in tags]
        if pos:
            n = len(vq) - 1 - max(pos)
            R(f"s_waitcnt vmcnt({n})")
            del vq[:max(pos) + 1]

    for s in range(23):
        assert s + depth[s] <= max(3, s + 2)
        issue_to(s + 1 + depth[s])
        issue_staged(s)
        if s + 2 >= cfg.rst and s + 2 < 24 and s >= 3:
            write_staged(s + 2)
        if s == 0:
            lstamp(48)
        if s == cfg.openin:
            R(f"""s_mul_i32 s{S_T0}, s{S_HP}, 520
v_lshlrev_b32 v6, 7, v10
v_mov_b32 v7, 0x7fff0000
v_cmp_gt_u32 vcc, 4, v0
v_mov_b32 v8, 0
v_mov_b32 v9, 0
v_lshlrev_b32 v6, 7, v10
v_subrev_u32 v16, 256, v0
v_cmp_gt_u32 vcc, 4, v16
s_nop 1
v_cndmask_b32 v6, v7, v6, vcc
buffer_store_dwordx2 v[8:9], v6, s[{S_IN}:{S_IN+3}], s{S_T0} offen sc1""")
            vq.append("open")
        if s == cfg.openout:
            R(f"""s_and_b32 s{S_T0}, s{S_HP}, 3
s_lshl_b32 s{S_T0}, s{S_T0}, 15
s_lshr_b32 s{S_T1}, s{S_HP}, 2
s_lshl_b32 s{S_T1}, s{S_T1}, 6
s_add_u32 s{S_T0}, s{S_T0}, s{S_T1}
v_and_b32 v6, 15, v10
v_lshlrev_b32 v6, 11, v6
v_lshrrev_b32 v7, 4, v10
v_lshl_add_u32 v6, v7, 8, v6
s_cmp_lg_u32 s{S_W}, 1
s_cbranch_scc1 L_noout
buffer_load_dword v7, v6, s[{S_OUT}:{S_OUT+3}], s{S_T0} offen
L_noout:""")
            vq.insert(0, "x") if False else None
        if s == 12:
            R(EPOCH)
        wait_for(("c", s if s < 22 else 23))
        if s >= cfg.rst:
            R("s_waitcnt lgkmcnt(%d)" % (8 if s < 22 and not (cfg.tst or cfg.cyc or cfg.lstamps) else 0 if s == 22 else 8))
        lstamp(2 * s)
        R("s_barrier")
        if cfg.tst and s in (0, 8, 16):
            R(tstamp(cfg, s // 8) if not cfg.seq else tstamp(cfg, 6) if s == 16 else tstamp(cfg, 8 + s // 8))
        if cfg.cyc:
            if s:
                R(f"s_waitcnt lgkmcnt(0)\nv_writelane_b32 v90, s100, {2*s-2}\nv_writelane_b32 v90, s58, {2*s-1}")
            R("s_memtime s[100:101]\ns_memrealtime s[58:59]")
        lstamp(2 * s + 1)
    if not cfg.seq:
        R(f"s_cmp_eq_u32 s{S_W}, 3\ns_cbranch_scc1 L_ld_done")
    R("\n".join(handoff_addr(0, "q" if cfg.seq else "w")))
    R(f"s_lshl_b32 s{S_T1}, s{S_HP}, 9\nv_and_b32 v3, {63 if cfg.dyn else 31}, v10\nv_lshlrev_b32 v3, 3, v3\nv_add_u32 v3, s{S_T1}, v3")
    lstamp(46)
    if cfg.endbar:
        R("s_barrier")
    if cfg.tst:
        R(tstamp(cfg, 3))
    lstamp(47)
    R(reduce_dyn(cfg) if cfg.seq and cfg.dyn else reduce_seq(cfg) if cfg.seq else reduce_code(cfg, f"s{S_W}", "w", "l"))
    R("L_ld_done:")
    if cfg.lstamps or cfg.cyc:
        R(f"""s_waitcnt lgkmcnt(0)
v_writelane_b32 v90, s62, 49
v_writelane_b32 v90, s60, 50
s_lshl_b32 s14, s2, 2
s_add_u32 s14, s14, s{S_W}
s_lshl_b32 s14, s14, 8
s_add_u32 s14, s14, 0x2100000
s_add_u32 s{S_STT}, s74, s14
s_addc_u32 s{S_STT+1}, s75, 0
v_lshlrev_b32 v21, 2, v10
global_store_dword v21, v90, s[{S_STT}:{S_STT+1}]""")
    if cfg.tst:
        R(tst_end(cfg, 4))
    if cfg.span:
        R(span_end(cfg, 4))
    R("s_endpgm")
    return "\n".join(L) + "\n"


def gen_main(cfg):
    name = NAME + "_kernel"
    s = f""".globl {name}
.p2align 12
.p2align 8
.type {name},@function
{name}:
  s_cmp_ge_u32 s2, 256
  s_cbranch_scc1 L_exit
"""
    if cfg.stamps or cfg.lstamps or cfg.span or cfg.tst:
        s += f"  s_memrealtime s[60:61]\n  s_memtime s[62:63]\n"
    s += f"""
  s_bfe_u32 s{S_BR}, s2, 0x10002
  s_mul_i32 s5, s{S_BR}, 40
  s_add_u32 s8, s0, s5
  s_addc_u32 s9, s1, 0
  s_load_dwordx8 s[64:71], s[8:9], 0      ; x k v wq
  s_load_dwordx2 s[72:73], s[8:9], 32     ; wo
  s_load_dwordx2 s[74:75], s[0:1], 96     ; ws
  s_load_dwordx2 s[92:93], s[0:1], 80     ; out
  v_lshrrev_b32 v1, 6, v0
  s_lshr_b32 s4, s2, 3            ; slot
  s_and_b32 s{S_ROT}, s4, 1
  v_readfirstlane_b32 s{S_W}, v1
  s_and_b32 s91, s2, 3
  s_lshl_b32 s91, s91, 1
  s_add_u32 s91, s91, s{S_ROT}    ; hkv
  {f"s_lshr_b32 s{S_B}, s4, 2" if cfg.remap else f"s_bfe_u32 s{S_B}, s4, 0x30001"}   ; b
  {"s_bfe_u32 s5, s4, 0x10001" if cfg.remap else "s_lshr_b32 s5, s4, 4"}            ; half
  s_lshl_b32 s{S_HP}, s91, 1
  s_add_u32 s{S_HP}, s{S_HP}, s5  ; hp
"""
    if cfg.stamps:
        s += f"""
  s_waitcnt lgkmcnt(0)
  s_lshl_b32 s14, s2, 3
  s_add_u32 s14, s14, s{S_W}
  s_lshl_b32 s14, s14, 6
  s_add_u32 s14, s14, 0x2000000
  s_add_u32 s{S_STB}, s74, s14
  s_addc_u32 s{S_STB+1}, s75, 0
  v_mov_b32 v{V_T0}, s62
  v_mov_b32 v{V_T1}, 0
  global_store_dword v{V_T1}, v{V_T0}, s[{S_STB}:{S_STB+1}]
  v_mov_b32 v{V_T0}, s60
  v_mov_b32 v{V_T1}, 24
  global_store_dword v{V_T1}, v{V_T0}, s[{S_STB}:{S_STB+1}]
  s_waitcnt vmcnt(0)
"""
    s += f"""
  s_cmp_lt_u32 s{S_W}, 4
  s_cbranch_scc1 L_compute
"""
    s += gen_loader(cfg)
    comp = gen_compute(cfg)
    s += ".p2align 12\n" + comp
    s += "L_exit:\n  s_endpgm\nL_code_end:\n"
    s = s.replace("CODE_BYTES", "0x7f80")
    rot = {8: f"  s_lshl_b32 s5, s5, 1\n  s_add_u32 s{S_ROT}, s5, s{S_B}",
           -8: f"  s_mov_b32 s{S_ROT}, s{S_B}",
           4: f"  s_add_u32 s5, s5, s{S_B}\n  s_lshl_b32 s{S_ROT}, s5, 1",
           2: f"  s_add_u32 s5, s5, s{S_B}\n  s_lshl_b32 s{S_ROT}, s5, 2",
           1: f"  s_mov_b32 s{S_ROT}, 0"}[cfg.rot]
    s = s.replace("%ROT%", rot)
    return s


def gen_reduce(cfg):
    name = "reduce_kernel"
    s = f""".globl {name}
.p2align 8
.type {name},@function
{name}:
  s_cmp_ge_u32 s2, 256
  s_cbranch_scc1 L_rexit
  s_load_dwordx2 s[4:5], s[0:1], 96
  s_load_dwordx2 s[6:7], s[0:1], 80
  s_lshr_b32 s8, s2, 4            ; group
  s_and_b32 s9, s2, 15            ; slice
  s_lshl_b32 s10, s8, 20
  s_lshl_b32 s11, s9, 12
  s_add_u32 s10, s10, s11
  v_lshlrev_b32 v1, 4, v0
  s_mov_b32 s14, 0x100000
  s_mov_b32 s15, 0x20000
  s_mov_b32 s18, 0x100000
  s_mov_b32 s19, 0x20000
  s_waitcnt lgkmcnt(0)
  s_add_u32 s12, s4, s10
  s_addc_u32 s13, s5, 0
  s_mov_b32 s16, s6
  s_mov_b32 s17, s7
"""
    for p in range(16):
        s += f"  s_mov_b32 s20, {p*65536}\n  buffer_load_dwordx4 v[{16+4*p}:{19+4*p}], v1, s[12:15], s20 offen {cfg.red_pol}\n"
    s += """
  s_and_b32 s20, s8, 7
  s_lshl_b32 s20, s20, 17
  s_lshr_b32 s21, s8, 3
  s_lshl_b32 s21, s21, 10
  s_add_u32 s20, s20, s21
  s_and_b32 s21, s9, 1
  s_lshl_b32 s21, s21, 16
  s_add_u32 s20, s20, s21
  s_lshr_b32 s21, s9, 1
  s_lshl_b32 s21, s21, 7
  s_add_u32 s20, s20, s21
  v_and_b32 v2, 31, v0
  v_lshlrev_b32 v2, 11, v2
  v_lshrrev_b32 v3, 5, v0
  v_lshl_add_u32 v2, v3, 4, v2
  s_mov_b32 s22, 0xffff0000
"""
    for p in range(16):
        s += f"  s_waitcnt vmcnt({15-p})\n"
        for j in range(4):
            r = 16 + 4 * p + j
            if p == 0:
                s += f"  v_lshlrev_b32 v{4+2*j}, 16, v{r}\n  v_and_b32 v{5+2*j}, s22, v{r}\n"
            else:
                s += f"  v_lshlrev_b32 v12, 16, v{r}\n  v_and_b32 v13, s22, v{r}\n  v_add_f32 v{4+2*j}, v12, v{4+2*j}\n  v_add_f32 v{5+2*j}, v13, v{5+2*j}\n"
    for j in range(4):
        s += f"  v_cvt_pk_bf16_f32 v{12+j}, v{4+2*j}, v{5+2*j}\n"
    s += """  buffer_store_dwordx4 v[12:15], v2, s[16:19], s20 offen
L_rexit:
  s_endpgm
"""
    return s


def desc(name, nv, ns):
    return f""".p2align 6
.amdhsa_kernel {name}
  .amdhsa_next_free_vgpr {nv}
  .amdhsa_next_free_sgpr {ns}
  .amdhsa_accum_offset {nv}
  .amdhsa_group_segment_fixed_size 0
  .amdhsa_kernarg_size 104
  .amdhsa_user_sgpr_count 2
  .amdhsa_user_sgpr_kernarg_segment_ptr 1
  .amdhsa_system_sgpr_workgroup_id_x 1
.end_amdhsa_kernel
"""


def generate(cfg):
    ref = open("cdna_kernels/%s.s.ref" % NAME).read().split("\n")
    head = [l for l in ref if l.startswith(";") and "@launch" not in l and "Override launch" not in l and "grid=ceil" not in l]
    head = head[:14]
    s = "\n".join(head) + "\n"
    s += f"; @launch grid=(256,1,1) block=(512,1,1) lds=163840\n"
    s += '.amdgcn_target "amdgcn-amd-amdhsa--gfx950"\n.text\n'
    s += gen_main(cfg)
    s += '.section .rodata,"a"\n'
    s += desc(NAME + "_kernel", 256, 102)
    return s


def add_page_stubs(text):
    import subprocess, tempfile, os
    lines = text.split("\n")
    i0 = lines.index("L_compute:")
    i1 = lines.index("L_main_end:")
    iw = next(i for i, l in enumerate(lines) if l.strip() == "%WARM%")
    nwarm = 10
    probe = lines[:iw] + ["  s_nop 0"] * nwarm + lines[iw + 1:]
    d = tempfile.mkdtemp()
    open(d + "/p.s", "w").write("\n".join(probe))
    subprocess.check_call(["clang", "-x", "assembler", "-target", "amdgcn-amd-amdhsa", "-mcpu=gfx950", "-c", d + "/p.s", "-o", d + "/p.o"])
    dis = subprocess.check_output(["llvm-objdump", "-d", "--mcpu=gfx950", d + "/p.o"], text=True).split("\n")
    k = next(i for i, l in enumerate(dis) if l.endswith("<L_compute>:"))
    sizes = [4 * len(l.split("//")[1].split(":")[1].split()) for l in dis[k:] if "//" in l]
    out, addr, n, stubs = probe[:i0 + 1], 0, 0, []
    for l in probe[i0 + 1:i1 + nwarm - 1]:
        t = l.split(";")[0].strip()
        if t and not t.endswith(":"):
            if addr // 4096 > len(stubs):
                stubs.append(len(out))
                out.append(None)
                addr += 4
            addr += sizes[n]
            n += 1
        out.append(l)
    out += probe[i1 + nwarm - 1:]
    ns = len(stubs)
    for j, p in enumerate(stubs):
        tgt = "L_stub%d" % (j + 4) if j + 4 < ns else "L_warm_ret"
        out[p] = "L_stub%d:\n  s_cbranch_execz %s" % (j, tgt)
    warm = ["  s_mov_b64 exec, 0"]
    for w in range(4):
        warm += ["  s_cmp_eq_u32 s%d, %d" % (S_W, w), "  s_cbranch_scc1 %s" % ("L_stub%d" % w if w < ns else "L_warm_ret")]
    warm += ["L_warm_ret:\n  s_mov_b64 exec, -1"]
    out[iw:iw + nwarm] = warm
    return "\n".join(out)


if __name__ == "__main__":
    cfg = Cfg()
    out = sys.argv[1]
    for a in sys.argv[2:]:
        k, v = a.split("=")
        old = getattr(cfg, k)
        if isinstance(old, bool):
            v = v in ("1", "True", "true")
        elif isinstance(old, int):
            v = int(v)
        elif isinstance(old, float):
            v = float(v)
        else:
            v = v.replace("+", " ").replace("/", ",")
        setattr(cfg, k, v)
    txt = generate(cfg)
    if cfg.itlb:
        txt = add_page_stubs(txt)
    open(out, "w").write(txt)
```

```python
import sys, re, math

NAME = "concat_heads__gqa_block_cached__gqa_block_cached__near_ridge"
SLOT = 40960
AUX = 32768
QSCALE = math.log2(math.e) / math.sqrt(128.0)


def f2u(x):
    import struct
    return struct.unpack("<I", struct.pack("<f", x))[0]


class Cfg:
    nt_w = ""
    nt_kv = ""
    st_pol = "sc1"
    red_pol = "sc1"
    out_pol = ""
    spin = 2000000
    ST0 = 0
    kvrot = 0
    kvd = 0
    cyc = False
    prow = -1
    tlb = False
    seq = True
    dyn = False
    EB = 200
    t1 = True
    t3 = 2
    pk = True
    touch = ''
    part1 = 10
    FL0 = 90
    FL1 = 122
    endbar = True
    psleep = 0
    remap = True
    span = False
    tst = False
    itlb = True
    STS = 4
    stmode = 'spread'
    prio = 0
    pace = ''
    pace0 = 8
    pace1 = 17
    D1 = 7
    D2 = 7
    D3 = 8
    BL = 3
    stamps = False
    lstamps = False
    codepf = 2
    thr_log2 = 24.0
    rot = 2
    WP = 2
    dbg = ''
    verbose = False
    CAP = 4
    CAPB = 2
    BARC = 4
    MINLEAD = 3
    WL = 3
    nodrain = False
    pro = 4
    plan = '44444444456678'
    ppol = 'sc1'
    fpol = 'sc1'
    rounds = '0,1,2,3'
    khrot = False
    rst = 22
    rplan = 'g4'
    openin = 1
    openout = -1
    skew = 2
    early = 0
    esleep = 0
    ldsgo = True
    loopred = False
    dry = True
    ramp = ''
    force_rare = False


class Stream:
    def __init__(self):
        self.lines = []
        self.dsq = []
        self.nid = 0

    def raw(self, t):
        for l in t.strip("\n").split("\n"):
            self.lines.append(l if l.endswith(":") else "  " + l.strip())

    def ds(self, t):
        if len(self.dsq) >= 15:
            self.lines.append("  s_waitcnt lgkmcnt(11)")
            self.dsq = self.dsq[-11:]
        self.nid += 1
        self.dsq.append(self.nid)
        self.lines.append("  " + t)
        return self.nid

    def need(self, ids):
        pos = [self.dsq.index(i) for i in ids if i in self.dsq]
        if not pos:
            return
        p = max(pos)
        n = len(self.dsq) - 1 - p
        self.lines.append("  s_waitcnt lgkmcnt(%d)" % n)
        self.dsq = self.dsq[p + 1:]

    def drain(self):
        if self.dsq:
            self.lines.append("  s_waitcnt lgkmcnt(0)")
        self.dsq = []

    def text(self):
        return "\n".join(self.lines) + "\n"


def vr(a, n=1):
    return "v%d" % a if n == 1 else "v[%d:%d]" % (a, a + n - 1)


def mfma(d, a, b, c):
    cs = c if isinstance(c, str) else vr(c, 16)
    return "v_mfma_f32_32x32x16_bf16 %s, %s, %s, %s" % (vr(d, 16), vr(a, 4), vr(b, 4), cs)


V_TID = 0
V_XA0, V_XA1 = 1, 2
V_TA = 3
V_XL, V_KL = 4, 5
V_WQL, V_VL, V_WOL = 6, 7, 8
V_OW, V_OR = 9, 10
V_ST = 11
V_L, V_LT = 12, 13
V_T0, V_T1 = 14, 15
V_PF = 255
FR = 16
XF = 48
ET = 48
PK = 48
ACC = 64
QR = 128
SB = [160, 176, 224]
PB = [192, 200, 240]
LT = [13, 60]
NEGM = 208
OF = 128

S_W = 3
S_B, S_HP, S_GRP, S_BR = 6, 7, 16, 17
S_X, S_K, S_V, S_WQ, S_WO = 20, 24, 28, 32, 36
S_WS = 40
S_T0, S_T1, S_T2 = 44, 45, 46
S_M8, S_M1 = 47, 48
S_NC0 = 50
S_THR = 54
S_QS = 55
S_ROT = 49
S_KVR = 83
S_IN, S_OUT = 76, 84
S_HPO = 88
S_CNT = 89
S_STB = 56
S_STT = 58


class MF:
    def __init__(self, text, reads=None, chunk=None):
        self.text = text
        self.reads = reads or []
        self.chunk = chunk


class RG:
    def __init__(self, texts, chunk, lead=None):
        self.texts = texts
        self.chunk = chunk
        self.ids = None
        self.lead = lead


def stamp(st, cfg, idx):
    if not cfg.stamps:
        return
    st_l = []
    st_l.append("s_memtime s[%d:%d]" % (S_STT, S_STT + 1))
    st_l.append("s_waitcnt lgkmcnt(0)")
    st_l.append("v_mov_b32 v%d, s%d" % (V_T0, S_STT))
    st_l.append("v_mov_b32 v%d, %d" % (V_T1, idx * 4))
    st_l.append("global_store_dword v%d, v%d, s[%d:%d]" % (V_T1, V_T0, S_STB, S_STB + 1))
    st.dsq = []
    st.raw("\n".join(st_l))


def vcost(t):
    if isinstance(t, tuple):
        return t[1]
    if not isinstance(t, str):
        return 0
    if t.endswith(":"):
        return 0
    if t.startswith(("v_exp", "v_rcp")):
        return 8
    if t.startswith("buffer_store"):
        return 12
    return 4


def emit_schedule(st, mfs, wins, pre, shadow, cfg, D, barrier_at, addr_update, virtual=()):
    n = len(mfs)
    open_gap = {c: g for g, c in barrier_at.items()}
    rd_at, rd_gap, seen, pend = {}, {}, set(), []
    for i, m in enumerate(mfs):
        for rg in m.reads:
            if id(rg) in seen:
                continue
            seen.add(id(rg))
            lead = rg.lead if rg.lead is not None else D
            pend.append((max(i - lead, open_gap[rg.chunk]), i, rg))
    g, k = -1, 0
    while k < len(pend):
        cap = 99 if g < 0 else (cfg.CAPB if g in barrier_at else cfg.CAP)
        used = 0
        while k < len(pend) and pend[k][0] <= g and (used + len(pend[k][2].texts) <= cap or pend[k][1] - g <= cfg.MINLEAD):
            rg = pend[k][2]
            rd_at.setdefault(g, []).append(rg)
            rd_gap[id(rg)] = g
            used += len(rg.texts)
            k += 1
        g += 1
    for _, i, rg in pend:
        if rg.chunk + 1 in open_gap and not getattr(rg, "free", False):
            assert rd_gap[id(rg)] < open_gap[rg.chunk + 1], "read of chunk %d after the next barrier" % rg.chunk
    budget = {}
    for g in range(n):
        b = 24 - 4 * sum(len(rg.texts) for rg in rd_at.get(g, []))
        if g in barrier_at:
            b -= cfg.BARC
        budget[g] = b
    gaps = {}
    upd_done = set()
    for g, c in barrier_at.items():
        if g >= 0 and not cfg.nodrain:
            lo = max(gg for gg, l in rd_at.items() if gg < g and any(not getattr(r, "free", False) for r in l))
            if lo <= g - 1:
                for j, t in enumerate(addr_update(c)):
                    gg = min(g - 1, lo + 1 + j)
                    gaps.setdefault(gg, []).append(t)
                    budget[gg] -= 4
                upd_done.add(g)
    over = 0

    def fill(ops, g, g1):
        nonlocal over
        for o in ops:
            c = vcost(o)
            while g <= g1 and budget[g] < c:
                g += 1
            if g > g1:
                pre.setdefault(g1 + 1, []).append(o)
                over += c
            else:
                gaps.setdefault(g, []).append(o)
                budget[g] -= c
        return g
    for w in wins:
        if w[0] == "chain":
            cur = 0
            for ops, g0, g1, t in w[1]:
                cur = fill(ops, max(cur, g0), g1)
                if t is None:
                    continue
                gb = cur + 1
                while gb in barrier_at or gb in shadow:
                    gb += 1
                if gb <= g1:
                    br, ladd = w[2](t, gb)
                    shadow[gb] = br
                    cur = fill([ladd], gb, gb + 2)
                else:
                    br, ladd = w[2](t, g1)
                    pre.setdefault(g1 + 1, []).extend(br)
                    cur = fill([ladd], g1 + 1, g1 + 3)
                if cfg.verbose:
                    print("tile", t, "check at", gb, "deadline", g1, file=sys.stderr)
            continue
        ops, g0, g1 = w
        g = g0
        for o in ops:
            c = vcost(o)
            while g <= g1 and budget[g] < c:
                g += 1
            if g > g1:
                pre.setdefault(g1 + 1, []).append(o)
                over += c
            else:
                gaps.setdefault(g, []).append(o)
                budget[g] -= c
    if cfg.verbose:
        print("window overflow cycles", over, "over-budget gaps", [(g, b) for g, b in budget.items() if b < 0], file=sys.stderr)
    for g in sorted(k for k in rd_at if k < 0):
        if g in barrier_at:
            st.drain()
            st.raw("s_barrier")
            for t in addr_update(barrier_at[g]):
                st.raw(t)
        for rg in rd_at[g]:
            rg.ids = [st.ds(t) for t in rg.texts]

    def emit(t):
        if isinstance(t, tuple):
            st.ds(t[0])
        elif callable(t):
            t()
        else:
            st.raw(t)

    for i, m in enumerate(mfs):
        for t in pre.get(i, []):
            emit(t)
        ids = []
        for rg in m.reads:
            assert rg.ids is not None, "read not issued before use at mfma %d" % i
            ids += rg.ids
        st.need(ids)
        st.raw(m.text)
        if i in shadow:
            for t in shadow[i]:
                emit(t)
        if i in barrier_at:
            if barrier_at[i] not in virtual:
                if not cfg.nodrain:
                    st.drain()
                st.raw("s_barrier")
            if i not in upd_done:
                for t in addr_update(barrier_at[i]):
                    st.raw(t)
        elif i not in shadow:
            ids = []
            for j in range(i + 1, min(n, i + 3)):
                for rg in mfs[j].reads:
                    if rg.ids is not None and (j == i + 1 or j - 1 in shadow or rd_gap[id(rg)] <= i - cfg.WL):
                        ids += rg.ids
            st.need(ids)
        for rg in rd_at.get(i, []):
            rg.ids = [st.ds(t) for t in rg.texts]
        for t in gaps.get(i, []):
            emit(t)


def kv_items(cfg):
    k = cfg.skew
    items = [("K", t) for t in range(k)]
    for t in range(k, 16):
        items += [("K", t), ("V", t - k)]
    items += [("V", t) for t in range(16 - k, 16)]
    return items


def softmax_ops(t, sub_first, nb):
    S, P, lt = SB[t % nb], PB[t % nb], LT[t & 1]
    e = lambda i: ET + (i % 8)
    out = []
    for i in range(16):
        if sub_first:
            out.append("v_add_f32 v%d, v%d, v%d" % (S + i, NEGM, S + i))
        out.append("v_exp_f32 v%d, v%d" % (e(i), S + i))
        j = i - 1
        if j >= 1:
            out.append("v_add_f32 v%d, v%d, v%d" % (lt, e(j), e(0) if j == 1 else lt))
            if j & 1:
                out.append("v_cvt_pk_bf16_f32 v%d, v%d, v%d" % (P + j // 2, e(j - 1), e(j)))
    out.append("v_add_f32 v%d, v%d, v%d" % (lt, e(15), lt))
    out.append("v_cvt_pk_bf16_f32 v%d, v%d, v%d" % (P + 7, e(14), e(15)))
    return out


def rare_path(t, nb, live_s, pend_p):
    S = SB[t % nb]
    L = ["L_rare%d:" % t, "s_nop 15", "s_nop 3"]
    L.append("v_max3_f32 v%d, v%d, v%d, v%d" % (V_T0, S, S + 1, S + 2))
    for i in range(3, 15, 2):
        L.append("v_max3_f32 v%d, v%d, v%d, v%d" % (V_T0, V_T0, S + i, S + i + 1))
    L.append("v_max3_f32 v%d, v%d, v%d, 0" % (V_T0, V_T0, S + 15))
    L.append("v_mov_b32 v%d, v%d" % (V_T1, V_T0))
    L.append("s_nop 1")
    L.append("v_permlane32_swap_b32 v%d, v%d" % (V_T0, V_T1))
    L.append("v_max_f32 v%d, v%d, v%d" % (V_T0, V_T0, V_T1))
    L.append("v_ceil_f32 v%d, v%d" % (V_T0, V_T0))
    L.append("v_sub_f32 v%d, 0, v%d" % (V_T1, V_T0))
    L.append("v_exp_f32 v%d, v%d" % (V_T1, V_T1))
    for i in range(16):
        L.append("v_sub_f32 v%d, v%d, v%d" % (NEGM + i, NEGM + i, V_T0))
        for u in [t] + live_s:
            L.append("v_sub_f32 v%d, v%d, v%d" % (SB[u % nb] + i, SB[u % nb] + i, V_T0))
    L.append("v_mul_f32 v%d, v%d, v%d" % (V_L, V_L, V_T1))
    for i in range(64):
        L.append("v_mul_f32 v%d, v%d, v%d" % (ACC + i, ACC + i, V_T1))
    for u in pend_p:
        for i in range(8):
            p = PB[u % nb] + i
            L += ["v_lshlrev_b32 v%d, 16, v%d" % (ET, p), "v_and_b32 v%d, 0xffff0000, v%d" % (ET + 1, p),
                  "v_mul_f32 v%d, v%d, v%d" % (ET, ET, V_T1), "v_mul_f32 v%d, v%d, v%d" % (ET + 1, ET + 1, V_T1),
                  "v_cvt_pk_bf16_f32 v%d, v%d, v%d" % (p, ET, ET + 1)]
    L += softmax_ops(t, False, nb)
    L.append("s_nop 1")
    L.append("s_branch L_back%d" % t)
    return L


S_EP = 80
EPOCH = f"""
s_waitcnt lgkmcnt(0)
s_mul_i32 s{S_EP+2}, s{S_EP+2}, 1664525
s_add_u32 s{S_EP+2}, s{S_EP+2}, 1013904223
"""
EPOCH_NEXT = f"""s_or_b32 s{S_T0}, s{S_HP}, s{S_W}
s_cmp_lg_u32 s{S_T0}, 0
s_cbranch_scc1 L_noep
v_mov_b32 v12, 0
global_store_dword v12, v6, s[{S_EP}:{S_EP+1}]
L_noep:
"""
H_FL, H_TAG, H_PL, H_RD, H_OUT = 1, 6, 4, 5, 2


def handoff_addr(i, mode):
    o = f"""
v_and_b32 v12, 63, v0
s_lshl_b32 s{S_T1}, s{S_W}, 11
s_lshl_b32 s{S_T2}, s{S_HP}, 3
s_add_u32 s{S_T1}, s{S_T1}, s{S_T2}
v_lshlrev_b32 v13, 9, v12
v_add_u32 v13, s{S_T1}, v13
v_mov_b32 v14, 0x7fff0000
v_cmp_gt_u32 vcc, 4, v12
v_mov_b32 v{H_TAG}, s{S_EP+2}
s_lshl_b32 s{S_T1}, s{S_HP}, 9
v_cndmask_b32 v{H_FL}, v14, v13, vcc
v_not_b32 v{H_TAG+1}, v{H_TAG}
v_and_b32 v13, 15, v12
v_lshlrev_b32 v14, 3, v13
v_add_u32 v{H_PL}, s{S_T1}, v14
s_lshr_b32 s{S_T1}, s{S_HP}, 1
s_lshl_b32 s{S_T1}, s{S_T1}, 11
s_and_b32 s{S_T2}, s{S_HP}, 1
s_lshl_b32 s{S_T2}, s{S_T2}, 8
s_add_u32 s{S_T1}, s{S_T1}, s{S_T2}
v_lshrrev_b32 v14, 4, v12
"""
    if mode == "q":
        o += f"""
s_lshl_b32 s{S_T2}, s{S_W}, 6
s_add_u32 s{S_T1}, s{S_T1}, s{S_T2}
v_lshlrev_b32 v15, 9, v14
v_lshl_add_u32 v15, v13, 2, v15
v_add_u32 v{H_RD}, s{S_T1}, v15
v_lshrrev_b32 v15, 2, v13
v_lshlrev_b32 v15, 11, v15
v_lshl_add_u32 v15, v14, 4, v15
v_and_b32 v13, 3, v13
v_lshl_add_u32 v15, v13, 2, v15
s_lshl_b32 s{S_T2}, s{S_W}, 13
"""
    else:
        o += f"""
v_lshlrev_b32 v15, 9, v14
v_lshl_add_u32 v15, v13, 4, v15
v_add_u32 v{H_RD}, s{S_T1}, v15
v_lshlrev_b32 v15, 11, v13
v_lshl_add_u32 v15, v14, 4, v15
s_mov_b32 s{S_T2}, 0
"""
    o += f"""
s_and_b32 s{S_T1}, s{S_HP}, 3
s_lshl_b32 s{S_T1}, s{S_T1}, 15
s_add_u32 s{S_T2}, s{S_T2}, s{S_T1}
s_lshr_b32 s{S_T1}, s{S_HP}, 2
s_lshl_b32 s{S_T1}, s{S_T1}, 6
s_add_u32 s{S_T2}, s{S_T2}, s{S_T1}
v_add_u32 v{H_OUT}, s{S_T2}, v15
"""
    return [l.strip() for l in o.strip().split("\n") if l.strip()]


def reduce_code(cfg, i, mode, tag):
    nd = 1 if mode == "q" else 4
    B = 16
    if isinstance(i, int):
        o = f"s_mov_b32 s{S_T0}, {i}\n"
    else:
        o = f"s_mov_b32 s{S_T0}, {i}\n"
    o += f"""
s_lshl_b32 s{S_T1}, s{S_T0}, 7
s_mov_b32 s{S_CNT}, 0
L_poll_{tag}:
buffer_load_dwordx2 v[12:13], v{H_PL}, s[{S_IN}:{S_IN+3}], s{S_T1} offen sc1
s_add_u32 s{S_CNT}, s{S_CNT}, 1
s_cmp_gt_u32 s{S_CNT}, {cfg.spin}
s_cbranch_scc1 L_go_{tag}
{"s_sleep %d" % cfg.psleep if cfg.psleep and tag == "l" else ""}
s_waitcnt vmcnt(0)
v_cmp_ne_u64 vcc, v[12:13], v[{H_TAG}:{H_TAG+1}]
s_cbranch_vccnz L_poll_{tag}
L_go_{tag}:
{tstamp(cfg, 4)}
s_lshl_b32 s{S_T1}, s{S_T0}, 14
"""
    sfx = "dword" if nd == 1 else "dwordx4"
    for p in range(16):
        o += f"buffer_load_{sfx} {vr(B + nd*p, nd)}, v{H_RD}, s[{S_WS}:{S_WS+3}], s{S_T1} offen {cfg.red_pol}\n"
        if p < 15:
            o += f"s_add_u32 s{S_T1}, s{S_T1}, 0x10000\n"
    o += f"""
s_add_u32 s{S_T0}, s{S_T0}, s{S_B}
s_and_b32 s{S_T0}, s{S_T0}, 3
s_lshl_b32 s{S_T0}, s{S_T0}, 8
s_mov_b32 s{S_T2}, 0xffff0000
"""
    A = B + 16 * nd
    for p in range(16):
        o += f"s_waitcnt vmcnt({15-p})\n"
        for j in range(nd):
            r = B + nd * p + j
            if p == 0:
                o += f"v_lshlrev_b32 v{A+2*j}, 16, v{r}\nv_and_b32 v{A+2*j+1}, s{S_T2}, v{r}\n"
            else:
                o += f"v_lshlrev_b32 v12, 16, v{r}\nv_and_b32 v13, s{S_T2}, v{r}\nv_add_f32 v{A+2*j}, v12, v{A+2*j}\nv_add_f32 v{A+2*j+1}, v13, v{A+2*j+1}\n"
    o += tstamp(cfg, 5) + "\n"
    for j in range(nd):
        o += f"v_cvt_pk_bf16_f32 v{12+j}, v{A+2*j}, v{A+2*j+1}\n"
    o += f"buffer_store_{sfx} {vr(12, nd)}, v{H_OUT}, s[{S_OUT}:{S_OUT+3}], s{S_T0} offen {cfg.out_pol}\n"
    return o


def reduce_dyn(cfg):
    B, A = 16, 80
    S_TODO, S_NOW = 94, 95
    poll = f"buffer_load_dwordx2 v[8:9], v3, s[{S_IN}:{S_IN+3}], 0 offen {cfg.ppol}\n"
    o = f"""s_mov_b32 s{S_T2}, 0xffff0000
s_mov_b32 s{S_TODO}, 15
s_mov_b32 s{S_CNT}, 0
{poll}s_waitcnt vmcnt(0)
L_dyn:
v_cmp_ne_u64 vcc, v[8:9], v[{H_TAG}:{H_TAG+1}]
s_add_u32 s{S_CNT}, s{S_CNT}, 1
s_cmp_gt_u32 s{S_CNT}, {cfg.spin}
s_cselect_b64 vcc, 0, vcc
s_mov_b32 s{S_NOW}, 0
"""
    for i in range(4):
        half = "vcc_lo" if i < 2 else "vcc_hi"
        o += f"""s_bitcmp1_b32 s{S_TODO}, {i}
s_cbranch_scc0 L_dn{i}
s_bfe_u32 s{S_T0}, {half}, {hex(0x100000 + 16*(i & 1))}
s_cbranch_scc1 L_dn{i}
s_bitset1_b32 s{S_NOW}, {i}
{tstamp(cfg, (4, 0, 1, 2)[i])}
s_mov_b32 s{S_T1}, {i*16384}
{"s_waitcnt vmcnt(46)" if i == 3 else ""}
"""
        for p in range(16):
            o += f"buffer_load_dword v{B+16*i+p}, v{H_RD}, s[{S_WS}:{S_WS+3}], s{S_T1} offen {cfg.red_pol}\n"
            if p < 15:
                o += f"s_add_u32 s{S_T1}, s{S_T1}, 0x10000\n"
        o += f"L_dn{i}:\n"
    o += f"""s_andn2_b32 s{S_TODO}, s{S_TODO}, s{S_NOW}
s_cbranch_scc0 L_dnp
{poll}L_dnp:
s_waitcnt vmcnt(0)
"""
    for i in range(4):
        o += f"s_bitcmp1_b32 s{S_NOW}, {i}\ns_cbranch_scc0 L_ds{i}\n"
        o += f"s_add_u32 s{S_T0}, s{S_B}, {i}\ns_and_b32 s{S_T0}, s{S_T0}, 3\ns_lshl_b32 s{S_T0}, s{S_T0}, 8\n"
        r = B + 16 * i
        o += f"v_lshlrev_b32 v{A}, 16, v{r}\nv_and_b32 v{A+1}, s{S_T2}, v{r}\n"
        for p in range(1, 16):
            o += f"v_lshlrev_b32 v12, 16, v{r+p}\nv_and_b32 v13, s{S_T2}, v{r+p}\nv_add_f32 v{A}, v12, v{A}\nv_add_f32 v{A+1}, v13, v{A+1}\n"
        o += f"v_cvt_pk_bf16_f32 v{A+2+i}, v{A}, v{A+1}\n"
        o += f"buffer_store_dword v{A+2+i}, v{H_OUT}, s[{S_OUT}:{S_OUT+3}], s{S_T0} offen {cfg.out_pol}\nL_ds{i}:\n"
    o += f"""s_cmp_lg_u32 s{S_TODO}, 0
s_cbranch_scc1 L_dyn
{tstamp(cfg, 5)}
"""
    o += EPOCH_NEXT
    return o


def reduce_loop(cfg):
    B, A = 16, 32
    S_I, S_DRY, S_PO, S_RO, S_OO = 50, 51, 52, 53, 54
    poll = f"buffer_load_dwordx2 v[8:9], v{H_PL}, s[{S_IN}:{S_IN+3}], s{S_PO} offen {cfg.ppol}\n"
    o = f"""s_mov_b32 s{S_T2}, 0xffff0000
s_mul_i32 s{S_T0}, s{S_W}, {SLOT}
s_add_u32 s{S_T0}, s{S_T0}, {AUX}
v_mov_b32 v11, s{S_T0}
s_mov_b32 s{S_I}, 0
s_mov_b32 s{S_PO}, 0
s_mov_b32 s{S_DRY}, {1 if cfg.dry else 0}
s_cmp_eq_u32 s{S_DRY}, 1
s_cbranch_scc1 L_rl_go
L_rl_start:
s_mov_b32 s{S_CNT}, 0
L_rl_wait:
ds_read_b32 v12, v11
s_add_u32 s{S_CNT}, s{S_CNT}, 1
s_cmp_gt_u32 s{S_CNT}, {cfg.spin}
s_cbranch_scc1 L_rl_on
s_sleep 1
s_waitcnt lgkmcnt(0)
v_cmp_ne_u32 vcc, v12, v{H_TAG}
s_cbranch_vccnz L_rl_wait
L_rl_on:
{tstamp(cfg, 3)}
{poll}s_waitcnt vmcnt(0)
L_rl_row:
s_mov_b32 s{S_CNT}, 0
L_rl_spin:
v_cmp_ne_u64 vcc, v[8:9], v[{H_TAG}:{H_TAG+1}]
s_cbranch_vccz L_rl_go
{poll}s_add_u32 s{S_CNT}, s{S_CNT}, 1
s_cmp_lt_u32 s{S_CNT}, {cfg.spin}
s_waitcnt vmcnt(0)
s_cbranch_scc1 L_rl_spin
L_rl_go:
s_lshl_b32 s{S_RO}, s{S_I}, 14
s_add_u32 s{S_OO}, s{S_B}, s{S_I}
s_and_b32 s{S_OO}, s{S_OO}, 3
s_lshl_b32 s{S_OO}, s{S_OO}, 8
s_cmp_eq_u32 s{S_DRY}, 1
s_cbranch_scc1 L_rl_sum
"""
    for p in range(16):
        o += f"buffer_load_dword v{B+p}, v{H_RD}, s[{S_WS}:{S_WS+3}], s{S_RO} offen {cfg.red_pol}\n"
        if p < 15:
            o += f"s_add_u32 s{S_RO}, s{S_RO}, 0x10000\n"
    o += f"s_add_u32 s{S_PO}, s{S_PO}, 128\ns_min_u32 s{S_PO}, s{S_PO}, 384\n{poll}L_rl_sum:\n"
    for p in range(16):
        o += f"s_waitcnt vmcnt({16-p})\n"
        q = B + p
        if p == 0:
            o += f"v_lshlrev_b32 v{A}, 16, v{q}\nv_and_b32 v{A+1}, s{S_T2}, v{q}\n"
        else:
            o += f"v_lshlrev_b32 v12, 16, v{q}\nv_and_b32 v13, s{S_T2}, v{q}\nv_add_f32 v{A}, v12, v{A}\nv_add_f32 v{A+1}, v13, v{A+1}\n"
    o += f"""v_cvt_pk_bf16_f32 v12, v{A}, v{A+1}
s_cmp_eq_u32 s{S_DRY}, 1
s_mov_b32 s{S_DRY}, 0
s_cbranch_scc1 L_rl_start
buffer_store_dword v12, v{H_OUT}, s[{S_OUT}:{S_OUT+3}], s{S_OO} offen {cfg.out_pol}
s_add_u32 s{S_I}, s{S_I}, 1
s_cmp_lt_u32 s{S_I}, 4
s_waitcnt vmcnt(1)
s_cbranch_scc1 L_rl_row
{tstamp(cfg, 5)}
"""
    o += EPOCH_NEXT
    return o


def reduce_seq(cfg):
    B, A = 16, 80
    rounds = [[int(ch) for ch in r] for r in cfg.rounds.split(",")]
    o = f"s_mov_b32 s{S_T2}, 0xffff0000\n"
    poll = lambda r: f"buffer_load_dwordx2 v[8:9], v{H_PL if len(r) == 1 else 3}, s[{S_IN}:{S_IN+3}], 0 offen offset:{128*r[0]} {cfg.ppol}\n"
    go = f"""s_mov_b32 s{S_CNT}, 0
L_go_%s:
ds_read_b32 v12, v11
s_add_u32 s{S_CNT}, s{S_CNT}, 1
s_cmp_gt_u32 s{S_CNT}, {cfg.spin}
s_cbranch_scc1 L_gone_%s
s_sleep 1
s_waitcnt lgkmcnt(0)
v_cmp_ne_u32 vcc, v12, v{H_TAG}
s_cbranch_vccnz L_go_%s
L_gone_%s:
"""
    if cfg.ldsgo:
        o += f"s_mul_i32 s{S_T0}, s{S_W}, {SLOT}\ns_add_u32 s{S_T0}, s{S_T0}, {AUX}\nv_mov_b32 v11, s{S_T0}\n"
    if cfg.early:
        if cfg.esleep:
            o += f"s_sleep {cfg.esleep}\n"
        o += poll(rounds[0]) + f"s_waitcnt vmcnt(0)\nv_cmp_ne_u64 vcc, v[8:9], v[{H_TAG}:{H_TAG+1}]\ns_mov_b32 s94, 1\ns_cbranch_vccz L_sg0\ns_mov_b32 s94, 0\n"
    if cfg.ldsgo:
        o += go % (("a",) * 4)
    o += tstamp(cfg, 3) + "\n"
    o += poll(rounds[0]) + "s_waitcnt vmcnt(0)\n"
    for n, r in enumerate(rounds):
        o += f"""s_mov_b32 s{S_CNT}, 0
L_sp{n}:
v_cmp_ne_u64 vcc, v[8:9], v[{H_TAG}:{H_TAG+1}]
s_cbranch_vccz L_sg{n}
{poll(r)}s_add_u32 s{S_CNT}, s{S_CNT}, 1
s_cmp_lt_u32 s{S_CNT}, {cfg.spin}
s_waitcnt vmcnt(0)
s_cbranch_scc1 L_sp{n}
L_sg{n}:
"""
        for i in r:
            o += tstamp(cfg, (4, 0, 1, 2)[i]) + f"\ns_mov_b32 s{S_T1}, {i*16384}\n"
            for p in range(16):
                o += f"buffer_load_dword v{B+16*i+p}, v{H_RD}, s[{S_WS}:{S_WS+3}], s{S_T1} offen {cfg.red_pol}\n"
                if p < 15:
                    o += f"s_add_u32 s{S_T1}, s{S_T1}, 0x10000\n"
        k = 0
        if n + 1 < len(rounds):
            if cfg.early and n == 0:
                o += "s_cmp_eq_u32 s94, 1\ns_cbranch_scc1 L_e_nopoll\n" + poll(rounds[n + 1]) + "L_e_nopoll:\n"
            else:
                o += poll(rounds[n + 1])
                k = 1
        left = 16 * len(r) + k
        for i in r:
            o += f"s_add_u32 s{S_T0}, s{S_B}, {i}\ns_and_b32 s{S_T0}, s{S_T0}, 3\ns_lshl_b32 s{S_T0}, s{S_T0}, 8\n"
            for p in range(16):
                left -= 1
                o += f"s_waitcnt vmcnt({left})\n"
                q = B + 16 * i + p
                if p == 0:
                    o += f"v_lshlrev_b32 v{A}, 16, v{q}\nv_and_b32 v{A+1}, s{S_T2}, v{q}\n"
                else:
                    o += f"v_lshlrev_b32 v12, 16, v{q}\nv_and_b32 v13, s{S_T2}, v{q}\nv_add_f32 v{A}, v12, v{A}\nv_add_f32 v{A+1}, v13, v{A+1}\n"
            o += f"v_cvt_pk_bf16_f32 v{A+2+i}, v{A}, v{A+1}\ns_mov_b32 s{50+i}, s{S_T0}\n"
        if n + 1 < len(rounds):
            o += "s_waitcnt vmcnt(0)\n"
        else:
            o += tstamp(cfg, 5) + "\n"
        for i in r:
            o += f"buffer_store_dword v{A+2+i}, v{H_OUT}, s[{S_OUT}:{S_OUT+3}], s{50+i} offen {cfg.out_pol}\n"
        if cfg.early and n == 0:
            o += "s_cmp_eq_u32 s94, 0\ns_cbranch_scc1 L_e_late\n" + go % (("b",) * 4) + poll(rounds[1]) + "s_waitcnt vmcnt(0)\nL_e_late:\n"
    o += EPOCH_NEXT
    return o


REG = re.compile(r"v\[(\d+):(\d+)\]|v(\d+)")


def regs_of(tok):
    m = REG.fullmatch(tok.strip().lstrip("-"))
    if not m:
        return set()
    if m.group(3):
        return {int(m.group(3))}
    return set(range(int(m.group(1)), int(m.group(2)) + 1))


def parse(line):
    l = line.split(";")[0].strip()
    if not l or l.endswith(":") or l.startswith("."):
        return None
    op, _, rest = l.partition(" ")
    toks = [t.strip() for t in rest.split(",")] if rest else []
    toks = [t.split(" ")[0] for t in toks]
    rd, wr = set(), set()
    if op.startswith("v_cmp"):
        for t in toks[1:]:
            rd |= regs_of(t)
    elif op.startswith("v_permlane"):
        rd = wr = regs_of(toks[0]) | regs_of(toks[1])
    elif op.startswith(("v_readfirstlane", "v_readlane")):
        rd = regs_of(toks[1])
    elif op.startswith("v_"):
        wr = regs_of(toks[0])
        for t in toks[1:]:
            rd |= regs_of(t)
        if op.startswith(("v_fmac", "v_writelane")):
            rd |= wr
    elif op.startswith("ds_read"):
        wr = regs_of(toks[0]); rd = regs_of(toks[1])
    elif op.startswith("ds_write"):
        rd = regs_of(toks[0]) | regs_of(toks[1])
    elif op.startswith(("buffer_store", "buffer_atomic", "global_store", "global_atomic")):
        for t in toks:
            rd |= regs_of(t)
    elif op.startswith(("buffer_load", "global_load")):
        if "lds" in l.split():
            rd = regs_of(toks[0])
        else:
            wr = regs_of(toks[0]); rd = regs_of(toks[1])
    return op, rd, wr, toks


def fix_hazards(lines):
    out = []
    hist = []
    t = 0
    last_mf = -100
    for line in lines:
        p = parse(line)
        if p is None:
            out.append(line)
            continue
        op, rd, wr, toks = p
        is_mf = op.startswith("v_mfma")
        is_valu = op.startswith("v_") and not is_mf
        is_mem = op.startswith(("ds_", "buffer_", "global_"))
        need = 0
        tt = max(t, last_mf + 8) if is_mf else t
        dist = 0
        for (o2, r2, w2, k2, st2, t2) in reversed(hist[-40:]):
            m2 = o2.startswith("v_mfma")
            v2 = o2.startswith("v_") and not m2
            req = 0
            d = dist
            if v2 and o2.startswith(("v_exp", "v_rcp", "v_log", "v_rsq")) and is_valu and not op.startswith(("v_exp", "v_rcp")) and (w2 & rd):
                req = 1
            if v2 and is_mf and (w2 & rd):
                req = 2
            if v2 and op.startswith("v_permlane") and (w2 & rd):
                req = 2
            if v2 and op.startswith(("v_readfirstlane", "v_readlane")) and (w2 & rd):
                req = 1
            if o2.startswith(("buffer_store_dwordx4", "global_store_dwordx4")) and is_valu and (regs_of(k2[0] if o2.startswith("buffer") else k2[1]) & wr):
                req = 2
            if m2 and (is_valu or is_mem) and (w2 & (rd | wr)):
                req = 12
                d = tt - t2 - 1
            if m2 and is_mf and (w2 & (regs_of(toks[1]) | regs_of(toks[2]))):
                req = 12
                d = tt - t2 - 1
            if m2 and is_mf and (w2 & regs_of(toks[3])) and regs_of(toks[3]) != w2:
                req = 10
                d = tt - t2 - 1
            if m2 and is_valu and (regs_of(k2[3]) & wr):
                req = max(req, 7)
                d = tt - t2 - 1
            if req > d:
                need = max(need, req - d)
            dist += st2
        while need > 0:
            k = min(need, 16)
            out.append("  s_nop %d" % (k - 1))
            hist.append(("s_nop", set(), set(), [], k, t))
            t += k
            need -= k
        tt = max(t, last_mf + 8) if is_mf else t
        st_ = int(toks[0]) + 1 if op == "s_nop" else 1
        hist.append((op, rd, wr, toks, st_, tt))
        t = tt + st_
        if is_mf:
            last_mf = tt
        out.append(line)
    return out


TS = [4, 8, 10, 64, 66, 68, 70, 72, 96, 98]


def tstamp(cfg, k):
    return f"s_memrealtime s[{TS[k]}:{TS[k]+1}]" if cfg.tst else ""


def tst_end(cfg, base):
    o = f"""s_waitcnt vmcnt(0)
{tstamp(cfg, 7)}
s_lshl_b32 s14, s2, 3
s_add_u32 s14, s14, s{S_W}
s_add_u32 s14, s14, {base}
s_lshl_b32 s14, s14, 6
s_add_u32 s14, s14, 0x2300000
s_add_u32 s12, s74, s14
s_addc_u32 s13, s75, 0
s_waitcnt lgkmcnt(0)
v_mov_b32 v14, 0
"""
    for k in range(8):
        o += f"v_mov_b32 v{16+k}, s{TS[k]}\n"
    o += f"""v_mov_b32 v24, s60
v_mov_b32 v25, s{S_CNT}
global_store_dwordx4 v14, v[16:19], s[12:13]
global_store_dwordx4 v14, v[20:23], s[12:13] offset:16
v_mov_b32 v26, s96
v_mov_b32 v27, s98
global_store_dwordx4 v14, v[24:27], s[12:13] offset:32
"""
    return o


def span_end(cfg, base):
    if not cfg.span:
        return ""
    return f"""s_waitcnt vmcnt(0)
s_memrealtime s[{S_STT}:{S_STT+1}]
s_lshl_b32 s14, s2, 3
s_add_u32 s14, s14, s{S_W}
s_lshl_b32 s14, s14, 3
s_add_u32 s14, s14, {0x2200000 + base*8}
s_add_u32 s12, s74, s14
s_addc_u32 s13, s75, 0
s_waitcnt lgkmcnt(0)
v_mov_b32 v12, s60
v_mov_b32 v13, s{S_STT}
v_mov_b32 v14, 0
global_store_dwordx2 v14, v[12:13], s[12:13]
"""


def gen_compute(cfg):
    st = Stream()
    R = st.raw
    R("""
L_compute:
v_and_b32 v%(ln)d, 63, v0
""" % dict(ln=V_T0))
    ln = V_T0
    t1 = V_T1
    R("s_waitcnt lgkmcnt(0)")
    R(rest_setup())
    if cfg.tlb:
        R(f"""s_load_dword s96, s[{S_K}:{S_K+1}], 0
s_load_dword s96, s[{S_V}:{S_V+1}], 0
s_load_dword s96, s[{S_WO}:{S_WO+1}], 0
s_load_dword s96, s[{S_WS}:{S_WS+1}], s{S_HPO}
s_load_dword s96, s[{S_OUT}:{S_OUT+1}], 0""")
    if cfg.codepf == 2:
        R(f"""
s_getpc_b64 s[94:95]
s_lshr_b32 s{S_T0}, s2, 3
s_lshl_b32 s{S_T0}, s{S_T0}, 2
s_add_u32 s{S_T0}, s{S_T0}, s{S_W}
s_lshl_b32 s{S_T0}, s{S_T0}, 7
s_load_dword s96, s[94:95], s{S_T0}
s_lshr_b32 s{S_T0}, s{S_T0}, 2
s_add_u32 s{S_T0}, s{S_T0}, 0x4000
s_load_dword s97, s[94:95], s{S_T0}
""")
    if cfg.codepf == 1:
        R("""
s_getpc_b64 s[%d:%d]
s_sub_u32 s44, s44, 0x1800
s_subb_u32 s45, s45, 0
v_lshlrev_b32 v16, 7, v0
v_min_u32 v16, CODE_BYTES, v16
global_load_dword v255, v16, s[%d:%d]
""" % (S_T0, S_T0 + 1, S_T0, S_T0 + 1))
    R(f"""
v_lshrrev_b32 v18, 5, v{ln}              ; h
v_bfe_u32 v19, v{ln}, 2, 2
v_xor_b32 v20, v18, v19                  ; h^g
v_lshlrev_b32 v20, 4, v20
v_and_b32 v21, 3, v{ln}
v_lshl_add_u32 v20, v21, 6, v20          ; (key&3)*64 + (h^g)*16
v_bfe_u32 v22, v{ln}, 2, 3               ; key>>2
v_lshl_add_u32 v{V_KL}, v22, 10, v20
v_bfe_u32 v22, v{ln}, 3, 2               ; tok>>3
v_lshl_add_u32 v23, v22, 10, v20
v_bfe_u32 v22, v{ln}, 2, 1
v_lshl_add_u32 v23, v22, 8, v23
s_and_b32 s{S_T0}, s{S_W}, 1
s_lshl_b32 s{S_T0}, s{S_T0}, 12
s_add_u32 s{S_T0}, s{S_T0}, {AUX}
v_add_u32 v{V_XL}, s{S_T0}, v23
v_bfe_u32 v22, v{ln}, 4, 1               ; G&1
v_lshlrev_b32 v22, 5, v22
v_lshl_add_u32 v22, v19, 6, v22          ; r*64 + (G&1)*32
v_lshl_add_u32 v23, v21, 3, v22          ; + c4*8
v_lshl_add_u32 v{V_VL}, v18, 10, v23
v_and_b32 v23, 1, v21
v_lshrrev_b32 v24, 1, v21
v_lshl_add_u32 v23, v23, 1, v24          ; bitswap(c4)
v_lshl_add_u32 v23, v23, 3, v22
s_lshr_b32 s{S_T0}, s{S_W}, 1
s_lshl_b32 s{S_T0}, s{S_T0}, 14
v_lshl_add_u32 v24, v18, 11, v23
v_add_u32 v{V_WQL}, s{S_T0}, v24
s_lshl_b32 s{S_T0}, s{S_W}, 8
v_lshl_add_u32 v24, v18, 10, v23
v_add_u32 v{V_WOL}, s{S_T0}, v24
s_mul_i32 s{S_T0}, s{S_W}, {SLOT}
s_add_u32 s{S_T0}, s{S_T0}, {AUX}
v_lshlrev_b32 v24, 4, v{ln}
v_add_u32 v{V_OW}, s{S_T0}, v24
{f"s_lshr_b32 s{S_T0}, s{S_B}, 2" if cfg.khrot else f"s_mov_b32 s{S_T0}, 0"}            ; first head
s_mul_i32 s{S_T0}, s{S_T0}, {2*SLOT}
s_add_u32 s{S_T0}, s{S_T0}, {AUX}
v_add_u32 v{V_OR}, s{S_T0}, v24          ; O read (first head, th=0)
s_lshl_b32 s{S_T0}, s{S_W}, 12
v_add_u32 v{V_ST}, s{S_T0}, v24          ; partial store voffset: w*4096 + lane*16
s_mov_b32 s{S_THR}, {hex(f2u(2.0**cfg.thr_log2 if not cfg.force_rare else 4.0))}
s_mov_b32 s{S_QS}, {hex(f2u(QSCALE))}
""")
    R(EPOCH)
    if cfg.prio:
        R(f"s_setprio {cfg.prio}")
    if cfg.itlb:
        R("%WARM%")
    stamp(st, cfg, 1)

    def addr_update(c):
        base = (c % 4) * SLOT
        if c < 8:
            return [f"v_add_u32 v{V_XA0}, {base}, v{V_XL}", f"v_add_u32 v{V_TA}, {base}, v{V_WQL}",
                    f"v_xor_b32 v{V_XA1}, 32, v{V_XA0}"]
        if c < 16:
            return [f"v_add_u32 v{V_XA0}, {base}, v{V_KL}", f"v_add_u32 v{V_TA}, {base}, v{V_VL}",
                    f"v_xor_b32 v{V_XA1}, 32, v{V_XA0}"]
        return [f"v_add_u32 v{V_TA}, {base}, v{V_WOL}"]

    fr_i = [0]

    def next_frag():
        f = FR + 4 * (fr_i[0] % 8)
        fr_i[0] += 1
        return f

    def tr_pair(f, off0, off1, chunk, lead=None):
        return RG([f"ds_read_b64_tr_b16 {vr(f,2)}, v{V_TA} offset:{off0}",
                   f"ds_read_b64_tr_b16 {vr(f+2,2)}, v{V_TA} offset:{off1}"], chunk, lead)

    mfs, wins, pre, shadow, bar = [], [], {}, {}, {}
    xi = 0
    for c in range(8):
        bar[len(mfs) - 1 - cfg.BL if c else -1] = c
        xr = []
        for s in range(4):
            xf = XF + 4 * (xi % 4)
            xi += 1
            xr.append((xf, RG([f"ds_read_b128 {vr(xf,4)}, v{V_XA0 + (s & 1)} offset:{(s >> 1) * 512}"], c, cfg.D1)))
        order = [(s, t) for s in range(4) for t in range(4)]
        if c == 7 and cfg.t1:
            order = [(s, t) for t in range(4) for s in range(4)]
        for s, t in order:
            f = next_frag()
            rg = tr_pair(f, (4 * s) * 1024 + t * 256, (4 * s + 1) * 1024 + t * 256, c, cfg.D1)
            cin = "0" if (c == 0 and s == 0) else ACC + 16 * t
            mfs.append(MF(mfma(ACC + 16 * t, f, xr[s][0], cin), [xr[s][1], rg], c))
    n1 = len(mfs)
    pre[n1] = [lambda: stamp(st, cfg, 2)] + (["s_waitcnt vmcnt(0)"] if cfg.codepf == 1 else [])
    for h in range(8):
        ops = [f"v_mul_f32 v{ACC+8*h+i}, s{S_QS}, v{ACC+8*h+i}" for i in range(8)]
        ops += [f"v_cvt_pk_bf16_f32 v{QR+4*h+i}, v{ACC+8*h+2*i}, v{ACC+8*h+2*i+1}" for i in range(4)]
        if cfg.t1:
            wins.append((ops, n1 - 16 + 4 * (h >> 1) + 5, n1 + h - 1))
        else:
            pre[n1] += ops
    items = kv_items(cfg)
    NB = cfg.skew + 1
    start = {}
    for q, (kind, t) in enumerate(items):
        c = 8 + (q >> 2)
        tb = (q & 3) * 8192
        if (q & 3) == 0:
            bar[len(mfs) - 1 - cfg.BL] = c
        start[(kind, t)] = len(mfs)
        if kind == "K":
            S = SB[t % NB]
            for s in range(8):
                f = next_frag()
                rg = RG([f"ds_read_b128 {vr(f,4)}, v{V_XA0 + (s & 1)} offset:{tb + (s >> 1) * 256}"], c, cfg.D2)
                cin = S if s else ("0" if t <= cfg.skew else NEGM)
                mfs.append(MF(mfma(S, f, QR + 4 * s, cin), [rg], c))
        else:
            order = [(u, d) for u in range(2) for d in range(4)]
            if t == 15 and cfg.t3:
                order = [(u, d) for d in range(4) for u in range(2)]
            for u, d in order:
                if True:
                    f = next_frag()
                    rg = tr_pair(f, tb + (4 * u) * 1024 + d * 256, tb + (4 * u + 2) * 1024 + d * 256, c, cfg.D2)
                    cin = "0" if (t == 0 and u == 0) else ACC + 16 * d
                    mfs.append(MF(mfma(ACC + 16 * d, f, PB[t % NB] + 4 * u, cin), [rg], c))
    S = SB[0]
    ops0 = ["v_max3_f32 v%d, v%d, v%d, v%d" % (V_T0, S, S + 1, S + 2)]
    for i in range(3, 15, 2):
        ops0.append("v_max3_f32 v%d, v%d, v%d, v%d" % (V_T0, V_T0, S + i, S + i + 1))
    ops0.append("v_max_f32 v%d, v%d, v%d" % (V_T0, V_T0, S + 15))
    ops0.append("v_mov_b32 v%d, v%d" % (V_T1, V_T0))
    ops0.append("v_permlane32_swap_b32 v%d, v%d" % (V_T0, V_T1))
    ops0.append("v_max_f32 v%d, v%d, v%d" % (V_T0, V_T0, V_T1))
    ops0.append("v_sub_f32 v%d, 0, v%d" % (NEGM, V_T0))
    ops0 += softmax_ops(0, True, NB)
    ops0.append("v_mov_b32 v%d, v%d" % (V_L, LT[0]))
    chain = [(ops0, start[("K", 1)] + 1, start[("V", 0)] - 1, None)]
    nb = ["v_mov_b32 v%d, v%d" % (NEGM + i, NEGM) for i in range(1, 16)]
    chain.append((nb, start[("V", 0)], start[("K", cfg.skew + 1)] - 2, None))
    for t in range(1, 16):
        ops = softmax_ops(t, t <= cfg.skew, NB) + ["v_cmp_nge_f32 vcc, s%d, v%d" % (S_THR, LT[t & 1])]
        chain.append((ops, start[("K", t)] + 9, start[("V", t)] - 1, t))
    rare = []

    def place_check(t, g):
        live = [u for u in range(t + 1, 16) if start[("K", u)] <= g and u > cfg.skew]
        pend = [u for u in range(t) if start[("V", u)] + 7 > g]
        rare.extend(rare_path(t, NB, live, pend))
        return ["s_cbranch_vccnz L_rare%d" % t, "L_back%d:" % t], "v_add_f32 v%d, v%d, v%d" % (V_L, LT[t & 1], V_L)
    wins.append(("chain", chain, place_check))
    pv = start[("V", 15)]
    nend = len(mfs)
    lops = [f"v_mov_b32 v{V_T0}, v{V_L}", "s_nop 0", "s_nop 0", f"v_permlane32_swap_b32 v{V_L}, v{V_T0}",
            f"v_add_f32 v{V_L}, v{V_L}, v{V_T0}", f"v_rcp_f32 v{V_L}, v{V_L}"]

    def norm_ops(ks, packed):
        a = ACC + 8 * ks
        if packed:
            o = [f"v_pk_mul_f32 v[{a+2*i}:{a+2*i+1}], v[{a+2*i}:{a+2*i+1}], v[{V_L}:{V_L+1}] op_sel_hi:[1,0]" for i in range(4)]
        else:
            o = [f"v_mul_f32 v{a+i}, v{V_L}, v{a+i}" for i in range(8)]
        o += [f"v_cvt_pk_bf16_f32 v{QR+4*ks+i}, v{a+2*i}, v{a+2*i+1}" for i in range(4)]
        return o + [(f"ds_write_b128 v{V_OW}, {vr(QR+4*ks,4)} offset:{ks*1024}", 12)]
    if cfg.t3:
        wins.append((lops, pv, pv + 2))
        for ks in range(cfg.t3):
            wins.append((norm_ops(ks, False), pv + 3 + 2 * (ks >> 1), nend - 1))
        post = sum((norm_ops(ks, cfg.pk) for ks in range(cfg.t3, 8)), [])
    else:
        post = lops + sum((norm_ops(ks, cfg.pk) for ks in range(8)), [])
    emit_schedule(st, mfs, wins, pre, shadow, cfg, cfg.D2, bar, addr_update)
    stamp(st, cfg, 3)
    for o in pre.get(nend, []) + post:
        if isinstance(o, tuple):
            st.ds(o[0])
        else:
            R(o)
    R((f"s_lshr_b32 s{S_T0}, s{S_B}, 2" if cfg.khrot else f"s_mov_b32 s{S_T0}, 0") + f"\ns_xor_b32 s{S_T0}, s{S_T0}, 1\ns_mul_i32 s{S_T0}, s{S_T0}, {2*SLOT}\ns_add_u32 s{S_T0}, s{S_T0}, {AUX}")
    R(f"v_and_b32 v{V_OW+0}, 63, v0\nv_lshlrev_b32 v{V_T0}, 4, v{V_OW}")
    st.lines.pop(); st.lines.pop()
    R(f"v_and_b32 v{V_T1}, 63, v0\nv_lshlrev_b32 v{V_T1}, 4, v{V_T1}\nv_add_u32 v{V_XA0}, s{S_T0}, v{V_T1}")
    mfs, wins, pre, shadow, bar = [], [], {}, {}, {}
    orgs = {}
    for i in range(4):
        A = ACC + 32 * (i & 1)
        for kh in range(2):
            c = 16 + 2 * i + kh
            bar[len(mfs) - 1 - cfg.BL if c > 16 else -1] = c
            for ks in range(8):
                f = next_frag()
                rg = tr_pair(f, (4 * ks) * 1024, (4 * ks + 2) * 1024, c, cfg.D3)
                for th in range(2):
                    o = OF + 64 * kh + 32 * th + 4 * ks
                    reads = [rg]
                    if i == 0:
                        areg = V_OR if kh == 0 else V_XA0
                        reads.append(RG([f"ds_read_b128 {vr(o,4)}, v{areg} offset:{th*SLOT + ks*1024}"], 16, cfg.D3 - 2))
                        reads[-1].free = True
                    cin = "0" if (kh == 0 and ks == 0) else A + 16 * th
                    mfs.append(MF(mfma(A + 16 * th, f, o, cin), reads, c))

    def cvt_ops(i, f):
        A = ACC + 32 * (i & 1) + 8 * f
        return [f"v_cvt_pk_bf16_f32 v{PK+4*f+j}, v{A+2*j}, v{A+2*j+1}" for j in range(4)]

    def st_op(i, f):
        return [f"buffer_store_dwordx4 {vr(PK+4*f,4)}, v{V_ST}, s[{S_WS}:{S_WS+3}], s{S_NC0+i} offen offset:{f*1024} {cfg.st_pol}"]

    def flag_op(i):
        return f"buffer_store_dwordx2 v[{H_TAG}:{H_TAG+1}], v{H_FL}, s[{S_IN}:{S_IN+3}], 0 offen offset:{128*i} {cfg.fpol}"
    wins.append(([f"s_add_u32 s{S_NC0+i}, s{S_HPO}, {i*16384}" for i in range(4)], 33, 40))
    vq, sent = [], set()

    def vwait(tag):
        p = max(k for k, t in enumerate(vq) if t == tag)
        n = len(vq) - 1 - p
        del vq[:p + 1]
        return f"s_waitcnt vmcnt({n})"
    if cfg.stmode == "late":
        vq += [("st", 0)] * 3 + [("st", 1), ("st", 0)] + [("st", 1)] * 3 + [("st", 2)] * 4
        wins.append((sum((cvt_ops(0, f) for f in range(4)), []), 33, 60))
        wins.append((handoff_addr(3, "q"), 40, 78))
        g = 80 + cfg.ST0
        for f in range(4):
            wins.append((st_op(0, f), g + 2 * f, 94))
        for f in range(4):
            wins.append((cvt_ops(1, f) + st_op(1, f), g + 2 * f + 3, 94))
        for f in range(4):
            wins.append((cvt_ops(2, f) + st_op(2, f), 97 + 3 * f, 126))
    else:
        wins.append((handoff_addr(3, "q"), 33, 60))
        ev = []
        for i in range(3):
            for f in range(4):
                ev.append((32 * (i + 1) + 2 + cfg.STS * f, "st", i, f))
        ev.append((cfg.FL0, "fl", 0, 0))
        ev.append((cfg.FL1, "fl", 1, 0))
        for g, kind, i, f in sorted(ev):
            if kind == "st":
                wins.append((cvt_ops(i, f) + st_op(i, f), g, 32 * (i + 2) - 1))
                vq.append(("st", i))
            elif g < 128:
                wins.append(([vwait(("st", i)), flag_op(i)], g, 127))
                vq.append(("fl", i))
                sent.add(i)
    if cfg.endbar and cfg.EB < 128:
        shadow[cfg.EB] = ["s_barrier"]
    emit_schedule(st, mfs, wins, pre, shadow, cfg, cfg.D3, bar, addr_update, virtual={23})
    stamp(st, cfg, 4)
    if cfg.tst:
        R(tstamp(cfg, 0))
    if cfg.stamps:
        vq.append("stamp")
    for f in range(4):
        R("\n".join(cvt_ops(3, f) + st_op(3, f)))
        vq.append(("st", 3))
    if cfg.tst:
        R(tstamp(cfg, 1))
    for i in range(4):
        if i not in sent:
            if ("st", i) in vq:
                R(vwait(("st", i)))
            R(flag_op(i))
            vq.append(("fl", i))
        if i == 1 and cfg.endbar and cfg.EB >= 128:
            R("s_barrier" if not cfg.ldsgo else f"ds_write_b32 v{V_OW}, v{H_TAG}")
        if i == 2 and cfg.tst:
            R(tstamp(cfg, 2))
    if cfg.tst:
        R(tstamp(cfg, 3))
    stamp(st, cfg, 8)
    if not cfg.seq:
        rc = reduce_code(cfg, 3, "q", "c").split("L_go_c:\n")
        R(rc[0] + "L_go_c:")
        stamp(st, cfg, 9)
        R(rc[1])
        R(EPOCH_NEXT)
    stamp(st, cfg, 10)
    if cfg.stamps:
        R("s_waitcnt vmcnt(0)")
        stamp(st, cfg, 5)
        R(f"s_memrealtime s[{S_STT}:{S_STT+1}]\ns_waitcnt lgkmcnt(0)\nv_mov_b32 v{V_T0}, s{S_STT}\nv_mov_b32 v{V_T1}, 28\nglobal_store_dword v{V_T1}, v{V_T0}, s[{S_STB}:{S_STB+1}]")
    if cfg.tst:
        R(tst_end(cfg, 0))
    if cfg.span:
        R(span_end(cfg, 0))
    R("s_endpgm")
    R("L_main_end:")
    R("\n".join(rare))
    if cfg.dbg:
        keep = []
        nmf = [0]
        for l in st.lines:
            t = l.strip()
            if "E" in cfg.dbg and t.startswith("v_exp"): continue
            if "A" in cfg.dbg and t.startswith("v_add_f32"): continue
            if "C" in cfg.dbg and t.startswith("v_cvt_pk") and (" v19" in t.split(",")[0] or " v20" in t.split(",")[0]): continue
            if "K" in cfg.dbg and t.startswith("ds_read_b128"): continue
            if "T" in cfg.dbg and t.startswith("ds_read_b64_tr"): continue
            if "W" in cfg.dbg and t.startswith("s_waitcnt lgkmcnt"): continue
            if "B" in cfg.dbg and (t.startswith("s_cbranch_vccnz") or t.startswith("v_cmp_nge")): continue
            if t.startswith("v_mfma"):
                nmf[0] += 1
                ph = 1 if nmf[0] <= 128 else 2 if nmf[0] <= 384 else 3
                if "xyz"[ph - 1] in cfg.dbg:
                    continue
                if str(ph) in cfg.dbg:
                    m = re.match(r"v_mfma_f32_32x32x16_bf16 v\[(\d+):\d+\], (v\[\d+:\d+\]), (v\[\d+:\d+\]), (.*)", t)
                    d = int(m.group(1)) + 8 * (nmf[0] >> 2 & 1)
                    for q in range(2):
                        dd = "v[%d:%d]" % (d + 4 * q, d + 4 * q + 3)
                        keep.append("  v_mfma_f32_16x16x32_bf16 %s, %s, %s, %s" % (dd, m.group(2), m.group(3), dd if m.group(4) != "0" else "0"))
                    continue
            keep.append(l)
        st.lines = keep
    n0 = len(st.lines)
    st.lines = fix_hazards(st.lines)
    if cfg.verbose:
        print("hazard nops inserted:", len(st.lines) - n0, file=sys.stderr)
    return st.text()


def rest_setup():
    return f"""
s_lshl_b32 s{S_GRP}, s{S_BR}, 3
s_add_u32 s{S_GRP}, s{S_GRP}, s{S_B}
s_lshl_b32 s18, s{S_GRP}, 8
s_add_u32 s18, s18, 0x1040000
s_add_u32 s{S_EP}, s74, s18
s_addc_u32 s{S_EP+1}, s75, 0
s_load_dword s{S_EP+2}, s[{S_EP}:{S_EP+1}], 0
s_lshl_b32 s10, s{S_B}, 3
s_add_u32 s10, s10, s91
s_lshl_b32 s10, s10, 17
s_lshl_b32 s13, s{S_HP}, 18
s_lshl_b32 s14, s{S_GRP}, 20
s_lshl_b32 s{S_HPO}, s{S_HP}, 16
s_lshl_b32 s15, s{S_GRP}, 13
s_add_u32 s15, s15, 0x1000000
s_lshl_b32 s90, s{S_BR}, 10
s_lshl_b32 s19, s{S_B}, 17
s_add_u32 s19, s19, s90
s_add_u32 s{S_K}, s66, s10
s_addc_u32 s{S_K+1}, s67, 0
s_mov_b32 s{S_K+2}, 0x20000
s_mov_b32 s{S_K+3}, 0x20000
s_add_u32 s{S_V}, s68, s10
s_addc_u32 s{S_V+1}, s69, 0
s_mov_b32 s{S_V+2}, 0x20000
s_mov_b32 s{S_V+3}, 0x20000
s_add_u32 s{S_WO}, s72, s13
s_addc_u32 s{S_WO+1}, s73, 0
s_mov_b32 s{S_WO+2}, 0x40000
s_mov_b32 s{S_WO+3}, 0x20000
s_add_u32 s{S_WS}, s74, s14
s_addc_u32 s{S_WS+1}, s75, 0
s_mov_b32 s{S_WS+2}, 0x100000
s_mov_b32 s{S_WS+3}, 0x20000
s_add_u32 s{S_IN}, s74, s15
s_addc_u32 s{S_IN+1}, s75, 0
s_mov_b32 s{S_IN+2}, 0x2000
s_mov_b32 s{S_IN+3}, 0x20000
s_add_u32 s{S_OUT}, s92, s19
s_addc_u32 s{S_OUT+1}, s93, 0
s_sub_u32 s{S_OUT+2}, 0x20000, s90
s_mov_b32 s{S_OUT+3}, 0x20000
"""


def gen_loader(cfg):
    L = []
    R = lambda t: L.extend(("  " + l.strip()) if not l.endswith(":") else l for l in t.strip("\n").split("\n"))
    vWQ, vX, vK, vV, vWO = 1, 2, 3, 4, 5
    R(f"""
L_loader:
s_sub_u32 s{S_W}, s{S_W}, 4
s_lshl_b32 s5, s5, 1
s_add_u32 s5, s5, s{S_ROT}
%ROT%
s_lshl_b32 s11, s{S_B}, 16      ; x offset
s_lshl_b32 s12, s{S_HP}, 9
s_mov_b32 s{S_X+2}, 0x10000
s_mov_b32 s{S_X+3}, 0x20000
s_sub_u32 s{S_WQ+2}, 0x400000, s12
s_mov_b32 s{S_WQ+3}, 0x20000
v_and_b32 v10, 63, v0
v_lshrrev_b32 v11, 4, v10               ; t = i>>4
v_bfe_u32 v12, v10, 2, 2                ; r
v_and_b32 v13, 3, v10                   ; c
v_lshlrev_b32 v14, 6, v11
v_lshl_add_u32 v15, v13, 4, v14         ; t*64 + c*16
s_and_b32 s{S_T0}, s{S_W}, 1
s_lshl_b32 s{S_T0}, s{S_T0}, 18
s_lshr_b32 s{S_T1}, s{S_W}, 1
s_lshl_b32 s{S_T1}, s{S_T1}, 8
s_add_u32 s{S_T0}, s{S_T0}, s{S_T1}
v_lshl_add_u32 v16, v12, 13, v15
v_add_u32 v{vWQ}, s{S_T0}, v16
s_lshl_b32 s{S_M8}, s{S_W}, 13
s_lshl_b32 s{S_M1}, s{S_W}, 10
v_and_b32 v16, 1, v11                   ; tq
s_and_b32 s{S_T0}, s{S_W}, 1
s_lshl_b32 s{S_T0}, s{S_T0}, 1
v_or_b32 v17, s{S_T0}, v16              ; g
v_xor_b32 v17, v17, v13
v_lshlrev_b32 v17, 4, v17
v_lshrrev_b32 v18, 1, v11               ; ch
v_lshl_add_u32 v17, v18, 6, v17
v_lshl_add_u32 v18, v16, 2, v12         ; 4tq + t3
v_lshl_add_u32 v17, v18, 10, v17
v_add_u32 v{vX}, s{S_M8}, v17           ; + 8*lw*1024
s_waitcnt lgkmcnt(0)
s_add_u32 s{S_X}, s64, s11
s_addc_u32 s{S_X+1}, s65, 0
s_add_u32 s{S_WQ}, s70, s12
s_addc_u32 s{S_WQ+1}, s71, 0
""")
    vq = []

    def pieces(c):
        base = (c % 4) * SLOT
        sa, sb = (50 + 2 * (c & 1), 51 + 2 * (c & 1)) if c < cfg.rst else (54, 55)
        P = []
        if c < 8:
            if cfg.ramp:
                pro = f"s_bfe_u32 s{sa}, s{S_ROT}, {hex(0x30000 + 4*c)}\n"
            else:
                pro = f"s_add_u32 s{sa}, s{S_ROT}, {c}\ns_and_b32 s{sa}, s{sa}, 7\n"
            pro += f"s_lshl_b32 s{sb}, s{sa}, 7\ns_lshl_b32 s{sa}, s{sa}, 19\n"
            for p in range(2):
                P.append(f"s_add_u32 m0, s{S_M1}, {base + AUX + p*4096}\ns_add_u32 s{S_T2}, s{sb}, {p*32768}\n"
                         f"buffer_load_dwordx4 v{vX}, s[{S_X}:{S_X+3}], s{S_T2} offen {cfg.nt_w} lds")
            for p in range(8):
                P.append(f"s_add_u32 m0, s{S_M8}, {base + p*1024}\ns_add_u32 s{S_T2}, s{sa}, {p*32768}\n"
                         f"buffer_load_dwordx4 v{vWQ}, s[{S_WQ}:{S_WQ+3}], s{S_T2} offen {cfg.nt_w} lds")
        elif c < 16:
            pro = ""
            for j in range(4):
                kind, t = kv_items(cfg)[(c - 8) * 4 + j]
                v, sr = (vK, S_K) if kind == "K" else (vV, S_V)
                for p in range(2):
                    if cfg.kvrot:
                        off = f"s_add_u32 s{S_T2}, s{S_KVR}, {t*8192 + p*4096}\ns_and_b32 s{S_T2}, s{S_T2}, 0x1ffff"
                    else:
                        off = f"s_mov_b32 s{S_T2}, {t*8192 + p*4096}"
                    P.append(f"s_add_u32 m0, s{S_M1}, {base + j*8192 + p*4096}\n{off}\n"
                             f"buffer_load_dwordx4 v{v}, s[{sr}:{sr+3}], s{S_T2} offen {cfg.nt_kv} lds")
        else:
            i, kh = (c - 16) >> 1, (c - 16) & 1
            pro = f"s_add_u32 s{sa}, s{S_B}, {i}\ns_and_b32 s{sa}, s{sa}, 3\ns_lshl_b32 s{sa}, s{sa}, 8\n"
            if cfg.khrot:
                pro += f"s_lshr_b32 s{sb}, s{S_B}, 2\ns_xor_b32 s{sb}, s{sb}, {kh}\ns_lshl_b32 s{sb}, s{sb}, 17\ns_add_u32 s{sa}, s{sa}, s{sb}\n"
            for p in range(8):
                if c >= cfg.rst:
                    rg = 256 - 32 * (24 - c) + 4 * p
                    P.append(f"s_add_u32 s{S_T2}, s{sa}, {p*4096 + (0 if cfg.khrot else kh << 17)}\n"
                             f"buffer_load_dwordx4 v[{rg}:{rg+3}], v{vWO}, s[{S_WO}:{S_WO+3}], s{S_T2} offen {cfg.nt_w}")
                    continue
                P.append(f"s_add_u32 m0, s{S_M8}, {base + p*1024}\ns_add_u32 s{S_T2}, s{sa}, {p*4096 + (0 if cfg.khrot else kh << 17)}\n"
                         f"buffer_load_dwordx4 v{vWO}, s[{S_WO}:{S_WO+3}], s{S_T2} offen {cfg.nt_w} lds")
        P[0] = pro + P[0]
        return P

    todo = [(c, k, len(pieces(c)), t) for c in range(cfg.rst) for k, t in enumerate(pieces(c))]
    rtodo = [(c, t) for c in range(cfg.rst, 24) for t in pieces(c)]
    rcum = {int(e[0], 36): int(e[1:]) for e in cfg.rplan.split(",") if e}
    nstaged = [0]

    def issue_staged(s):
        want = rcum.get(s, 0) * 4 if s in rcum else 0
        if s == max(rcum, default=16):
            want = 999
        while rtodo and nstaged[0] < want:
            c, t = rtodo.pop(0)
            R(t)
            vq.append(("r", c))
            nstaged[0] += 1

    def write_staged(c):
        wait_for(("r", c))
        R(f"v_add_u32 v9, {(c % 4) * SLOT}, v11")
        for p in range(8):
            rg = 256 - 32 * (24 - c) + 4 * p
            R(f"ds_write_b128 v9, v[{rg}:{rg+3}] offset:{p*1024}")

    def issue_to(pos):
        while todo and todo[0][0] + (todo[0][1] + 1) / todo[0][2] <= pos + 1e-6:
            c, k, n, t = todo.pop(0)
            if c == 1 and k == 0 and cfg.prow >= 0:
                R(f"s_waitcnt vmcnt({cfg.prow})")
            R(t)
            if cfg.pace and cfg.pace0 <= c <= cfg.pace1:
                R(cfg.pace.replace(";", "\n"))
            vq.append(("c", c))

    def lstamp(i):
        if cfg.lstamps:
            R(f"s_memtime s[{S_STT}:{S_STT+1}]\ns_waitcnt lgkmcnt(0)\nv_writelane_b32 v90, s{S_STT}, {i}")
    lstamp(50)
    issue_to(1)
    lstamp(51)
    R(rest_setup())
    R(f"v_lshlrev_b32 v11, 4, v10\nv_add_u32 v11, s{S_M8}, v11") if False else None
    if cfg.kvrot == 1:
        R(f"s_lshl_b32 s{S_KVR}, s{S_B}, 1\ns_add_u32 s{S_KVR}, s{S_KVR}, s91\ns_lshl_b32 s{S_KVR}, s{S_KVR}, 13")
    elif cfg.kvrot == 2:
        R(f"s_mul_i32 s{S_KVR}, s91, 5\ns_mul_i32 s{S_T0}, s{S_B}, 3\ns_add_u32 s{S_KVR}, s{S_KVR}, s{S_T0}\ns_lshl_b32 s{S_KVR}, s{S_KVR}, 13")
    elif cfg.kvrot == 3:
        R(f"s_lshl_b32 s{S_KVR}, s{S_B}, 1\ns_add_u32 s{S_KVR}, s{S_KVR}, s91\ns_and_b32 s{S_T0}, s{S_HP}, 1\ns_mul_i32 s{S_T0}, s{S_T0}, {cfg.kvd}\ns_add_u32 s{S_KVR}, s{S_KVR}, s{S_T0}\ns_lshl_b32 s{S_KVR}, s{S_KVR}, 13")
    R(f"""
v_lshl_add_u32 v16, v12, 8, v15
v_add_u32 v{vV}, s{S_M1}, v16
v_xor_b32 v16, s{S_W}, v13
v_lshl_add_u32 v16, v16, 4, v14
v_lshl_add_u32 v16, v12, 8, v16
v_add_u32 v{vK}, s{S_M1}, v16
v_lshl_add_u32 v16, v12, 10, v15
s_lshl_b32 s{S_T0}, s{S_W}, 15
v_add_u32 v{vWO}, s{S_T0}, v16
v_lshlrev_b32 v11, 4, v10
v_add_u32 v11, s{S_M8}, v11
""")
    depth = [int(ch, 16) / 4 for ch in cfg.plan]
    depth += [depth[-1]] * (24 - len(depth))

    def wait_for(*tags):
        pos = [k for k, t in enumerate(vq) if t in tags]
        if pos:
            n = len(vq) - 1 - max(pos)
            R(f"s_waitcnt vmcnt({n})")
            del vq[:max(pos) + 1]

    for s in range(23):
        assert s + depth[s] <= max(3, s + 2)
        issue_to(s + 1 + depth[s])
        issue_staged(s)
        if s + 2 >= cfg.rst and s + 2 < 24 and s >= 3:
            write_staged(s + 2)
        if s == 0:
            lstamp(48)
        if s == cfg.openin:
            R(f"""s_mul_i32 s{S_T0}, s{S_HP}, 520
v_lshlrev_b32 v6, 7, v10
v_mov_b32 v7, 0x7fff0000
v_cmp_gt_u32 vcc, 4, v0
v_mov_b32 v8, 0
v_mov_b32 v9, 0
v_lshlrev_b32 v6, 7, v10
v_subrev_u32 v16, 256, v0
v_cmp_gt_u32 vcc, 4, v16
s_nop 1
v_cndmask_b32 v6, v7, v6, vcc
buffer_store_dwordx2 v[8:9], v6, s[{S_IN}:{S_IN+3}], s{S_T0} offen sc1""")
            vq.append("open")
        if s == cfg.openout:
            R(f"""s_and_b32 s{S_T0}, s{S_HP}, 3
s_lshl_b32 s{S_T0}, s{S_T0}, 15
s_lshr_b32 s{S_T1}, s{S_HP}, 2
s_lshl_b32 s{S_T1}, s{S_T1}, 6
s_add_u32 s{S_T0}, s{S_T0}, s{S_T1}
v_and_b32 v6, 15, v10
v_lshlrev_b32 v6, 11, v6
v_lshrrev_b32 v7, 4, v10
v_lshl_add_u32 v6, v7, 8, v6
s_cmp_lg_u32 s{S_W}, 1
s_cbranch_scc1 L_noout
buffer_load_dword v7, v6, s[{S_OUT}:{S_OUT+3}], s{S_T0} offen
L_noout:""")
            vq.insert(0, "x") if False else None
        if s == 12:
            R(EPOCH)
        wait_for(("c", s if s < 22 else 23))
        if s >= cfg.rst:
            R("s_waitcnt lgkmcnt(%d)" % (8 if s < 22 and not (cfg.tst or cfg.cyc or cfg.lstamps) else 0 if s == 22 else 8))
        lstamp(2 * s)
        R("s_barrier")
        if cfg.tst and s in (0, 8, 16):
            R(tstamp(cfg, s // 8) if not cfg.seq else tstamp(cfg, 6) if s == 16 else tstamp(cfg, 8 + s // 8))
        if cfg.cyc:
            if s:
                R(f"s_waitcnt lgkmcnt(0)\nv_writelane_b32 v90, s100, {2*s-2}\nv_writelane_b32 v90, s58, {2*s-1}")
            R("s_memtime s[100:101]\ns_memrealtime s[58:59]")
        lstamp(2 * s + 1)
    if not cfg.seq:
        R(f"s_cmp_eq_u32 s{S_W}, 3\ns_cbranch_scc1 L_ld_done")
    R("\n".join(handoff_addr(0, "q" if cfg.seq else "w")))
    R(f"s_lshl_b32 s{S_T1}, s{S_HP}, 9\nv_and_b32 v3, {63 if cfg.dyn else 31}, v10\nv_lshlrev_b32 v3, 3, v3\nv_add_u32 v3, s{S_T1}, v3")
    lstamp(46)
    if cfg.endbar and not cfg.ldsgo:
        R("s_barrier")
    if cfg.tst and not cfg.seq:
        R(tstamp(cfg, 3))
    lstamp(47)
    R(reduce_loop(cfg) if cfg.loopred else reduce_dyn(cfg) if cfg.seq and cfg.dyn else reduce_seq(cfg) if cfg.seq else reduce_code(cfg, f"s{S_W}", "w", "l"))
    R("L_ld_done:")
    if cfg.lstamps or cfg.cyc:
        R(f"""s_waitcnt lgkmcnt(0)
v_writelane_b32 v90, s62, 49
v_writelane_b32 v90, s60, 50
s_lshl_b32 s14, s2, 2
s_add_u32 s14, s14, s{S_W}
s_lshl_b32 s14, s14, 8
s_add_u32 s14, s14, 0x2100000
s_add_u32 s{S_STT}, s74, s14
s_addc_u32 s{S_STT+1}, s75, 0
v_lshlrev_b32 v21, 2, v10
global_store_dword v21, v90, s[{S_STT}:{S_STT+1}]""")
    if cfg.tst:
        R(tst_end(cfg, 4))
    if cfg.span:
        R(span_end(cfg, 4))
    R("s_endpgm")
    return "\n".join(L) + "\n"


def gen_main(cfg):
    name = NAME + "_kernel"
    s = f""".globl {name}
.p2align 12
.p2align 8
.type {name},@function
{name}:
  s_cmp_ge_u32 s2, 256
  s_cbranch_scc1 L_exit
"""
    if cfg.stamps or cfg.lstamps or cfg.span or cfg.tst:
        s += f"  s_memrealtime s[60:61]\n  s_memtime s[62:63]\n"
    s += f"""
  s_bfe_u32 s{S_BR}, s2, 0x10002
  s_mul_i32 s5, s{S_BR}, 40
  s_add_u32 s8, s0, s5
  s_addc_u32 s9, s1, 0
  s_load_dwordx8 s[64:71], s[8:9], 0      ; x k v wq
  s_load_dwordx2 s[72:73], s[8:9], 32     ; wo
  s_load_dwordx2 s[74:75], s[0:1], 96     ; ws
  s_load_dwordx2 s[92:93], s[0:1], 80     ; out
  v_lshrrev_b32 v1, 6, v0
  s_lshr_b32 s4, s2, 3            ; slot
  s_and_b32 s{S_ROT}, s4, 1
  v_readfirstlane_b32 s{S_W}, v1
  s_and_b32 s91, s2, 3
  s_lshl_b32 s91, s91, 1
  s_add_u32 s91, s91, s{S_ROT}    ; hkv
  {f"s_lshr_b32 s{S_B}, s4, 2" if cfg.remap else f"s_bfe_u32 s{S_B}, s4, 0x30001"}   ; b
  {"s_bfe_u32 s5, s4, 0x10001" if cfg.remap else "s_lshr_b32 s5, s4, 4"}            ; half
  s_lshl_b32 s{S_HP}, s91, 1
  s_add_u32 s{S_HP}, s{S_HP}, s5  ; hp
"""
    if cfg.stamps:
        s += f"""
  s_waitcnt lgkmcnt(0)
  s_lshl_b32 s14, s2, 3
  s_add_u32 s14, s14, s{S_W}
  s_lshl_b32 s14, s14, 6
  s_add_u32 s14, s14, 0x2000000
  s_add_u32 s{S_STB}, s74, s14
  s_addc_u32 s{S_STB+1}, s75, 0
  v_mov_b32 v{V_T0}, s62
  v_mov_b32 v{V_T1}, 0
  global_store_dword v{V_T1}, v{V_T0}, s[{S_STB}:{S_STB+1}]
  v_mov_b32 v{V_T0}, s60
  v_mov_b32 v{V_T1}, 24
  global_store_dword v{V_T1}, v{V_T0}, s[{S_STB}:{S_STB+1}]
  s_waitcnt vmcnt(0)
"""
    s += f"""
  s_cmp_lt_u32 s{S_W}, 4
  s_cbranch_scc1 L_compute
"""
    s += gen_loader(cfg)
    comp = gen_compute(cfg)
    s += ".p2align 12\n" + comp
    s += "L_exit:\n  s_endpgm\nL_code_end:\n"
    s = s.replace("CODE_BYTES", "0x7f80")
    rot = {8: f"  s_lshl_b32 s5, s5, 1\n  s_add_u32 s{S_ROT}, s5, s{S_B}",
           -8: f"  s_mov_b32 s{S_ROT}, s{S_B}",
           4: f"  s_add_u32 s5, s5, s{S_B}\n  s_lshl_b32 s{S_ROT}, s5, 1",
           2: f"  s_add_u32 s5, s5, s{S_B}\n  s_lshl_b32 s{S_ROT}, s5, 2",
           1: f"  s_mov_b32 s{S_ROT}, 0"}[cfg.rot]
    if cfg.ramp:
        sizes = [int(ch) for ch in cfg.ramp]
        tabs = []
        for q in range(8):
            first, o = 0, []
            for n in sizes:
                o.append(first + ((q >> 2) if n == 2 else (q >> 1) if n == 4 else q % n))
                first += n
            o += [c for c in range(8) if c not in o]
            tabs.append(sum(c << (4 * i) for i, c in enumerate(o)))
        rot = f"  s_lshl_b32 s5, s5, 1\n  s_add_u32 s5, s5, s{S_B}\n  s_and_b32 s5, s5, 7\n  s_mov_b32 s{S_ROT}, {hex(tabs[0])}"
        for q in range(1, 8):
            rot += f"\n  s_cmp_eq_u32 s5, {q}\n  s_cselect_b32 s{S_ROT}, {hex(tabs[q])}, s{S_ROT}"
    s = s.replace("%ROT%", rot)
    return s


def gen_reduce(cfg):
    name = "reduce_kernel"
    s = f""".globl {name}
.p2align 8
.type {name},@function
{name}:
  s_cmp_ge_u32 s2, 256
  s_cbranch_scc1 L_rexit
  s_load_dwordx2 s[4:5], s[0:1], 96
  s_load_dwordx2 s[6:7], s[0:1], 80
  s_lshr_b32 s8, s2, 4            ; group
  s_and_b32 s9, s2, 15            ; slice
  s_lshl_b32 s10, s8, 20
  s_lshl_b32 s11, s9, 12
  s_add_u32 s10, s10, s11
  v_lshlrev_b32 v1, 4, v0
  s_mov_b32 s14, 0x100000
  s_mov_b32 s15, 0x20000
  s_mov_b32 s18, 0x100000
  s_mov_b32 s19, 0x20000
  s_waitcnt lgkmcnt(0)
  s_add_u32 s12, s4, s10
  s_addc_u32 s13, s5, 0
  s_mov_b32 s16, s6
  s_mov_b32 s17, s7
"""
    for p in range(16):
        s += f"  s_mov_b32 s20, {p*65536}\n  buffer_load_dwordx4 v[{16+4*p}:{19+4*p}], v1, s[12:15], s20 offen {cfg.red_pol}\n"
    s += """
  s_and_b32 s20, s8, 7
  s_lshl_b32 s20, s20, 17
  s_lshr_b32 s21, s8, 3
  s_lshl_b32 s21, s21, 10
  s_add_u32 s20, s20, s21
  s_and_b32 s21, s9, 1
  s_lshl_b32 s21, s21, 16
  s_add_u32 s20, s20, s21
  s_lshr_b32 s21, s9, 1
  s_lshl_b32 s21, s21, 7
  s_add_u32 s20, s20, s21
  v_and_b32 v2, 31, v0
  v_lshlrev_b32 v2, 11, v2
  v_lshrrev_b32 v3, 5, v0
  v_lshl_add_u32 v2, v3, 4, v2
  s_mov_b32 s22, 0xffff0000
"""
    for p in range(16):
        s += f"  s_waitcnt vmcnt({15-p})\n"
        for j in range(4):
            r = 16 + 4 * p + j
            if p == 0:
                s += f"  v_lshlrev_b32 v{4+2*j}, 16, v{r}\n  v_and_b32 v{5+2*j}, s22, v{r}\n"
            else:
                s += f"  v_lshlrev_b32 v12, 16, v{r}\n  v_and_b32 v13, s22, v{r}\n  v_add_f32 v{4+2*j}, v12, v{4+2*j}\n  v_add_f32 v{5+2*j}, v13, v{5+2*j}\n"
    for j in range(4):
        s += f"  v_cvt_pk_bf16_f32 v{12+j}, v{4+2*j}, v{5+2*j}\n"
    s += """  buffer_store_dwordx4 v[12:15], v2, s[16:19], s20 offen
L_rexit:
  s_endpgm
"""
    return s


def desc(name, nv, ns):
    return f""".p2align 6
.amdhsa_kernel {name}
  .amdhsa_next_free_vgpr {nv}
  .amdhsa_next_free_sgpr {ns}
  .amdhsa_accum_offset {nv}
  .amdhsa_group_segment_fixed_size 0
  .amdhsa_kernarg_size 104
  .amdhsa_user_sgpr_count 2
  .amdhsa_user_sgpr_kernarg_segment_ptr 1
  .amdhsa_system_sgpr_workgroup_id_x 1
.end_amdhsa_kernel
"""


def generate(cfg):
    ref = open("cdna_kernels/%s.s.ref" % NAME).read().split("\n")
    head = [l for l in ref if l.startswith(";") and "@launch" not in l and "Override launch" not in l and "grid=ceil" not in l]
    head = head[:14]
    s = "\n".join(head) + "\n"
    s += f"; @launch grid=(256,1,1) block=(512,1,1) lds=163840\n"
    s += '.amdgcn_target "amdgcn-amd-amdhsa--gfx950"\n.text\n'
    s += gen_main(cfg)
    s += '.section .rodata,"a"\n'
    s += desc(NAME + "_kernel", 256, 102)
    return s


def add_page_stubs(text):
    import subprocess, tempfile, os
    lines = text.split("\n")
    i0 = lines.index("L_compute:")
    i1 = lines.index("L_main_end:")
    iw = next(i for i, l in enumerate(lines) if l.strip() == "%WARM%")
    nwarm = 10
    probe = lines[:iw] + ["  s_nop 0"] * nwarm + lines[iw + 1:]
    d = tempfile.mkdtemp()
    open(d + "/p.s", "w").write("\n".join(probe))
    subprocess.check_call(["clang", "-x", "assembler", "-target", "amdgcn-amd-amdhsa", "-mcpu=gfx950", "-c", d + "/p.s", "-o", d + "/p.o"])
    dis = subprocess.check_output(["llvm-objdump", "-d", "--mcpu=gfx950", d + "/p.o"], text=True).split("\n")
    k = next(i for i, l in enumerate(dis) if l.endswith("<L_compute>:"))
    sizes = [4 * len(l.split("//")[1].split(":")[1].split()) for l in dis[k:] if "//" in l]
    out, addr, n, stubs = probe[:i0 + 1], 0, 0, []
    for l in probe[i0 + 1:i1 + nwarm - 1]:
        t = l.split(";")[0].strip()
        if t and not t.endswith(":"):
            if addr // 4096 > len(stubs):
                stubs.append(len(out))
                out.append(None)
                addr += 4
            addr += sizes[n]
            n += 1
        out.append(l)
    out += probe[i1 + nwarm - 1:]
    ns = len(stubs)
    for j, p in enumerate(stubs):
        tgt = "L_stub%d" % (j + 4) if j + 4 < ns else "L_warm_ret"
        out[p] = "L_stub%d:\n  s_cbranch_execz %s" % (j, tgt)
    warm = ["  s_mov_b64 exec, 0"]
    for w in range(4):
        warm += ["  s_cmp_eq_u32 s%d, %d" % (S_W, w), "  s_cbranch_scc1 %s" % ("L_stub%d" % w if w < ns else "L_warm_ret")]
    warm += ["L_warm_ret:\n  s_mov_b64 exec, -1"]
    out[iw:iw + nwarm] = warm
    return "\n".join(out)


if __name__ == "__main__":
    cfg = Cfg()
    out = sys.argv[1]
    for a in sys.argv[2:]:
        k, v = a.split("=")
        old = getattr(cfg, k)
        if isinstance(old, bool):
            v = v in ("1", "True", "true")
        elif isinstance(old, int):
            v = int(v)
        elif isinstance(old, float):
            v = float(v)
        else:
            v = v.replace("+", " ").replace("/", ",")
        setattr(cfg, k, v)
    txt = generate(cfg)
    if cfg.itlb:
        txt = add_page_stubs(txt)
    open(out, "w").write(txt)
```

```python
import sys, re, math

NAME = "concat_heads__gqa_block_cached__gqa_block_cached__near_ridge"
SLOT = 40960
AUX = 32768
QSCALE = math.log2(math.e) / math.sqrt(128.0)


def f2u(x):
    import struct
    return struct.unpack("<I", struct.pack("<f", x))[0]


class Cfg:
    nt_w = ""
    nt_kv = ""
    st_pol = "sc1"
    red_pol = "sc1"
    out_pol = ""
    spin = 2000000
    ST0 = 0
    kvrot = 0
    kvd = 0
    cyc = False
    prow = -1
    tlb = False
    seq = True
    dyn = False
    EB = 200
    t1 = True
    t3 = 2
    pk = True
    touch = ''
    part1 = 10
    FL0 = 90
    FL1 = 122
    endbar = True
    psleep = 0
    remap = True
    span = False
    tst = False
    itlb = True
    STS = 4
    stmode = 'spread'
    prio = 0
    pace = ''
    pace0 = 8
    pace1 = 17
    D1 = 7
    D2 = 7
    D3 = 8
    BL = 3
    stamps = False
    lstamps = False
    codepf = 2
    thr_log2 = 24.0
    rot = 2
    WP = 2
    dbg = ''
    verbose = False
    CAP = 4
    CAPB = 2
    BARC = 4
    MINLEAD = 3
    WL = 3
    nodrain = False
    pro = 4
    plan = '44444444456678'
    ppol = 'sc1'
    fpol = 'sc1'
    rounds = '0,1,2,3'
    khrot = False
    rst = 22
    rplan = 'g4'
    openin = 1
    openout = -1
    skew = 2
    win = 0
    kkvv = False
    early = 0
    esleep = 0
    ldsgo = True
    loopred = False
    dry = True
    ramp = ''
    force_rare = False


class Stream:
    def __init__(self):
        self.lines = []
        self.dsq = []
        self.nid = 0

    def raw(self, t):
        for l in t.strip("\n").split("\n"):
            self.lines.append(l if l.endswith(":") else "  " + l.strip())

    def ds(self, t):
        if len(self.dsq) >= 15:
            self.lines.append("  s_waitcnt lgkmcnt(11)")
            self.dsq = self.dsq[-11:]
        self.nid += 1
        self.dsq.append(self.nid)
        self.lines.append("  " + t)
        return self.nid

    def need(self, ids):
        pos = [self.dsq.index(i) for i in ids if i in self.dsq]
        if not pos:
            return
        p = max(pos)
        n = len(self.dsq) - 1 - p
        self.lines.append("  s_waitcnt lgkmcnt(%d)" % n)
        self.dsq = self.dsq[p + 1:]

    def drain(self):
        if self.dsq:
            self.lines.append("  s_waitcnt lgkmcnt(0)")
        self.dsq = []

    def text(self):
        return "\n".join(self.lines) + "\n"


def vr(a, n=1):
    return "v%d" % a if n == 1 else "v[%d:%d]" % (a, a + n - 1)


def mfma(d, a, b, c):
    cs = c if isinstance(c, str) else vr(c, 16)
    return "v_mfma_f32_32x32x16_bf16 %s, %s, %s, %s" % (vr(d, 16), vr(a, 4), vr(b, 4), cs)


V_TID = 0
V_XA0, V_XA1 = 1, 2
V_TA = 3
V_XL, V_KL = 4, 5
V_WQL, V_VL, V_WOL = 6, 7, 8
V_OW, V_OR = 9, 10
V_ST = 11
V_L, V_LT = 12, 13
V_T0, V_T1 = 14, 15
V_PF = 255
FR = 16
XF = 48
ET = 48
PK = 48
ACC = 64
QR = 128
SB = [160, 176, 224]
PB = [192, 200, 240]
LT = [13, 60]
NEGM = 208
OF = 128

S_W = 3
S_B, S_HP, S_GRP, S_BR = 6, 7, 16, 17
S_X, S_K, S_V, S_WQ, S_WO = 20, 24, 28, 32, 36
S_WS = 40
S_T0, S_T1, S_T2 = 44, 45, 46
S_M8, S_M1 = 47, 48
S_NC0 = 50
S_THR = 54
S_QS = 55
S_ROT = 49
S_KVR = 83
S_IN, S_OUT = 76, 84
S_HPO = 88
S_CNT = 89
S_STB = 56
S_STT = 58


class MF:
    def __init__(self, text, reads=None, chunk=None):
        self.text = text
        self.reads = reads or []
        self.chunk = chunk


class RG:
    def __init__(self, texts, chunk, lead=None):
        self.texts = texts
        self.chunk = chunk
        self.ids = None
        self.lead = lead


def stamp(st, cfg, idx):
    if not cfg.stamps:
        return
    st_l = []
    st_l.append("s_memtime s[%d:%d]" % (S_STT, S_STT + 1))
    st_l.append("s_waitcnt lgkmcnt(0)")
    st_l.append("v_mov_b32 v%d, s%d" % (V_T0, S_STT))
    st_l.append("v_mov_b32 v%d, %d" % (V_T1, idx * 4))
    st_l.append("global_store_dword v%d, v%d, s[%d:%d]" % (V_T1, V_T0, S_STB, S_STB + 1))
    st.dsq = []
    st.raw("\n".join(st_l))


def vcost(t):
    if isinstance(t, tuple):
        return t[1]
    if not isinstance(t, str):
        return 0
    if t.endswith(":"):
        return 0
    if t.startswith(("v_exp", "v_rcp")):
        return 8
    if t.startswith("buffer_store"):
        return 12
    return 4


def emit_schedule(st, mfs, wins, pre, shadow, cfg, D, barrier_at, addr_update, virtual=()):
    n = len(mfs)
    open_gap = {c: g for g, c in barrier_at.items()}
    rd_at, rd_gap, seen, pend = {}, {}, set(), []
    for i, m in enumerate(mfs):
        for rg in m.reads:
            if id(rg) in seen:
                continue
            seen.add(id(rg))
            lead = rg.lead if rg.lead is not None else D
            pend.append((max(i - lead, open_gap[rg.chunk]), i, rg))
    g, k = -1, 0
    while k < len(pend):
        cap = 99 if g < 0 else (cfg.CAPB if g in barrier_at else cfg.CAP)
        used = 0
        while k < len(pend) and pend[k][0] <= g and (used + len(pend[k][2].texts) <= cap or pend[k][1] - g <= cfg.MINLEAD):
            rg = pend[k][2]
            rd_at.setdefault(g, []).append(rg)
            rd_gap[id(rg)] = g
            used += len(rg.texts)
            k += 1
        g += 1
    for _, i, rg in pend:
        if rg.chunk + 1 in open_gap and not getattr(rg, "free", False):
            assert rd_gap[id(rg)] < open_gap[rg.chunk + 1], "read of chunk %d after the next barrier" % rg.chunk
    budget = {}
    for g in range(n):
        b = 24 - 4 * sum(len(rg.texts) for rg in rd_at.get(g, []))
        if g in barrier_at:
            b -= cfg.BARC
        budget[g] = b
    gaps = {}
    upd_done = set()
    for g, c in barrier_at.items():
        if g >= 0 and not cfg.nodrain:
            lo = max(gg for gg, l in rd_at.items() if gg < g and any(not getattr(r, "free", False) for r in l))
            if lo <= g - 1:
                for j, t in enumerate(addr_update(c)):
                    gg = min(g - 1, lo + 1 + j)
                    gaps.setdefault(gg, []).append(t)
                    budget[gg] -= 4
                upd_done.add(g)
    over = 0

    def fill(ops, g, g1):
        nonlocal over
        for o in ops:
            c = vcost(o)
            while g <= g1 and budget[g] < c:
                g += 1
            if g > g1:
                pre.setdefault(g1 + 1, []).append(o)
                over += c
            else:
                gaps.setdefault(g, []).append(o)
                budget[g] -= c
        return g
    for w in wins:
        if w[0] == "chain":
            cur = 0
            for ops, g0, g1, t in w[1]:
                cur = fill(ops, max(cur, g0), g1)
                if t is None:
                    continue
                gb = cur + 1
                while gb in barrier_at or gb in shadow:
                    gb += 1
                if gb <= g1:
                    br, ladd = w[2](t, gb)
                    shadow[gb] = br
                    cur = fill([ladd], gb, gb + 2)
                else:
                    br, ladd = w[2](t, g1)
                    pre.setdefault(g1 + 1, []).extend(br)
                    cur = fill([ladd], g1 + 1, g1 + 3)
                if cfg.verbose:
                    print("tile", t, "check at", gb, "deadline", g1, file=sys.stderr)
            continue
        ops, g0, g1 = w
        g = g0
        for o in ops:
            c = vcost(o)
            while g <= g1 and budget[g] < c:
                g += 1
            if g > g1:
                pre.setdefault(g1 + 1, []).append(o)
                over += c
            else:
                gaps.setdefault(g, []).append(o)
                budget[g] -= c
    if cfg.verbose:
        print("window overflow cycles", over, "over-budget gaps", [(g, b) for g, b in budget.items() if b < 0], file=sys.stderr)
    for g in sorted(k for k in rd_at if k < 0):
        if g in barrier_at:
            st.drain()
            st.raw("s_barrier")
            for t in addr_update(barrier_at[g]):
                st.raw(t)
        for rg in rd_at[g]:
            rg.ids = [st.ds(t) for t in rg.texts]

    def emit(t):
        if isinstance(t, tuple):
            st.ds(t[0])
        elif callable(t):
            t()
        else:
            st.raw(t)

    for i, m in enumerate(mfs):
        for t in pre.get(i, []):
            emit(t)
        ids = []
        for rg in m.reads:
            assert rg.ids is not None, "read not issued before use at mfma %d" % i
            ids += rg.ids
        st.need(ids)
        st.raw(m.text)
        if i in shadow:
            for t in shadow[i]:
                emit(t)
        if i in barrier_at:
            if barrier_at[i] not in virtual:
                if not cfg.nodrain:
                    st.drain()
                st.raw("s_barrier")
            if i not in upd_done:
                for t in addr_update(barrier_at[i]):
                    st.raw(t)
        elif i not in shadow:
            ids = []
            for j in range(i + 1, min(n, i + 3)):
                for rg in mfs[j].reads:
                    if rg.ids is not None and (j == i + 1 or j - 1 in shadow or rd_gap[id(rg)] <= i - cfg.WL):
                        ids += rg.ids
            st.need(ids)
        for rg in rd_at.get(i, []):
            rg.ids = [st.ds(t) for t in rg.texts]
        for t in gaps.get(i, []):
            emit(t)


def kv_items(cfg):
    k = cfg.skew
    items = [("K", t) for t in range(k)]
    for t in range(k, 16):
        items += [("K", t), ("V", t - k)]
    items += [("V", t) for t in range(16 - k, 16)]
    return items


def softmax_ops(t, sub_first, nb):
    S, P, lt = SB[t % nb], PB[t % nb], LT[t & 1]
    e = lambda i: ET + (i % 8)
    out = []
    for i in range(16):
        if sub_first:
            out.append("v_add_f32 v%d, v%d, v%d" % (S + i, NEGM, S + i))
        out.append("v_exp_f32 v%d, v%d" % (e(i), S + i))
        j = i - 1
        if j >= 1:
            out.append("v_add_f32 v%d, v%d, v%d" % (lt, e(j), e(0) if j == 1 else lt))
            if j & 1:
                out.append("v_cvt_pk_bf16_f32 v%d, v%d, v%d" % (P + j // 2, e(j - 1), e(j)))
    out.append("v_add_f32 v%d, v%d, v%d" % (lt, e(15), lt))
    out.append("v_cvt_pk_bf16_f32 v%d, v%d, v%d" % (P + 7, e(14), e(15)))
    return out


def rare_path(t, nb, live_s, pend_p):
    S = SB[t % nb]
    L = ["L_rare%d:" % t, "s_nop 15", "s_nop 3"]
    L.append("v_max3_f32 v%d, v%d, v%d, v%d" % (V_T0, S, S + 1, S + 2))
    for i in range(3, 15, 2):
        L.append("v_max3_f32 v%d, v%d, v%d, v%d" % (V_T0, V_T0, S + i, S + i + 1))
    L.append("v_max3_f32 v%d, v%d, v%d, 0" % (V_T0, V_T0, S + 15))
    L.append("v_mov_b32 v%d, v%d" % (V_T1, V_T0))
    L.append("s_nop 1")
    L.append("v_permlane32_swap_b32 v%d, v%d" % (V_T0, V_T1))
    L.append("v_max_f32 v%d, v%d, v%d" % (V_T0, V_T0, V_T1))
    L.append("v_ceil_f32 v%d, v%d" % (V_T0, V_T0))
    L.append("v_sub_f32 v%d, 0, v%d" % (V_T1, V_T0))
    L.append("v_exp_f32 v%d, v%d" % (V_T1, V_T1))
    for i in range(16):
        L.append("v_sub_f32 v%d, v%d, v%d" % (NEGM + i, NEGM + i, V_T0))
        for u in [t] + live_s:
            L.append("v_sub_f32 v%d, v%d, v%d" % (SB[u % nb] + i, SB[u % nb] + i, V_T0))
    L.append("v_mul_f32 v%d, v%d, v%d" % (V_L, V_L, V_T1))
    for i in range(64):
        L.append("v_mul_f32 v%d, v%d, v%d" % (ACC + i, ACC + i, V_T1))
    for u in pend_p:
        for i in range(8):
            p = PB[u % nb] + i
            L += ["v_lshlrev_b32 v%d, 16, v%d" % (ET, p), "v_and_b32 v%d, 0xffff0000, v%d" % (ET + 1, p),
                  "v_mul_f32 v%d, v%d, v%d" % (ET, ET, V_T1), "v_mul_f32 v%d, v%d, v%d" % (ET + 1, ET + 1, V_T1),
                  "v_cvt_pk_bf16_f32 v%d, v%d, v%d" % (p, ET, ET + 1)]
    L += softmax_ops(t, False, nb)
    L.append("s_nop 1")
    L.append("s_branch L_back%d" % t)
    return L


S_EP = 80
EPOCH = f"""
s_waitcnt lgkmcnt(0)
s_mul_i32 s{S_EP+2}, s{S_EP+2}, 1664525
s_add_u32 s{S_EP+2}, s{S_EP+2}, 1013904223
"""
EPOCH_NEXT = f"""s_or_b32 s{S_T0}, s{S_HP}, s{S_W}
s_cmp_lg_u32 s{S_T0}, 0
s_cbranch_scc1 L_noep
v_mov_b32 v12, 0
global_store_dword v12, v6, s[{S_EP}:{S_EP+1}]
L_noep:
"""
H_FL, H_TAG, H_PL, H_RD, H_OUT = 1, 6, 4, 5, 2


def handoff_addr(i, mode):
    o = f"""
v_and_b32 v12, 63, v0
s_lshl_b32 s{S_T1}, s{S_W}, 11
s_lshl_b32 s{S_T2}, s{S_HP}, 3
s_add_u32 s{S_T1}, s{S_T1}, s{S_T2}
v_lshlrev_b32 v13, 9, v12
v_add_u32 v13, s{S_T1}, v13
v_mov_b32 v14, 0x7fff0000
v_cmp_gt_u32 vcc, 4, v12
v_mov_b32 v{H_TAG}, s{S_EP+2}
s_lshl_b32 s{S_T1}, s{S_HP}, 9
v_cndmask_b32 v{H_FL}, v14, v13, vcc
v_not_b32 v{H_TAG+1}, v{H_TAG}
v_and_b32 v13, 15, v12
v_lshlrev_b32 v14, 3, v13
v_add_u32 v{H_PL}, s{S_T1}, v14
s_lshr_b32 s{S_T1}, s{S_HP}, 1
s_lshl_b32 s{S_T1}, s{S_T1}, 11
s_and_b32 s{S_T2}, s{S_HP}, 1
s_lshl_b32 s{S_T2}, s{S_T2}, 8
s_add_u32 s{S_T1}, s{S_T1}, s{S_T2}
v_lshrrev_b32 v14, 4, v12
"""
    if mode == "q":
        o += f"""
s_lshl_b32 s{S_T2}, s{S_W}, 6
s_add_u32 s{S_T1}, s{S_T1}, s{S_T2}
v_lshlrev_b32 v15, 9, v14
v_lshl_add_u32 v15, v13, 2, v15
v_add_u32 v{H_RD}, s{S_T1}, v15
v_lshrrev_b32 v15, 2, v13
v_lshlrev_b32 v15, 11, v15
v_lshl_add_u32 v15, v14, 4, v15
v_and_b32 v13, 3, v13
v_lshl_add_u32 v15, v13, 2, v15
s_lshl_b32 s{S_T2}, s{S_W}, 13
"""
    else:
        o += f"""
v_lshlrev_b32 v15, 9, v14
v_lshl_add_u32 v15, v13, 4, v15
v_add_u32 v{H_RD}, s{S_T1}, v15
v_lshlrev_b32 v15, 11, v13
v_lshl_add_u32 v15, v14, 4, v15
s_mov_b32 s{S_T2}, 0
"""
    o += f"""
s_and_b32 s{S_T1}, s{S_HP}, 3
s_lshl_b32 s{S_T1}, s{S_T1}, 15
s_add_u32 s{S_T2}, s{S_T2}, s{S_T1}
s_lshr_b32 s{S_T1}, s{S_HP}, 2
s_lshl_b32 s{S_T1}, s{S_T1}, 6
s_add_u32 s{S_T2}, s{S_T2}, s{S_T1}
v_add_u32 v{H_OUT}, s{S_T2}, v15
"""
    return [l.strip() for l in o.strip().split("\n") if l.strip()]


def reduce_code(cfg, i, mode, tag):
    nd = 1 if mode == "q" else 4
    B = 16
    if isinstance(i, int):
        o = f"s_mov_b32 s{S_T0}, {i}\n"
    else:
        o = f"s_mov_b32 s{S_T0}, {i}\n"
    o += f"""
s_lshl_b32 s{S_T1}, s{S_T0}, 7
s_mov_b32 s{S_CNT}, 0
L_poll_{tag}:
buffer_load_dwordx2 v[12:13], v{H_PL}, s[{S_IN}:{S_IN+3}], s{S_T1} offen sc1
s_add_u32 s{S_CNT}, s{S_CNT}, 1
s_cmp_gt_u32 s{S_CNT}, {cfg.spin}
s_cbranch_scc1 L_go_{tag}
{"s_sleep %d" % cfg.psleep if cfg.psleep and tag == "l" else ""}
s_waitcnt vmcnt(0)
v_cmp_ne_u64 vcc, v[12:13], v[{H_TAG}:{H_TAG+1}]
s_cbranch_vccnz L_poll_{tag}
L_go_{tag}:
{tstamp(cfg, 4)}
s_lshl_b32 s{S_T1}, s{S_T0}, 14
"""
    sfx = "dword" if nd == 1 else "dwordx4"
    for p in range(16):
        o += f"buffer_load_{sfx} {vr(B + nd*p, nd)}, v{H_RD}, s[{S_WS}:{S_WS+3}], s{S_T1} offen {cfg.red_pol}\n"
        if p < 15:
            o += f"s_add_u32 s{S_T1}, s{S_T1}, 0x10000\n"
    o += f"""
s_add_u32 s{S_T0}, s{S_T0}, s{S_B}
s_and_b32 s{S_T0}, s{S_T0}, 3
s_lshl_b32 s{S_T0}, s{S_T0}, 8
s_mov_b32 s{S_T2}, 0xffff0000
"""
    A = B + 16 * nd
    for p in range(16):
        o += f"s_waitcnt vmcnt({15-p})\n"
        for j in range(nd):
            r = B + nd * p + j
            if p == 0:
                o += f"v_lshlrev_b32 v{A+2*j}, 16, v{r}\nv_and_b32 v{A+2*j+1}, s{S_T2}, v{r}\n"
            else:
                o += f"v_lshlrev_b32 v12, 16, v{r}\nv_and_b32 v13, s{S_T2}, v{r}\nv_add_f32 v{A+2*j}, v12, v{A+2*j}\nv_add_f32 v{A+2*j+1}, v13, v{A+2*j+1}\n"
    o += tstamp(cfg, 5) + "\n"
    for j in range(nd):
        o += f"v_cvt_pk_bf16_f32 v{12+j}, v{A+2*j}, v{A+2*j+1}\n"
    o += f"buffer_store_{sfx} {vr(12, nd)}, v{H_OUT}, s[{S_OUT}:{S_OUT+3}], s{S_T0} offen {cfg.out_pol}\n"
    return o


def reduce_dyn(cfg):
    B, A = 16, 80
    S_TODO, S_NOW = 94, 95
    poll = f"buffer_load_dwordx2 v[8:9], v3, s[{S_IN}:{S_IN+3}], 0 offen {cfg.ppol}\n"
    o = f"""s_mov_b32 s{S_T2}, 0xffff0000
s_mov_b32 s{S_TODO}, 15
s_mov_b32 s{S_CNT}, 0
{poll}s_waitcnt vmcnt(0)
L_dyn:
v_cmp_ne_u64 vcc, v[8:9], v[{H_TAG}:{H_TAG+1}]
s_add_u32 s{S_CNT}, s{S_CNT}, 1
s_cmp_gt_u32 s{S_CNT}, {cfg.spin}
s_cselect_b64 vcc, 0, vcc
s_mov_b32 s{S_NOW}, 0
"""
    for i in range(4):
        half = "vcc_lo" if i < 2 else "vcc_hi"
        o += f"""s_bitcmp1_b32 s{S_TODO}, {i}
s_cbranch_scc0 L_dn{i}
s_bfe_u32 s{S_T0}, {half}, {hex(0x100000 + 16*(i & 1))}
s_cbranch_scc1 L_dn{i}
s_bitset1_b32 s{S_NOW}, {i}
{tstamp(cfg, (4, 0, 1, 2)[i])}
s_mov_b32 s{S_T1}, {i*16384}
{"s_waitcnt vmcnt(46)" if i == 3 else ""}
"""
        for p in range(16):
            o += f"buffer_load_dword v{B+16*i+p}, v{H_RD}, s[{S_WS}:{S_WS+3}], s{S_T1} offen {cfg.red_pol}\n"
            if p < 15:
                o += f"s_add_u32 s{S_T1}, s{S_T1}, 0x10000\n"
        o += f"L_dn{i}:\n"
    o += f"""s_andn2_b32 s{S_TODO}, s{S_TODO}, s{S_NOW}
s_cbranch_scc0 L_dnp
{poll}L_dnp:
s_waitcnt vmcnt(0)
"""
    for i in range(4):
        o += f"s_bitcmp1_b32 s{S_NOW}, {i}\ns_cbranch_scc0 L_ds{i}\n"
        o += f"s_add_u32 s{S_T0}, s{S_B}, {i}\ns_and_b32 s{S_T0}, s{S_T0}, 3\ns_lshl_b32 s{S_T0}, s{S_T0}, 8\n"
        r = B + 16 * i
        o += f"v_lshlrev_b32 v{A}, 16, v{r}\nv_and_b32 v{A+1}, s{S_T2}, v{r}\n"
        for p in range(1, 16):
            o += f"v_lshlrev_b32 v12, 16, v{r+p}\nv_and_b32 v13, s{S_T2}, v{r+p}\nv_add_f32 v{A}, v12, v{A}\nv_add_f32 v{A+1}, v13, v{A+1}\n"
        o += f"v_cvt_pk_bf16_f32 v{A+2+i}, v{A}, v{A+1}\n"
        o += f"buffer_store_dword v{A+2+i}, v{H_OUT}, s[{S_OUT}:{S_OUT+3}], s{S_T0} offen {cfg.out_pol}\nL_ds{i}:\n"
    o += f"""s_cmp_lg_u32 s{S_TODO}, 0
s_cbranch_scc1 L_dyn
{tstamp(cfg, 5)}
"""
    o += EPOCH_NEXT
    return o


def reduce_loop(cfg):
    B, A = 16, 32
    S_I, S_DRY, S_PO, S_RO, S_OO = 50, 51, 52, 53, 54
    poll = f"buffer_load_dwordx2 v[8:9], v{H_PL}, s[{S_IN}:{S_IN+3}], s{S_PO} offen {cfg.ppol}\n"
    o = f"""s_mov_b32 s{S_T2}, 0xffff0000
s_mul_i32 s{S_T0}, s{S_W}, {SLOT}
s_add_u32 s{S_T0}, s{S_T0}, {AUX}
v_mov_b32 v11, s{S_T0}
s_mov_b32 s{S_I}, 0
s_mov_b32 s{S_PO}, 0
s_mov_b32 s{S_DRY}, {1 if cfg.dry else 0}
s_cmp_eq_u32 s{S_DRY}, 1
s_cbranch_scc1 L_rl_go
L_rl_start:
s_mov_b32 s{S_CNT}, 0
L_rl_wait:
ds_read_b32 v12, v11
s_add_u32 s{S_CNT}, s{S_CNT}, 1
s_cmp_gt_u32 s{S_CNT}, {cfg.spin}
s_cbranch_scc1 L_rl_on
s_sleep 1
s_waitcnt lgkmcnt(0)
v_cmp_ne_u32 vcc, v12, v{H_TAG}
s_cbranch_vccnz L_rl_wait
L_rl_on:
{tstamp(cfg, 3)}
{poll}s_waitcnt vmcnt(0)
L_rl_row:
s_mov_b32 s{S_CNT}, 0
L_rl_spin:
v_cmp_ne_u64 vcc, v[8:9], v[{H_TAG}:{H_TAG+1}]
s_cbranch_vccz L_rl_go
{poll}s_add_u32 s{S_CNT}, s{S_CNT}, 1
s_cmp_lt_u32 s{S_CNT}, {cfg.spin}
s_waitcnt vmcnt(0)
s_cbranch_scc1 L_rl_spin
L_rl_go:
s_lshl_b32 s{S_RO}, s{S_I}, 14
s_add_u32 s{S_OO}, s{S_B}, s{S_I}
s_and_b32 s{S_OO}, s{S_OO}, 3
s_lshl_b32 s{S_OO}, s{S_OO}, 8
s_cmp_eq_u32 s{S_DRY}, 1
s_cbranch_scc1 L_rl_sum
"""
    for p in range(16):
        o += f"buffer_load_dword v{B+p}, v{H_RD}, s[{S_WS}:{S_WS+3}], s{S_RO} offen {cfg.red_pol}\n"
        if p < 15:
            o += f"s_add_u32 s{S_RO}, s{S_RO}, 0x10000\n"
    o += f"s_add_u32 s{S_PO}, s{S_PO}, 128\ns_min_u32 s{S_PO}, s{S_PO}, 384\n{poll}L_rl_sum:\n"
    for p in range(16):
        o += f"s_waitcnt vmcnt({16-p})\n"
        q = B + p
        if p == 0:
            o += f"v_lshlrev_b32 v{A}, 16, v{q}\nv_and_b32 v{A+1}, s{S_T2}, v{q}\n"
        else:
            o += f"v_lshlrev_b32 v12, 16, v{q}\nv_and_b32 v13, s{S_T2}, v{q}\nv_add_f32 v{A}, v12, v{A}\nv_add_f32 v{A+1}, v13, v{A+1}\n"
    o += f"""v_cvt_pk_bf16_f32 v12, v{A}, v{A+1}
s_cmp_eq_u32 s{S_DRY}, 1
s_mov_b32 s{S_DRY}, 0
s_cbranch_scc1 L_rl_start
buffer_store_dword v12, v{H_OUT}, s[{S_OUT}:{S_OUT+3}], s{S_OO} offen {cfg.out_pol}
s_add_u32 s{S_I}, s{S_I}, 1
s_cmp_lt_u32 s{S_I}, 4
s_waitcnt vmcnt(1)
s_cbranch_scc1 L_rl_row
{tstamp(cfg, 5)}
"""
    o += EPOCH_NEXT
    return o


def reduce_seq(cfg):
    B, A = 16, 80
    rounds = [[int(ch) for ch in r] for r in cfg.rounds.split(",")]
    o = f"s_mov_b32 s{S_T2}, 0xffff0000\n"
    poll = lambda r: f"buffer_load_dwordx2 v[8:9], v{H_PL if len(r) == 1 else 3}, s[{S_IN}:{S_IN+3}], 0 offen offset:{128*r[0]} {cfg.ppol}\n"
    go = f"""s_mov_b32 s{S_CNT}, 0
L_go_%s:
ds_read_b32 v12, v11
s_add_u32 s{S_CNT}, s{S_CNT}, 1
s_cmp_gt_u32 s{S_CNT}, {cfg.spin}
s_cbranch_scc1 L_gone_%s
s_sleep 1
s_waitcnt lgkmcnt(0)
v_cmp_ne_u32 vcc, v12, v{H_TAG}
s_cbranch_vccnz L_go_%s
L_gone_%s:
"""
    if cfg.ldsgo:
        o += f"s_mul_i32 s{S_T0}, s{S_W}, {SLOT}\ns_add_u32 s{S_T0}, s{S_T0}, {AUX}\nv_mov_b32 v11, s{S_T0}\n"
    if cfg.early:
        if cfg.esleep:
            o += f"s_sleep {cfg.esleep}\n"
        o += poll(rounds[0]) + f"s_waitcnt vmcnt(0)\nv_cmp_ne_u64 vcc, v[8:9], v[{H_TAG}:{H_TAG+1}]\ns_mov_b32 s94, 1\ns_cbranch_vccz L_sg0\ns_mov_b32 s94, 0\n"
    if cfg.ldsgo:
        o += go % (("a",) * 4)
    o += tstamp(cfg, 3) + "\n"
    o += poll(rounds[0]) + "s_waitcnt vmcnt(0)\n"
    for n, r in enumerate(rounds):
        o += f"""s_mov_b32 s{S_CNT}, 0
L_sp{n}:
v_cmp_ne_u64 vcc, v[8:9], v[{H_TAG}:{H_TAG+1}]
s_cbranch_vccz L_sg{n}
{poll(r)}s_add_u32 s{S_CNT}, s{S_CNT}, 1
s_cmp_lt_u32 s{S_CNT}, {cfg.spin}
s_waitcnt vmcnt(0)
s_cbranch_scc1 L_sp{n}
L_sg{n}:
"""
        for i in r:
            o += tstamp(cfg, (4, 0, 1, 2)[i]) + f"\ns_mov_b32 s{S_T1}, {i*16384}\n"
            for p in range(16):
                o += f"buffer_load_dword v{B+16*i+p}, v{H_RD}, s[{S_WS}:{S_WS+3}], s{S_T1} offen {cfg.red_pol}\n"
                if p < 15:
                    o += f"s_add_u32 s{S_T1}, s{S_T1}, 0x10000\n"
        k = 0
        if n + 1 < len(rounds):
            if cfg.early and n == 0:
                o += "s_cmp_eq_u32 s94, 1\ns_cbranch_scc1 L_e_nopoll\n" + poll(rounds[n + 1]) + "L_e_nopoll:\n"
            else:
                o += poll(rounds[n + 1])
                k = 1
        left = 16 * len(r) + k
        for i in r:
            o += f"s_add_u32 s{S_T0}, s{S_B}, {i}\ns_and_b32 s{S_T0}, s{S_T0}, 3\ns_lshl_b32 s{S_T0}, s{S_T0}, 8\n"
            for p in range(16):
                left -= 1
                o += f"s_waitcnt vmcnt({left})\n"
                q = B + 16 * i + p
                if p == 0:
                    o += f"v_lshlrev_b32 v{A}, 16, v{q}\nv_and_b32 v{A+1}, s{S_T2}, v{q}\n"
                else:
                    o += f"v_lshlrev_b32 v12, 16, v{q}\nv_and_b32 v13, s{S_T2}, v{q}\nv_add_f32 v{A}, v12, v{A}\nv_add_f32 v{A+1}, v13, v{A+1}\n"
            o += f"v_cvt_pk_bf16_f32 v{A+2+i}, v{A}, v{A+1}\ns_mov_b32 s{50+i}, s{S_T0}\n"
        if n + 1 < len(rounds):
            o += "s_waitcnt vmcnt(0)\n"
        else:
            o += tstamp(cfg, 5) + "\n"
        for i in r:
            o += f"buffer_store_dword v{A+2+i}, v{H_OUT}, s[{S_OUT}:{S_OUT+3}], s{50+i} offen {cfg.out_pol}\n"
        if cfg.early and n == 0:
            o += "s_cmp_eq_u32 s94, 0\ns_cbranch_scc1 L_e_late\n" + go % (("b",) * 4) + poll(rounds[1]) + "s_waitcnt vmcnt(0)\nL_e_late:\n"
    o += EPOCH_NEXT
    return o


REG = re.compile(r"v\[(\d+):(\d+)\]|v(\d+)")


def regs_of(tok):
    m = REG.fullmatch(tok.strip().lstrip("-"))
    if not m:
        return set()
    if m.group(3):
        return {int(m.group(3))}
    return set(range(int(m.group(1)), int(m.group(2)) + 1))


def parse(line):
    l = line.split(";")[0].strip()
    if not l or l.endswith(":") or l.startswith("."):
        return None
    op, _, rest = l.partition(" ")
    toks = [t.strip() for t in rest.split(",")] if rest else []
    toks = [t.split(" ")[0] for t in toks]
    rd, wr = set(), set()
    if op.startswith("v_cmp"):
        for t in toks[1:]:
            rd |= regs_of(t)
    elif op.startswith("v_permlane"):
        rd = wr = regs_of(toks[0]) | regs_of(toks[1])
    elif op.startswith(("v_readfirstlane", "v_readlane")):
        rd = regs_of(toks[1])
    elif op.startswith("v_"):
        wr = regs_of(toks[0])
        for t in toks[1:]:
            rd |= regs_of(t)
        if op.startswith(("v_fmac", "v_writelane")):
            rd |= wr
    elif op.startswith("ds_read"):
        wr = regs_of(toks[0]); rd = regs_of(toks[1])
    elif op.startswith("ds_write"):
        rd = regs_of(toks[0]) | regs_of(toks[1])
    elif op.startswith(("buffer_store", "buffer_atomic", "global_store", "global_atomic")):
        for t in toks:
            rd |= regs_of(t)
    elif op.startswith(("buffer_load", "global_load")):
        if "lds" in l.split():
            rd = regs_of(toks[0])
        else:
            wr = regs_of(toks[0]); rd = regs_of(toks[1])
    return op, rd, wr, toks


def fix_hazards(lines):
    out = []
    hist = []
    t = 0
    last_mf = -100
    for line in lines:
        p = parse(line)
        if p is None:
            out.append(line)
            continue
        op, rd, wr, toks = p
        is_mf = op.startswith("v_mfma")
        is_valu = op.startswith("v_") and not is_mf
        is_mem = op.startswith(("ds_", "buffer_", "global_"))
        need = 0
        tt = max(t, last_mf + 8) if is_mf else t
        dist = 0
        for (o2, r2, w2, k2, st2, t2) in reversed(hist[-40:]):
            m2 = o2.startswith("v_mfma")
            v2 = o2.startswith("v_") and not m2
            req = 0
            d = dist
            if v2 and o2.startswith(("v_exp", "v_rcp", "v_log", "v_rsq")) and is_valu and not op.startswith(("v_exp", "v_rcp")) and (w2 & rd):
                req = 1
            if v2 and is_mf and (w2 & rd):
                req = 2
            if v2 and op.startswith("v_permlane") and (w2 & rd):
                req = 2
            if v2 and op.startswith(("v_readfirstlane", "v_readlane")) and (w2 & rd):
                req = 1
            if o2.startswith(("buffer_store_dwordx4", "global_store_dwordx4")) and is_valu and (regs_of(k2[0] if o2.startswith("buffer") else k2[1]) & wr):
                req = 2
            if m2 and (is_valu or is_mem) and (w2 & (rd | wr)):
                req = 12
                d = tt - t2 - 1
            if m2 and is_mf and (w2 & (regs_of(toks[1]) | regs_of(toks[2]))):
                req = 12
                d = tt - t2 - 1
            if m2 and is_mf and (w2 & regs_of(toks[3])) and regs_of(toks[3]) != w2:
                req = 10
                d = tt - t2 - 1
            if m2 and is_valu and (regs_of(k2[3]) & wr):
                req = max(req, 7)
                d = tt - t2 - 1
            if req > d:
                need = max(need, req - d)
            dist += st2
        while need > 0:
            k = min(need, 16)
            out.append("  s_nop %d" % (k - 1))
            hist.append(("s_nop", set(), set(), [], k, t))
            t += k
            need -= k
        tt = max(t, last_mf + 8) if is_mf else t
        st_ = int(toks[0]) + 1 if op == "s_nop" else 1
        hist.append((op, rd, wr, toks, st_, tt))
        t = tt + st_
        if is_mf:
            last_mf = tt
        out.append(line)
    return out


TS = [4, 8, 10, 64, 66, 68, 70, 72, 96, 98]


def tstamp(cfg, k):
    return f"s_memrealtime s[{TS[k]}:{TS[k]+1}]" if cfg.tst else ""


def tst_end(cfg, base):
    o = f"""s_waitcnt vmcnt(0)
{tstamp(cfg, 7)}
s_lshl_b32 s14, s2, 3
s_add_u32 s14, s14, s{S_W}
s_add_u32 s14, s14, {base}
s_lshl_b32 s14, s14, 6
s_add_u32 s14, s14, 0x2300000
s_add_u32 s12, s74, s14
s_addc_u32 s13, s75, 0
s_waitcnt lgkmcnt(0)
v_mov_b32 v14, 0
"""
    for k in range(8):
        o += f"v_mov_b32 v{16+k}, s{TS[k]}\n"
    o += f"""v_mov_b32 v24, s60
v_mov_b32 v25, s{S_CNT}
global_store_dwordx4 v14, v[16:19], s[12:13]
global_store_dwordx4 v14, v[20:23], s[12:13] offset:16
v_mov_b32 v26, s96
v_mov_b32 v27, s98
global_store_dwordx4 v14, v[24:27], s[12:13] offset:32
"""
    return o


def span_end(cfg, base):
    if not cfg.span:
        return ""
    return f"""s_waitcnt vmcnt(0)
s_memrealtime s[{S_STT}:{S_STT+1}]
s_lshl_b32 s14, s2, 3
s_add_u32 s14, s14, s{S_W}
s_lshl_b32 s14, s14, 3
s_add_u32 s14, s14, {0x2200000 + base*8}
s_add_u32 s12, s74, s14
s_addc_u32 s13, s75, 0
s_waitcnt lgkmcnt(0)
v_mov_b32 v12, s60
v_mov_b32 v13, s{S_STT}
v_mov_b32 v14, 0
global_store_dwordx2 v14, v[12:13], s[12:13]
"""


def gen_compute(cfg):
    st = Stream()
    R = st.raw
    R("""
L_compute:
v_and_b32 v%(ln)d, 63, v0
""" % dict(ln=V_T0))
    ln = V_T0
    t1 = V_T1
    R("s_waitcnt lgkmcnt(0)")
    R(rest_setup())
    if cfg.tlb:
        R(f"""s_load_dword s96, s[{S_K}:{S_K+1}], 0
s_load_dword s96, s[{S_V}:{S_V+1}], 0
s_load_dword s96, s[{S_WO}:{S_WO+1}], 0
s_load_dword s96, s[{S_WS}:{S_WS+1}], s{S_HPO}
s_load_dword s96, s[{S_OUT}:{S_OUT+1}], 0""")
    if cfg.codepf == 2:
        R(f"""
s_getpc_b64 s[94:95]
s_lshr_b32 s{S_T0}, s2, 3
s_lshl_b32 s{S_T0}, s{S_T0}, 2
s_add_u32 s{S_T0}, s{S_T0}, s{S_W}
s_lshl_b32 s{S_T0}, s{S_T0}, 7
s_load_dword s96, s[94:95], s{S_T0}
s_lshr_b32 s{S_T0}, s{S_T0}, 2
s_add_u32 s{S_T0}, s{S_T0}, 0x4000
s_load_dword s97, s[94:95], s{S_T0}
""")
    if cfg.codepf == 1:
        R("""
s_getpc_b64 s[%d:%d]
s_sub_u32 s44, s44, 0x1800
s_subb_u32 s45, s45, 0
v_lshlrev_b32 v16, 7, v0
v_min_u32 v16, CODE_BYTES, v16
global_load_dword v255, v16, s[%d:%d]
""" % (S_T0, S_T0 + 1, S_T0, S_T0 + 1))
    R(f"""
v_lshrrev_b32 v18, 5, v{ln}              ; h
v_bfe_u32 v19, v{ln}, 2, 2
v_xor_b32 v20, v18, v19                  ; h^g
v_lshlrev_b32 v20, 4, v20
v_and_b32 v21, 3, v{ln}
v_lshl_add_u32 v20, v21, 6, v20          ; (key&3)*64 + (h^g)*16
v_bfe_u32 v22, v{ln}, 2, 3               ; key>>2
v_lshl_add_u32 v{V_KL}, v22, 10, v20
v_bfe_u32 v22, v{ln}, 3, 2               ; tok>>3
v_lshl_add_u32 v23, v22, 10, v20
v_bfe_u32 v22, v{ln}, 2, 1
v_lshl_add_u32 v23, v22, 8, v23
s_and_b32 s{S_T0}, s{S_W}, 1
s_lshl_b32 s{S_T0}, s{S_T0}, 12
s_add_u32 s{S_T0}, s{S_T0}, {AUX}
v_add_u32 v{V_XL}, s{S_T0}, v23
v_bfe_u32 v22, v{ln}, 4, 1               ; G&1
v_lshlrev_b32 v22, 5, v22
v_lshl_add_u32 v22, v19, 6, v22          ; r*64 + (G&1)*32
v_lshl_add_u32 v23, v21, 3, v22          ; + c4*8
v_lshl_add_u32 v{V_VL}, v18, 10, v23
v_and_b32 v23, 1, v21
v_lshrrev_b32 v24, 1, v21
v_lshl_add_u32 v23, v23, 1, v24          ; bitswap(c4)
v_lshl_add_u32 v23, v23, 3, v22
s_lshr_b32 s{S_T0}, s{S_W}, 1
s_lshl_b32 s{S_T0}, s{S_T0}, 14
v_lshl_add_u32 v24, v18, 11, v23
v_add_u32 v{V_WQL}, s{S_T0}, v24
s_lshl_b32 s{S_T0}, s{S_W}, 8
v_lshl_add_u32 v24, v18, 10, v23
v_add_u32 v{V_WOL}, s{S_T0}, v24
s_mul_i32 s{S_T0}, s{S_W}, {SLOT}
s_add_u32 s{S_T0}, s{S_T0}, {AUX}
v_lshlrev_b32 v24, 4, v{ln}
v_add_u32 v{V_OW}, s{S_T0}, v24
{f"s_lshr_b32 s{S_T0}, s{S_B}, 2" if cfg.khrot else f"s_mov_b32 s{S_T0}, 0"}            ; first head
s_mul_i32 s{S_T0}, s{S_T0}, {2*SLOT}
s_add_u32 s{S_T0}, s{S_T0}, {AUX}
v_add_u32 v{V_OR}, s{S_T0}, v24          ; O read (first head, th=0)
s_lshl_b32 s{S_T0}, s{S_W}, 12
v_add_u32 v{V_ST}, s{S_T0}, v24          ; partial store voffset: w*4096 + lane*16
s_mov_b32 s{S_THR}, {hex(f2u(2.0**cfg.thr_log2 if not cfg.force_rare else 4.0))}
s_mov_b32 s{S_QS}, {hex(f2u(QSCALE))}
""")
    R(EPOCH)
    if cfg.prio:
        R(f"s_setprio {cfg.prio}")
    if cfg.itlb:
        R("%WARM%")
    stamp(st, cfg, 1)

    def addr_update(c):
        base = (c % 4) * SLOT
        if c < 8:
            return [f"v_add_u32 v{V_XA0}, {base}, v{V_XL}", f"v_add_u32 v{V_TA}, {base}, v{V_WQL}",
                    f"v_xor_b32 v{V_XA1}, 32, v{V_XA0}"]
        if c < 16:
            return [f"v_add_u32 v{V_XA0}, {base}, v{V_KL}", f"v_add_u32 v{V_TA}, {base}, v{V_VL}",
                    f"v_xor_b32 v{V_XA1}, 32, v{V_XA0}"]
        return [f"v_add_u32 v{V_TA}, {base}, v{V_WOL}"]

    fr_i = [0]

    def next_frag():
        f = FR + 4 * (fr_i[0] % 8)
        fr_i[0] += 1
        return f

    def tr_pair(f, off0, off1, chunk, lead=None):
        return RG([f"ds_read_b64_tr_b16 {vr(f,2)}, v{V_TA} offset:{off0}",
                   f"ds_read_b64_tr_b16 {vr(f+2,2)}, v{V_TA} offset:{off1}"], chunk, lead)

    mfs, wins, pre, shadow, bar = [], [], {}, {}, {}
    xi = 0
    for c in range(8):
        bar[len(mfs) - 1 - cfg.BL if c else -1] = c
        xr = []
        for s in range(4):
            xf = XF + 4 * (xi % 4)
            xi += 1
            xr.append((xf, RG([f"ds_read_b128 {vr(xf,4)}, v{V_XA0 + (s & 1)} offset:{(s >> 1) * 512}"], c, cfg.D1)))
        order = [(s, t) for s in range(4) for t in range(4)]
        if c == 7 and cfg.t1:
            order = [(s, t) for t in range(4) for s in range(4)]
        for s, t in order:
            f = next_frag()
            rg = tr_pair(f, (4 * s) * 1024 + t * 256, (4 * s + 1) * 1024 + t * 256, c, cfg.D1)
            cin = "0" if (c == 0 and s == 0) else ACC + 16 * t
            mfs.append(MF(mfma(ACC + 16 * t, f, xr[s][0], cin), [xr[s][1], rg], c))
    n1 = len(mfs)
    pre[n1] = [lambda: stamp(st, cfg, 2)] + (["s_waitcnt vmcnt(0)"] if cfg.codepf == 1 else [])
    for h in range(8):
        ops = [f"v_mul_f32 v{ACC+8*h+i}, s{S_QS}, v{ACC+8*h+i}" for i in range(8)]
        ops += [f"v_cvt_pk_bf16_f32 v{QR+4*h+i}, v{ACC+8*h+2*i}, v{ACC+8*h+2*i+1}" for i in range(4)]
        if cfg.t1:
            wins.append((ops, n1 - 16 + 4 * (h >> 1) + 5, n1 + h - 1))
        else:
            pre[n1] += ops
    items = kv_items(cfg)
    NB = cfg.skew + 1
    start = {}
    for q, (kind, t) in enumerate(items):
        c = 8 + (q >> 2)
        tb = (q & 3) * 8192
        if (q & 3) == 0:
            bar[len(mfs) - 1 - cfg.BL] = c
        start[(kind, t)] = len(mfs)
        if kind == "K":
            S = SB[t % NB]
            for s in range(8):
                f = next_frag()
                rg = RG([f"ds_read_b128 {vr(f,4)}, v{V_XA0 + (s & 1)} offset:{tb + (s >> 1) * 256}"], c, cfg.D2)
                cin = S if s else ("0" if t <= cfg.skew else NEGM)
                mfs.append(MF(mfma(S, f, QR + 4 * s, cin), [rg], c))
        else:
            order = [(u, d) for u in range(2) for d in range(4)]
            if t == 15 and cfg.t3:
                order = [(u, d) for d in range(4) for u in range(2)]
            for u, d in order:
                if True:
                    f = next_frag()
                    rg = tr_pair(f, tb + (4 * u) * 1024 + d * 256, tb + (4 * u + 2) * 1024 + d * 256, c, cfg.D2)
                    cin = "0" if (t == 0 and u == 0) else ACC + 16 * d
                    mfs.append(MF(mfma(ACC + 16 * d, f, PB[t % NB] + 4 * u, cin), [rg], c))
    S = SB[0]
    ops0 = ["v_max3_f32 v%d, v%d, v%d, v%d" % (V_T0, S, S + 1, S + 2)]
    for i in range(3, 15, 2):
        ops0.append("v_max3_f32 v%d, v%d, v%d, v%d" % (V_T0, V_T0, S + i, S + i + 1))
    ops0.append("v_max_f32 v%d, v%d, v%d" % (V_T0, V_T0, S + 15))
    ops0.append("v_mov_b32 v%d, v%d" % (V_T1, V_T0))
    ops0.append("v_permlane32_swap_b32 v%d, v%d" % (V_T0, V_T1))
    ops0.append("v_max_f32 v%d, v%d, v%d" % (V_T0, V_T0, V_T1))
    ops0.append("v_sub_f32 v%d, 0, v%d" % (NEGM, V_T0))
    ops0 += softmax_ops(0, True, NB)
    ops0.append("v_mov_b32 v%d, v%d" % (V_L, LT[0]))
    chain = [(ops0, start[("K", 1)] + 1, start[("V", 0)] - 1, None)]
    nb = ["v_mov_b32 v%d, v%d" % (NEGM + i, NEGM) for i in range(1, 16)]
    chain.append((nb, start[("V", 0)], start[("K", cfg.skew + 1)] - 2, None))
    for t in range(1, 16):
        ops = softmax_ops(t, t <= cfg.skew, NB) + ["v_cmp_nge_f32 vcc, s%d, v%d" % (S_THR, LT[t & 1])]
        chain.append((ops, start[("K", t)] + 9, start[("V", t)] - 1, t))
    rare = []

    def place_check(t, g):
        live = [u for u in range(t + 1, 16) if start[("K", u)] <= g and u > cfg.skew]
        pend = [u for u in range(t) if start[("V", u)] + 7 > g]
        rare.extend(rare_path(t, NB, live, pend))
        return ["s_cbranch_vccnz L_rare%d" % t, "L_back%d:" % t], "v_add_f32 v%d, v%d, v%d" % (V_L, LT[t & 1], V_L)
    wins.append(("chain", chain, place_check))
    pv = start[("V", 15)]
    nend = len(mfs)
    lops = [f"v_mov_b32 v{V_T0}, v{V_L}", "s_nop 0", "s_nop 0", f"v_permlane32_swap_b32 v{V_L}, v{V_T0}",
            f"v_add_f32 v{V_L}, v{V_L}, v{V_T0}", f"v_rcp_f32 v{V_L}, v{V_L}"]

    def norm_ops(ks, packed):
        a = ACC + 8 * ks
        if packed:
            o = [f"v_pk_mul_f32 v[{a+2*i}:{a+2*i+1}], v[{a+2*i}:{a+2*i+1}], v[{V_L}:{V_L+1}] op_sel_hi:[1,0]" for i in range(4)]
        else:
            o = [f"v_mul_f32 v{a+i}, v{V_L}, v{a+i}" for i in range(8)]
        o += [f"v_cvt_pk_bf16_f32 v{QR+4*ks+i}, v{a+2*i}, v{a+2*i+1}" for i in range(4)]
        return o + [(f"ds_write_b128 v{V_OW}, {vr(QR+4*ks,4)} offset:{ks*1024}", 12)]
    if cfg.t3:
        wins.append((lops, pv, pv + 2))
        for ks in range(cfg.t3):
            wins.append((norm_ops(ks, False), pv + 3 + 2 * (ks >> 1), nend - 1))
        post = sum((norm_ops(ks, cfg.pk) for ks in range(cfg.t3, 8)), [])
    else:
        post = lops + sum((norm_ops(ks, cfg.pk) for ks in range(8)), [])
    emit_schedule(st, mfs, wins, pre, shadow, cfg, cfg.D2, bar, addr_update)
    stamp(st, cfg, 3)
    for o in pre.get(nend, []) + post:
        if isinstance(o, tuple):
            st.ds(o[0])
        else:
            R(o)
    R((f"s_lshr_b32 s{S_T0}, s{S_B}, 2" if cfg.khrot else f"s_mov_b32 s{S_T0}, 0") + f"\ns_xor_b32 s{S_T0}, s{S_T0}, 1\ns_mul_i32 s{S_T0}, s{S_T0}, {2*SLOT}\ns_add_u32 s{S_T0}, s{S_T0}, {AUX}")
    R(f"v_and_b32 v{V_OW+0}, 63, v0\nv_lshlrev_b32 v{V_T0}, 4, v{V_OW}")
    st.lines.pop(); st.lines.pop()
    R(f"v_and_b32 v{V_T1}, 63, v0\nv_lshlrev_b32 v{V_T1}, 4, v{V_T1}\nv_add_u32 v{V_XA0}, s{S_T0}, v{V_T1}")
    mfs, wins, pre, shadow, bar = [], [], {}, {}, {}
    orgs = {}
    for i in range(4):
        A = ACC + 32 * (i & 1)
        for kh in range(2):
            c = 16 + 2 * i + kh
            bar[len(mfs) - 1 - cfg.BL if c > 16 else -1] = c
            for ks in range(8):
                f = next_frag()
                rg = tr_pair(f, (4 * ks) * 1024, (4 * ks + 2) * 1024, c, cfg.D3)
                for th in range(2):
                    o = OF + 64 * kh + 32 * th + 4 * ks
                    reads = [rg]
                    if i == 0:
                        areg = V_OR if kh == 0 else V_XA0
                        reads.append(RG([f"ds_read_b128 {vr(o,4)}, v{areg} offset:{th*SLOT + ks*1024}"], 16, cfg.D3 - 2))
                        reads[-1].free = True
                    cin = "0" if (kh == 0 and ks == 0) else A + 16 * th
                    mfs.append(MF(mfma(A + 16 * th, f, o, cin), reads, c))

    def cvt_ops(i, f):
        A = ACC + 32 * (i & 1) + 8 * f
        return [f"v_cvt_pk_bf16_f32 v{PK+4*f+j}, v{A+2*j}, v{A+2*j+1}" for j in range(4)]

    def st_op(i, f):
        return [f"buffer_store_dwordx4 {vr(PK+4*f,4)}, v{V_ST}, s[{S_WS}:{S_WS+3}], s{S_NC0+i} offen offset:{f*1024} {cfg.st_pol}"]

    def flag_op(i):
        return f"buffer_store_dwordx2 v[{H_TAG}:{H_TAG+1}], v{H_FL}, s[{S_IN}:{S_IN+3}], 0 offen offset:{128*i} {cfg.fpol}"
    wins.append(([f"s_add_u32 s{S_NC0+i}, s{S_HPO}, {i*16384}" for i in range(4)], 33, 40))
    vq, sent = [], set()

    def vwait(tag):
        p = max(k for k, t in enumerate(vq) if t == tag)
        n = len(vq) - 1 - p
        del vq[:p + 1]
        return f"s_waitcnt vmcnt({n})"
    if cfg.stmode == "late":
        vq += [("st", 0)] * 3 + [("st", 1), ("st", 0)] + [("st", 1)] * 3 + [("st", 2)] * 4
        wins.append((sum((cvt_ops(0, f) for f in range(4)), []), 33, 60))
        wins.append((handoff_addr(3, "q"), 40, 78))
        g = 80 + cfg.ST0
        for f in range(4):
            wins.append((st_op(0, f), g + 2 * f, 94))
        for f in range(4):
            wins.append((cvt_ops(1, f) + st_op(1, f), g + 2 * f + 3, 94))
        for f in range(4):
            wins.append((cvt_ops(2, f) + st_op(2, f), 97 + 3 * f, 126))
    else:
        wins.append((handoff_addr(3, "q"), 33, 60))
        ev = []
        for i in range(3):
            for f in range(4):
                ev.append((32 * (i + 1) + 2 + cfg.STS * f, "st", i, f))
        ev.append((cfg.FL0, "fl", 0, 0))
        ev.append((cfg.FL1, "fl", 1, 0))
        for g, kind, i, f in sorted(ev):
            if kind == "st":
                wins.append((cvt_ops(i, f) + st_op(i, f), g, 32 * (i + 2) - 1))
                vq.append(("st", i))
            elif g < 128:
                wins.append(([vwait(("st", i)), flag_op(i)], g, 127))
                vq.append(("fl", i))
                sent.add(i)
    if cfg.endbar and cfg.EB < 128:
        shadow[cfg.EB] = ["s_barrier"]
    emit_schedule(st, mfs, wins, pre, shadow, cfg, cfg.D3, bar, addr_update, virtual={23})
    stamp(st, cfg, 4)
    if cfg.tst:
        R(tstamp(cfg, 0))
    if cfg.stamps:
        vq.append("stamp")
    for f in range(4):
        R("\n".join(cvt_ops(3, f) + st_op(3, f)))
        vq.append(("st", 3))
    if cfg.tst:
        R(tstamp(cfg, 1))
    for i in range(4):
        if i not in sent:
            if ("st", i) in vq:
                R(vwait(("st", i)))
            R(flag_op(i))
            vq.append(("fl", i))
        if i == 1 and cfg.endbar and cfg.EB >= 128:
            R("s_barrier" if not cfg.ldsgo else f"ds_write_b32 v{V_OW}, v{H_TAG}")
        if i == 2 and cfg.tst:
            R(tstamp(cfg, 2))
    if cfg.tst:
        R(tstamp(cfg, 3))
    stamp(st, cfg, 8)
    if not cfg.seq:
        rc = reduce_code(cfg, 3, "q", "c").split("L_go_c:\n")
        R(rc[0] + "L_go_c:")
        stamp(st, cfg, 9)
        R(rc[1])
        R(EPOCH_NEXT)
    stamp(st, cfg, 10)
    if cfg.stamps:
        R("s_waitcnt vmcnt(0)")
        stamp(st, cfg, 5)
        R(f"s_memrealtime s[{S_STT}:{S_STT+1}]\ns_waitcnt lgkmcnt(0)\nv_mov_b32 v{V_T0}, s{S_STT}\nv_mov_b32 v{V_T1}, 28\nglobal_store_dword v{V_T1}, v{V_T0}, s[{S_STB}:{S_STB+1}]")
    if cfg.tst:
        R(tst_end(cfg, 0))
    if cfg.span:
        R(span_end(cfg, 0))
    R("s_endpgm")
    R("L_main_end:")
    R("\n".join(rare))
    if cfg.dbg:
        keep = []
        nmf = [0]
        for l in st.lines:
            t = l.strip()
            if "E" in cfg.dbg and t.startswith("v_exp"): continue
            if "A" in cfg.dbg and t.startswith("v_add_f32"): continue
            if "C" in cfg.dbg and t.startswith("v_cvt_pk") and (" v19" in t.split(",")[0] or " v20" in t.split(",")[0]): continue
            if "K" in cfg.dbg and t.startswith("ds_read_b128"): continue
            if "T" in cfg.dbg and t.startswith("ds_read_b64_tr"): continue
            if "W" in cfg.dbg and t.startswith("s_waitcnt lgkmcnt"): continue
            if "B" in cfg.dbg and (t.startswith("s_cbranch_vccnz") or t.startswith("v_cmp_nge")): continue
            if t.startswith("v_mfma"):
                nmf[0] += 1
                ph = 1 if nmf[0] <= 128 else 2 if nmf[0] <= 384 else 3
                if "xyz"[ph - 1] in cfg.dbg:
                    continue
                if str(ph) in cfg.dbg:
                    m = re.match(r"v_mfma_f32_32x32x16_bf16 v\[(\d+):\d+\], (v\[\d+:\d+\]), (v\[\d+:\d+\]), (.*)", t)
                    d = int(m.group(1)) + 8 * (nmf[0] >> 2 & 1)
                    for q in range(2):
                        dd = "v[%d:%d]" % (d + 4 * q, d + 4 * q + 3)
                        keep.append("  v_mfma_f32_16x16x32_bf16 %s, %s, %s, %s" % (dd, m.group(2), m.group(3), dd if m.group(4) != "0" else "0"))
                    continue
            keep.append(l)
        st.lines = keep
    n0 = len(st.lines)
    st.lines = fix_hazards(st.lines)
    if cfg.verbose:
        print("hazard nops inserted:", len(st.lines) - n0, file=sys.stderr)
    return st.text()


def rest_setup():
    return f"""
s_lshl_b32 s{S_GRP}, s{S_BR}, 3
s_add_u32 s{S_GRP}, s{S_GRP}, s{S_B}
s_lshl_b32 s18, s{S_GRP}, 8
s_add_u32 s18, s18, 0x1040000
s_add_u32 s{S_EP}, s74, s18
s_addc_u32 s{S_EP+1}, s75, 0
s_load_dword s{S_EP+2}, s[{S_EP}:{S_EP+1}], 0
s_lshl_b32 s10, s{S_B}, 3
s_add_u32 s10, s10, s91
s_lshl_b32 s10, s10, 17
s_lshl_b32 s13, s{S_HP}, 18
s_lshl_b32 s14, s{S_GRP}, 20
s_lshl_b32 s{S_HPO}, s{S_HP}, 16
s_lshl_b32 s15, s{S_GRP}, 13
s_add_u32 s15, s15, 0x1000000
s_lshl_b32 s90, s{S_BR}, 10
s_lshl_b32 s19, s{S_B}, 17
s_add_u32 s19, s19, s90
s_add_u32 s{S_K}, s66, s10
s_addc_u32 s{S_K+1}, s67, 0
s_mov_b32 s{S_K+2}, 0x20000
s_mov_b32 s{S_K+3}, 0x20000
s_add_u32 s{S_V}, s68, s10
s_addc_u32 s{S_V+1}, s69, 0
s_mov_b32 s{S_V+2}, 0x20000
s_mov_b32 s{S_V+3}, 0x20000
s_add_u32 s{S_WO}, s72, s13
s_addc_u32 s{S_WO+1}, s73, 0
s_mov_b32 s{S_WO+2}, 0x40000
s_mov_b32 s{S_WO+3}, 0x20000
s_add_u32 s{S_WS}, s74, s14
s_addc_u32 s{S_WS+1}, s75, 0
s_mov_b32 s{S_WS+2}, 0x100000
s_mov_b32 s{S_WS+3}, 0x20000
s_add_u32 s{S_IN}, s74, s15
s_addc_u32 s{S_IN+1}, s75, 0
s_mov_b32 s{S_IN+2}, 0x2000
s_mov_b32 s{S_IN+3}, 0x20000
s_add_u32 s{S_OUT}, s92, s19
s_addc_u32 s{S_OUT+1}, s93, 0
s_sub_u32 s{S_OUT+2}, 0x20000, s90
s_mov_b32 s{S_OUT+3}, 0x20000
"""


def gen_loader(cfg):
    L = []
    R = lambda t: L.extend(("  " + l.strip()) if not l.endswith(":") else l for l in t.strip("\n").split("\n"))
    vWQ, vX, vK, vV, vWO = 1, 2, 3, 4, 5
    R(f"""
L_loader:
s_sub_u32 s{S_W}, s{S_W}, 4
s_lshl_b32 s5, s5, 1
s_add_u32 s5, s5, s{S_ROT}
%ROT%
s_lshl_b32 s11, s{S_B}, 16      ; x offset
s_lshl_b32 s12, s{S_HP}, 9
s_mov_b32 s{S_X+2}, 0x10000
s_mov_b32 s{S_X+3}, 0x20000
s_sub_u32 s{S_WQ+2}, 0x400000, s12
s_mov_b32 s{S_WQ+3}, 0x20000
v_and_b32 v10, 63, v0
v_lshrrev_b32 v11, 4, v10               ; t = i>>4
v_bfe_u32 v12, v10, 2, 2                ; r
v_and_b32 v13, 3, v10                   ; c
v_lshlrev_b32 v14, 6, v11
v_lshl_add_u32 v15, v13, 4, v14         ; t*64 + c*16
s_and_b32 s{S_T0}, s{S_W}, 1
s_lshl_b32 s{S_T0}, s{S_T0}, 18
s_lshr_b32 s{S_T1}, s{S_W}, 1
s_lshl_b32 s{S_T1}, s{S_T1}, 8
s_add_u32 s{S_T0}, s{S_T0}, s{S_T1}
v_lshl_add_u32 v16, v12, 13, v15
v_add_u32 v{vWQ}, s{S_T0}, v16
s_lshl_b32 s{S_M8}, s{S_W}, 13
s_lshl_b32 s{S_M1}, s{S_W}, 10
v_and_b32 v16, 1, v11                   ; tq
s_and_b32 s{S_T0}, s{S_W}, 1
s_lshl_b32 s{S_T0}, s{S_T0}, 1
v_or_b32 v17, s{S_T0}, v16              ; g
v_xor_b32 v17, v17, v13
v_lshlrev_b32 v17, 4, v17
v_lshrrev_b32 v18, 1, v11               ; ch
v_lshl_add_u32 v17, v18, 6, v17
v_lshl_add_u32 v18, v16, 2, v12         ; 4tq + t3
v_lshl_add_u32 v17, v18, 10, v17
v_add_u32 v{vX}, s{S_M8}, v17           ; + 8*lw*1024
s_waitcnt lgkmcnt(0)
s_add_u32 s{S_X}, s64, s11
s_addc_u32 s{S_X+1}, s65, 0
s_add_u32 s{S_WQ}, s70, s12
s_addc_u32 s{S_WQ+1}, s71, 0
""")
    vq = []

    def pieces(c):
        base = (c % 4) * SLOT
        sa, sb = (50 + 2 * (c & 1), 51 + 2 * (c & 1)) if c < cfg.rst else (54, 55)
        P = []
        if c < 8:
            if cfg.ramp:
                pro = f"s_bfe_u32 s{sa}, s{S_ROT}, {hex(0x30000 + 4*c)}\n"
            else:
                pro = f"s_add_u32 s{sa}, s{S_ROT}, {c}\ns_and_b32 s{sa}, s{sa}, 7\n"
            pro += f"s_lshl_b32 s{sb}, s{sa}, 7\ns_lshl_b32 s{sa}, s{sa}, 19\n"
            for p in range(2):
                P.append(f"s_add_u32 m0, s{S_M1}, {base + AUX + p*4096}\ns_add_u32 s{S_T2}, s{sb}, {p*32768}\n"
                         f"buffer_load_dwordx4 v{vX}, s[{S_X}:{S_X+3}], s{S_T2} offen {cfg.nt_w} lds")
            for p in range(8):
                P.append(f"s_add_u32 m0, s{S_M8}, {base + p*1024}\ns_add_u32 s{S_T2}, s{sa}, {p*32768}\n"
                         f"buffer_load_dwordx4 v{vWQ}, s[{S_WQ}:{S_WQ+3}], s{S_T2} offen {cfg.nt_w} lds")
        elif c < 16:
            pro = ""
            js = list(range(4))
            if cfg.kkvv:
                js.sort(key=lambda j: kv_items(cfg)[(c - 8) * 4 + j])
            for j in js:
                kind, t = kv_items(cfg)[(c - 8) * 4 + j]
                v, sr = (vK, S_K) if kind == "K" else (vV, S_V)
                for p in range(2):
                    if cfg.kvrot:
                        off = f"s_add_u32 s{S_T2}, s{S_KVR}, {t*8192 + p*4096}\ns_and_b32 s{S_T2}, s{S_T2}, 0x1ffff"
                    else:
                        off = f"s_mov_b32 s{S_T2}, {t*8192 + p*4096}"
                    P.append(f"s_add_u32 m0, s{S_M1}, {base + j*8192 + p*4096}\n{off}\n"
                             f"buffer_load_dwordx4 v{v}, s[{sr}:{sr+3}], s{S_T2} offen {cfg.nt_kv} lds")
        else:
            i, kh = (c - 16) >> 1, (c - 16) & 1
            pro = f"s_add_u32 s{sa}, s{S_B}, {i}\ns_and_b32 s{sa}, s{sa}, 3\ns_lshl_b32 s{sa}, s{sa}, 8\n"
            if cfg.khrot:
                pro += f"s_lshr_b32 s{sb}, s{S_B}, 2\ns_xor_b32 s{sb}, s{sb}, {kh}\ns_lshl_b32 s{sb}, s{sb}, 17\ns_add_u32 s{sa}, s{sa}, s{sb}\n"
            for p in range(8):
                if c >= cfg.rst:
                    rg = 256 - 32 * (24 - c) + 4 * p
                    P.append(f"s_add_u32 s{S_T2}, s{sa}, {p*4096 + (0 if cfg.khrot else kh << 17)}\n"
                             f"buffer_load_dwordx4 v[{rg}:{rg+3}], v{vWO}, s[{S_WO}:{S_WO+3}], s{S_T2} offen {cfg.nt_w}")
                    continue
                P.append(f"s_add_u32 m0, s{S_M8}, {base + p*1024}\ns_add_u32 s{S_T2}, s{sa}, {p*4096 + (0 if cfg.khrot else kh << 17)}\n"
                         f"buffer_load_dwordx4 v{vWO}, s[{S_WO}:{S_WO+3}], s{S_T2} offen {cfg.nt_w} lds")
        P[0] = pro + P[0]
        return P

    todo = [(c, k, len(pieces(c)), t) for c in range(cfg.rst) for k, t in enumerate(pieces(c))]
    rtodo = [(c, t) for c in range(cfg.rst, 24) for t in pieces(c)]
    rcum = {int(e[0], 36): int(e[1:]) for e in cfg.rplan.split(",") if e}
    nstaged = [0]

    def issue_staged(s):
        want = rcum.get(s, 0) * 4 if s in rcum else 0
        if s == max(rcum, default=16):
            want = 999
        while rtodo and nstaged[0] < want:
            c, t = rtodo.pop(0)
            R(t)
            vq.append(("r", c))
            nstaged[0] += 1

    def write_staged(c):
        wait_for(("r", c))
        R(f"v_add_u32 v9, {(c % 4) * SLOT}, v11")
        for p in range(8):
            rg = 256 - 32 * (24 - c) + 4 * p
            R(f"ds_write_b128 v9, v[{rg}:{rg+3}] offset:{p*1024}")

    def issue_to(pos):
        while todo and todo[0][0] + (todo[0][1] + 1) / todo[0][2] <= pos + 1e-6:
            c, k, n, t = todo.pop(0)
            if c == 1 and k == 0 and cfg.prow >= 0:
                R(f"s_waitcnt vmcnt({cfg.prow})")
            if cfg.win and cfg.pace0 <= c <= cfg.pace1 and len(vq) >= cfg.win:
                R(f"s_waitcnt vmcnt({cfg.win - 1})")
                del vq[:len(vq) - (cfg.win - 1)]
            R(t)
            if cfg.pace and cfg.pace0 <= c <= cfg.pace1:
                R(cfg.pace.replace(";", "\n"))
            vq.append(("c", c))

    def lstamp(i):
        if cfg.lstamps:
            R(f"s_memtime s[{S_STT}:{S_STT+1}]\ns_waitcnt lgkmcnt(0)\nv_writelane_b32 v90, s{S_STT}, {i}")
    lstamp(50)
    issue_to(1)
    lstamp(51)
    R(rest_setup())
    R(f"v_lshlrev_b32 v11, 4, v10\nv_add_u32 v11, s{S_M8}, v11") if False else None
    if cfg.kvrot == 1:
        R(f"s_lshl_b32 s{S_KVR}, s{S_B}, 1\ns_add_u32 s{S_KVR}, s{S_KVR}, s91\ns_lshl_b32 s{S_KVR}, s{S_KVR}, 13")
    elif cfg.kvrot == 2:
        R(f"s_mul_i32 s{S_KVR}, s91, 5\ns_mul_i32 s{S_T0}, s{S_B}, 3\ns_add_u32 s{S_KVR}, s{S_KVR}, s{S_T0}\ns_lshl_b32 s{S_KVR}, s{S_KVR}, 13")
    elif cfg.kvrot == 3:
        R(f"s_lshl_b32 s{S_KVR}, s{S_B}, 1\ns_add_u32 s{S_KVR}, s{S_KVR}, s91\ns_and_b32 s{S_T0}, s{S_HP}, 1\ns_mul_i32 s{S_T0}, s{S_T0}, {cfg.kvd}\ns_add_u32 s{S_KVR}, s{S_KVR}, s{S_T0}\ns_lshl_b32 s{S_KVR}, s{S_KVR}, 13")
    R(f"""
v_lshl_add_u32 v16, v12, 8, v15
v_add_u32 v{vV}, s{S_M1}, v16
v_xor_b32 v16, s{S_W}, v13
v_lshl_add_u32 v16, v16, 4, v14
v_lshl_add_u32 v16, v12, 8, v16
v_add_u32 v{vK}, s{S_M1}, v16
v_lshl_add_u32 v16, v12, 10, v15
s_lshl_b32 s{S_T0}, s{S_W}, 15
v_add_u32 v{vWO}, s{S_T0}, v16
v_lshlrev_b32 v11, 4, v10
v_add_u32 v11, s{S_M8}, v11
""")
    depth = [int(ch, 16) / 4 for ch in cfg.plan]
    depth += [depth[-1]] * (24 - len(depth))

    def wait_for(*tags):
        pos = [k for k, t in enumerate(vq) if t in tags]
        if pos:
            n = len(vq) - 1 - max(pos)
            R(f"s_waitcnt vmcnt({n})")
            del vq[:max(pos) + 1]

    for s in range(23):
        assert s + depth[s] <= max(3, s + 2)
        issue_to(s + 1 + depth[s])
        issue_staged(s)
        if s + 2 >= cfg.rst and s + 2 < 24 and s >= 3:
            write_staged(s + 2)
        if s == 0:
            lstamp(48)
        if s == cfg.openin:
            R(f"""s_mul_i32 s{S_T0}, s{S_HP}, 520
v_lshlrev_b32 v6, 7, v10
v_mov_b32 v7, 0x7fff0000
v_cmp_gt_u32 vcc, 4, v0
v_mov_b32 v8, 0
v_mov_b32 v9, 0
v_lshlrev_b32 v6, 7, v10
v_subrev_u32 v16, 256, v0
v_cmp_gt_u32 vcc, 4, v16
s_nop 1
v_cndmask_b32 v6, v7, v6, vcc
buffer_store_dwordx2 v[8:9], v6, s[{S_IN}:{S_IN+3}], s{S_T0} offen sc1""")
            vq.append("open")
        if s == cfg.openout:
            R(f"""s_and_b32 s{S_T0}, s{S_HP}, 3
s_lshl_b32 s{S_T0}, s{S_T0}, 15
s_lshr_b32 s{S_T1}, s{S_HP}, 2
s_lshl_b32 s{S_T1}, s{S_T1}, 6
s_add_u32 s{S_T0}, s{S_T0}, s{S_T1}
v_and_b32 v6, 15, v10
v_lshlrev_b32 v6, 11, v6
v_lshrrev_b32 v7, 4, v10
v_lshl_add_u32 v6, v7, 8, v6
s_cmp_lg_u32 s{S_W}, 1
s_cbranch_scc1 L_noout
buffer_load_dword v7, v6, s[{S_OUT}:{S_OUT+3}], s{S_T0} offen
L_noout:""")
            vq.insert(0, "x") if False else None
        if s == 12:
            R(EPOCH)
        wait_for(("c", s if s < 22 else 23))
        if s >= cfg.rst:
            R("s_waitcnt lgkmcnt(%d)" % (8 if s < 22 and not (cfg.tst or cfg.cyc or cfg.lstamps) else 0 if s == 22 else 8))
        lstamp(2 * s)
        R("s_barrier")
        if cfg.tst and s in (0, 8, 16):
            R(tstamp(cfg, s // 8) if not cfg.seq else tstamp(cfg, 6) if s == 16 else tstamp(cfg, 8 + s // 8))
        if cfg.cyc:
            if s:
                R(f"s_waitcnt lgkmcnt(0)\nv_writelane_b32 v90, s100, {2*s-2}\nv_writelane_b32 v90, s58, {2*s-1}")
            R("s_memtime s[100:101]\ns_memrealtime s[58:59]")
        lstamp(2 * s + 1)
    if not cfg.seq:
        R(f"s_cmp_eq_u32 s{S_W}, 3\ns_cbranch_scc1 L_ld_done")
    R("\n".join(handoff_addr(0, "q" if cfg.seq else "w")))
    R(f"s_lshl_b32 s{S_T1}, s{S_HP}, 9\nv_and_b32 v3, {63 if cfg.dyn else 31}, v10\nv_lshlrev_b32 v3, 3, v3\nv_add_u32 v3, s{S_T1}, v3")
    lstamp(46)
    if cfg.endbar and not cfg.ldsgo:
        R("s_barrier")
    if cfg.tst and not cfg.seq:
        R(tstamp(cfg, 3))
    lstamp(47)
    R(reduce_loop(cfg) if cfg.loopred else reduce_dyn(cfg) if cfg.seq and cfg.dyn else reduce_seq(cfg) if cfg.seq else reduce_code(cfg, f"s{S_W}", "w", "l"))
    R("L_ld_done:")
    if cfg.lstamps or cfg.cyc:
        R(f"""s_waitcnt lgkmcnt(0)
v_writelane_b32 v90, s62, 49
v_writelane_b32 v90, s60, 50
s_lshl_b32 s14, s2, 2
s_add_u32 s14, s14, s{S_W}
s_lshl_b32 s14, s14, 8
s_add_u32 s14, s14, 0x2100000
s_add_u32 s{S_STT}, s74, s14
s_addc_u32 s{S_STT+1}, s75, 0
v_lshlrev_b32 v21, 2, v10
global_store_dword v21, v90, s[{S_STT}:{S_STT+1}]""")
    if cfg.tst:
        R(tst_end(cfg, 4))
    if cfg.span:
        R(span_end(cfg, 4))
    R("s_endpgm")
    return "\n".join(L) + "\n"


def gen_main(cfg):
    name = NAME + "_kernel"
    s = f""".globl {name}
.p2align 12
.p2align 8
.type {name},@function
{name}:
  s_cmp_ge_u32 s2, 256
  s_cbranch_scc1 L_exit
"""
    if cfg.stamps or cfg.lstamps or cfg.span or cfg.tst:
        s += f"  s_memrealtime s[60:61]\n  s_memtime s[62:63]\n"
    s += f"""
  s_bfe_u32 s{S_BR}, s2, 0x10002
  s_mul_i32 s5, s{S_BR}, 40
  s_add_u32 s8, s0, s5
  s_addc_u32 s9, s1, 0
  s_load_dwordx8 s[64:71], s[8:9], 0      ; x k v wq
  s_load_dwordx2 s[72:73], s[8:9], 32     ; wo
  s_load_dwordx2 s[74:75], s[0:1], 96     ; ws
  s_load_dwordx2 s[92:93], s[0:1], 80     ; out
  v_lshrrev_b32 v1, 6, v0
  s_lshr_b32 s4, s2, 3            ; slot
  s_and_b32 s{S_ROT}, s4, 1
  v_readfirstlane_b32 s{S_W}, v1
  s_and_b32 s91, s2, 3
  s_lshl_b32 s91, s91, 1
  s_add_u32 s91, s91, s{S_ROT}    ; hkv
  {f"s_lshr_b32 s{S_B}, s4, 2" if cfg.remap else f"s_bfe_u32 s{S_B}, s4, 0x30001"}   ; b
  {"s_bfe_u32 s5, s4, 0x10001" if cfg.remap else "s_lshr_b32 s5, s4, 4"}            ; half
  s_lshl_b32 s{S_HP}, s91, 1
  s_add_u32 s{S_HP}, s{S_HP}, s5  ; hp
"""
    if cfg.stamps:
        s += f"""
  s_waitcnt lgkmcnt(0)
  s_lshl_b32 s14, s2, 3
  s_add_u32 s14, s14, s{S_W}
  s_lshl_b32 s14, s14, 6
  s_add_u32 s14, s14, 0x2000000
  s_add_u32 s{S_STB}, s74, s14
  s_addc_u32 s{S_STB+1}, s75, 0
  v_mov_b32 v{V_T0}, s62
  v_mov_b32 v{V_T1}, 0
  global_store_dword v{V_T1}, v{V_T0}, s[{S_STB}:{S_STB+1}]
  v_mov_b32 v{V_T0}, s60
  v_mov_b32 v{V_T1}, 24
  global_store_dword v{V_T1}, v{V_T0}, s[{S_STB}:{S_STB+1}]
  s_waitcnt vmcnt(0)
"""
    s += f"""
  s_cmp_lt_u32 s{S_W}, 4
  s_cbranch_scc1 L_compute
"""
    s += gen_loader(cfg)
    comp = gen_compute(cfg)
    s += ".p2align 12\n" + comp
    s += "L_exit:\n  s_endpgm\nL_code_end:\n"
    s = s.replace("CODE_BYTES", "0x7f80")
    rot = {8: f"  s_lshl_b32 s5, s5, 1\n  s_add_u32 s{S_ROT}, s5, s{S_B}",
           -8: f"  s_mov_b32 s{S_ROT}, s{S_B}",
           4: f"  s_add_u32 s5, s5, s{S_B}\n  s_lshl_b32 s{S_ROT}, s5, 1",
           2: f"  s_add_u32 s5, s5, s{S_B}\n  s_lshl_b32 s{S_ROT}, s5, 2",
           1: f"  s_mov_b32 s{S_ROT}, 0"}[cfg.rot]
    if cfg.ramp:
        sizes = [int(ch) for ch in cfg.ramp]
        tabs = []
        for q in range(8):
            first, o = 0, []
            for n in sizes:
                o.append(first + ((q >> 2) if n == 2 else (q >> 1) if n == 4 else q % n))
                first += n
            o += [c for c in range(8) if c not in o]
            tabs.append(sum(c << (4 * i) for i, c in enumerate(o)))
        rot = f"  s_lshl_b32 s5, s5, 1\n  s_add_u32 s5, s5, s{S_B}\n  s_and_b32 s5, s5, 7\n  s_mov_b32 s{S_ROT}, {hex(tabs[0])}"
        for q in range(1, 8):
            rot += f"\n  s_cmp_eq_u32 s5, {q}\n  s_cselect_b32 s{S_ROT}, {hex(tabs[q])}, s{S_ROT}"
    s = s.replace("%ROT%", rot)
    return s


def gen_reduce(cfg):
    name = "reduce_kernel"
    s = f""".globl {name}
.p2align 8
.type {name},@function
{name}:
  s_cmp_ge_u32 s2, 256
  s_cbranch_scc1 L_rexit
  s_load_dwordx2 s[4:5], s[0:1], 96
  s_load_dwordx2 s[6:7], s[0:1], 80
  s_lshr_b32 s8, s2, 4            ; group
  s_and_b32 s9, s2, 15            ; slice
  s_lshl_b32 s10, s8, 20
  s_lshl_b32 s11, s9, 12
  s_add_u32 s10, s10, s11
  v_lshlrev_b32 v1, 4, v0
  s_mov_b32 s14, 0x100000
  s_mov_b32 s15, 0x20000
  s_mov_b32 s18, 0x100000
  s_mov_b32 s19, 0x20000
  s_waitcnt lgkmcnt(0)
  s_add_u32 s12, s4, s10
  s_addc_u32 s13, s5, 0
  s_mov_b32 s16, s6
  s_mov_b32 s17, s7
"""
    for p in range(16):
        s += f"  s_mov_b32 s20, {p*65536}\n  buffer_load_dwordx4 v[{16+4*p}:{19+4*p}], v1, s[12:15], s20 offen {cfg.red_pol}\n"
    s += """
  s_and_b32 s20, s8, 7
  s_lshl_b32 s20, s20, 17
  s_lshr_b32 s21, s8, 3
  s_lshl_b32 s21, s21, 10
  s_add_u32 s20, s20, s21
  s_and_b32 s21, s9, 1
  s_lshl_b32 s21, s21, 16
  s_add_u32 s20, s20, s21
  s_lshr_b32 s21, s9, 1
  s_lshl_b32 s21, s21, 7
  s_add_u32 s20, s20, s21
  v_and_b32 v2, 31, v0
  v_lshlrev_b32 v2, 11, v2
  v_lshrrev_b32 v3, 5, v0
  v_lshl_add_u32 v2, v3, 4, v2
  s_mov_b32 s22, 0xffff0000
"""
    for p in range(16):
        s += f"  s_waitcnt vmcnt({15-p})\n"
        for j in range(4):
            r = 16 + 4 * p + j
            if p == 0:
                s += f"  v_lshlrev_b32 v{4+2*j}, 16, v{r}\n  v_and_b32 v{5+2*j}, s22, v{r}\n"
            else:
                s += f"  v_lshlrev_b32 v12, 16, v{r}\n  v_and_b32 v13, s22, v{r}\n  v_add_f32 v{4+2*j}, v12, v{4+2*j}\n  v_add_f32 v{5+2*j}, v13, v{5+2*j}\n"
    for j in range(4):
        s += f"  v_cvt_pk_bf16_f32 v{12+j}, v{4+2*j}, v{5+2*j}\n"
    s += """  buffer_store_dwordx4 v[12:15], v2, s[16:19], s20 offen
L_rexit:
  s_endpgm
"""
    return s


def desc(name, nv, ns):
    return f""".p2align 6
.amdhsa_kernel {name}
  .amdhsa_next_free_vgpr {nv}
  .amdhsa_next_free_sgpr {ns}
  .amdhsa_accum_offset {nv}
  .amdhsa_group_segment_fixed_size 0
  .amdhsa_kernarg_size 104
  .amdhsa_user_sgpr_count 2
  .amdhsa_user_sgpr_kernarg_segment_ptr 1
  .amdhsa_system_sgpr_workgroup_id_x 1
.end_amdhsa_kernel
"""


def generate(cfg):
    ref = open("cdna_kernels/%s.s.ref" % NAME).read().split("\n")
    head = [l for l in ref if l.startswith(";") and "@launch" not in l and "Override launch" not in l and "grid=ceil" not in l]
    head = head[:14]
    s = "\n".join(head) + "\n"
    s += f"; @launch grid=(256,1,1) block=(512,1,1) lds=163840\n"
    s += '.amdgcn_target "amdgcn-amd-amdhsa--gfx950"\n.text\n'
    s += gen_main(cfg)
    s += '.section .rodata,"a"\n'
    s += desc(NAME + "_kernel", 256, 102)
    return s


def add_page_stubs(text):
    import subprocess, tempfile, os
    lines = text.split("\n")
    i0 = lines.index("L_compute:")
    i1 = lines.index("L_main_end:")
    iw = next(i for i, l in enumerate(lines) if l.strip() == "%WARM%")
    nwarm = 10
    probe = lines[:iw] + ["  s_nop 0"] * nwarm + lines[iw + 1:]
    d = tempfile.mkdtemp()
    open(d + "/p.s", "w").write("\n".join(probe))
    subprocess.check_call(["clang", "-x", "assembler", "-target", "amdgcn-amd-amdhsa", "-mcpu=gfx950", "-c", d + "/p.s", "-o", d + "/p.o"])
    dis = subprocess.check_output(["llvm-objdump", "-d", "--mcpu=gfx950", d + "/p.o"], text=True).split("\n")
    k = next(i for i, l in enumerate(dis) if l.endswith("<L_compute>:"))
    sizes = [4 * len(l.split("//")[1].split(":")[1].split()) for l in dis[k:] if "//" in l]
    out, addr, n, stubs = probe[:i0 + 1], 0, 0, []
    for l in probe[i0 + 1:i1 + nwarm - 1]:
        t = l.split(";")[0].strip()
        if t and not t.endswith(":"):
            if addr // 4096 > len(stubs):
                stubs.append(len(out))
                out.append(None)
                addr += 4
            addr += sizes[n]
            n += 1
        out.append(l)
    out += probe[i1 + nwarm - 1:]
    ns = len(stubs)
    for j, p in enumerate(stubs):
        tgt = "L_stub%d" % (j + 4) if j + 4 < ns else "L_warm_ret"
        out[p] = "L_stub%d:\n  s_cbranch_execz %s" % (j, tgt)
    warm = ["  s_mov_b64 exec, 0"]
    for w in range(4):
        warm += ["  s_cmp_eq_u32 s%d, %d" % (S_W, w), "  s_cbranch_scc1 %s" % ("L_stub%d" % w if w < ns else "L_warm_ret")]
    warm += ["L_warm_ret:\n  s_mov_b64 exec, -1"]
    out[iw:iw + nwarm] = warm
    return "\n".join(out)


if __name__ == "__main__":
    cfg = Cfg()
    out = sys.argv[1]
    for a in sys.argv[2:]:
        k, v = a.split("=")
        old = getattr(cfg, k)
        if isinstance(old, bool):
            v = v in ("1", "True", "true")
        elif isinstance(old, int):
            v = int(v)
        elif isinstance(old, float):
            v = float(v)
        else:
            v = v.replace("+", " ").replace("/", ",")
        setattr(cfg, k, v)
    txt = generate(cfg)
    if cfg.itlb:
        txt = add_page_stubs(txt)
    open(out, "w").write(txt)
```

```python
import sys, re, math

NAME = "concat_heads__gqa_block_cached__gqa_block_cached__near_ridge"
SLOT = 40960
AUX = 32768
QSCALE = math.log2(math.e) / math.sqrt(128.0)


def f2u(x):
    import struct
    return struct.unpack("<I", struct.pack("<f", x))[0]


class Cfg:
    nt_w = ""
    nt_kv = ""
    st_pol = "sc1"
    red_pol = "sc1"
    out_pol = ""
    spin = 2000000
    ST0 = 0
    kvrot = 0
    kvd = 0
    cyc = False
    prow = -1
    tlb = False
    seq = True
    dyn = False
    EB = 200
    t1 = True
    t3 = 2
    pk = True
    touch = ''
    part1 = 10
    FL0 = 90
    FL1 = 122
    endbar = True
    psleep = 0
    remap = True
    span = False
    tst = False
    itlb = True
    STS = 4
    stmode = 'spread'
    prio = 0
    pace = ''
    pace0 = 8
    pace1 = 17
    D1 = 7
    D2 = 7
    D3 = 8
    BL = 3
    stamps = False
    lstamps = False
    codepf = 2
    thr_log2 = 24.0
    rot = 2
    WP = 2
    dbg = ''
    verbose = False
    CAP = 4
    CAPB = 2
    BARC = 4
    MINLEAD = 3
    WL = 3
    nodrain = False
    pro = 4
    plan = '44444444456678'
    ppol = 'sc1'
    fpol = 'sc1'
    rounds = '0,1,2,3'
    khrot = False
    rst = 22
    rplan = 'g4'
    openin = 1
    openout = -1
    skew = 2
    own = True
    x4 = True
    win = 7
    kkvv = False
    early = 0
    esleep = 0
    ldsgo = True
    loopred = False
    dry = True
    ramp = ''
    force_rare = False


class Stream:
    def __init__(self):
        self.lines = []
        self.dsq = []
        self.nid = 0

    def raw(self, t):
        for l in t.strip("\n").split("\n"):
            self.lines.append(l if l.endswith(":") else "  " + l.strip())

    def ds(self, t):
        if len(self.dsq) >= 15:
            self.lines.append("  s_waitcnt lgkmcnt(11)")
            self.dsq = self.dsq[-11:]
        self.nid += 1
        self.dsq.append(self.nid)
        self.lines.append("  " + t)
        return self.nid

    def need(self, ids):
        pos = [self.dsq.index(i) for i in ids if i in self.dsq]
        if not pos:
            return
        p = max(pos)
        n = len(self.dsq) - 1 - p
        self.lines.append("  s_waitcnt lgkmcnt(%d)" % n)
        self.dsq = self.dsq[p + 1:]

    def drain(self):
        if self.dsq:
            self.lines.append("  s_waitcnt lgkmcnt(0)")
        self.dsq = []

    def text(self):
        return "\n".join(self.lines) + "\n"


def vr(a, n=1):
    return "v%d" % a if n == 1 else "v[%d:%d]" % (a, a + n - 1)


def mfma(d, a, b, c):
    cs = c if isinstance(c, str) else vr(c, 16)
    return "v_mfma_f32_32x32x16_bf16 %s, %s, %s, %s" % (vr(d, 16), vr(a, 4), vr(b, 4), cs)


V_TID = 0
V_XA0, V_XA1 = 1, 2
V_TA = 3
V_XL, V_KL = 4, 5
V_WQL, V_VL, V_WOL = 6, 7, 8
V_OW, V_OR = 9, 10
V_ST = 11
V_L, V_LT = 12, 13
V_T0, V_T1 = 14, 15
V_PF = 255
FR = 16
XF = 48
ET = 48
PK = 48
ACC = 64
QR = 128
SB = [160, 176, 224]
PB = [192, 200, 240]
LT = [13, 60]
NEGM = 208
OF = 128

S_W = 3
S_B, S_HP, S_GRP, S_BR = 6, 7, 16, 17
S_X, S_K, S_V, S_WQ, S_WO = 20, 24, 28, 32, 36
S_WS = 40
S_T0, S_T1, S_T2 = 44, 45, 46
S_M8, S_M1 = 47, 48
S_NC0 = 50
S_THR = 54
S_QS = 55
S_ROT = 49
S_KVR = 83
S_IN, S_OUT = 76, 84
S_HPO = 88
S_CNT = 89
S_STB = 56
S_STT = 58


class MF:
    def __init__(self, text, reads=None, chunk=None):
        self.text = text
        self.reads = reads or []
        self.chunk = chunk


class RG:
    def __init__(self, texts, chunk, lead=None):
        self.texts = texts
        self.chunk = chunk
        self.ids = None
        self.lead = lead


def stamp(st, cfg, idx):
    if not cfg.stamps:
        return
    st_l = []
    st_l.append("s_memtime s[%d:%d]" % (S_STT, S_STT + 1))
    st_l.append("s_waitcnt lgkmcnt(0)")
    st_l.append("v_mov_b32 v%d, s%d" % (V_T0, S_STT))
    st_l.append("v_mov_b32 v%d, %d" % (V_T1, idx * 4))
    st_l.append("global_store_dword v%d, v%d, s[%d:%d]" % (V_T1, V_T0, S_STB, S_STB + 1))
    st.dsq = []
    st.raw("\n".join(st_l))


def vcost(t):
    if isinstance(t, tuple):
        return t[1]
    if not isinstance(t, str):
        return 0
    if t.endswith(":"):
        return 0
    if t.startswith(("v_exp", "v_rcp")):
        return 8
    if t.startswith("buffer_store"):
        return 12
    if "\n" in t:
        return 8
    return 4


def emit_schedule(st, mfs, wins, pre, shadow, cfg, D, barrier_at, addr_update, virtual=()):
    n = len(mfs)
    open_gap = {c: g for g, c in barrier_at.items()}
    rd_at, rd_gap, seen, pend = {}, {}, set(), []
    for i, m in enumerate(mfs):
        for rg in m.reads:
            if id(rg) in seen:
                continue
            seen.add(id(rg))
            lead = rg.lead if rg.lead is not None else D
            pend.append((max(i - lead, open_gap[rg.chunk]), i, rg))
    g, k = -1, 0
    while k < len(pend):
        cap = 99 if g < 0 else (cfg.CAPB if g in barrier_at else cfg.CAP)
        used = 0
        while k < len(pend) and pend[k][0] <= g and (used + len(pend[k][2].texts) <= cap or pend[k][1] - g <= cfg.MINLEAD):
            rg = pend[k][2]
            rd_at.setdefault(g, []).append(rg)
            rd_gap[id(rg)] = g
            used += len(rg.texts)
            k += 1
        g += 1
    for _, i, rg in pend:
        if rg.chunk + 1 in open_gap and not getattr(rg, "free", False):
            assert rd_gap[id(rg)] < open_gap[rg.chunk + 1], "read of chunk %d after the next barrier" % rg.chunk
    budget = {}
    for g in range(n):
        b = 24 - 4 * sum(len(rg.texts) for rg in rd_at.get(g, []))
        if g in barrier_at:
            b -= cfg.BARC
        budget[g] = b
    gaps = {}
    upd_done = set()
    for g, c in barrier_at.items():
        if g >= 0 and not cfg.nodrain:
            lo = max(gg for gg, l in rd_at.items() if gg < g and any(not getattr(r, "free", False) for r in l))
            if lo <= g - 1:
                for j, t in enumerate(addr_update(c)):
                    gg = min(g - 1, lo + 1 + j)
                    gaps.setdefault(gg, []).append(t)
                    budget[gg] -= 4
                upd_done.add(g)
    over = 0

    def fill(ops, g, g1):
        nonlocal over
        for o in ops:
            c = vcost(o)
            while g <= g1 and budget[g] < c:
                g += 1
            if g > g1:
                pre.setdefault(g1 + 1, []).append(o)
                over += c
            else:
                gaps.setdefault(g, []).append(o)
                budget[g] -= c
        return g
    for w in wins:
        if w[0] == "chain":
            cur = 0
            for ops, g0, g1, t in w[1]:
                cur = fill(ops, max(cur, g0), g1)
                if t is None:
                    continue
                gb = cur + 1
                while gb in barrier_at or gb in shadow:
                    gb += 1
                if gb <= g1:
                    br, ladd = w[2](t, gb)
                    shadow[gb] = br
                    cur = fill([ladd], gb, gb + 2)
                else:
                    br, ladd = w[2](t, g1)
                    pre.setdefault(g1 + 1, []).extend(br)
                    cur = fill([ladd], g1 + 1, g1 + 3)
                if cfg.verbose:
                    print("tile", t, "check at", gb, "deadline", g1, file=sys.stderr)
            continue
        ops, g0, g1 = w
        g = g0
        for o in ops:
            c = vcost(o)
            while g <= g1 and budget[g] < c:
                g += 1
            if g > g1:
                pre.setdefault(g1 + 1, []).append(o)
                over += c
            else:
                gaps.setdefault(g, []).append(o)
                budget[g] -= c
    if cfg.verbose:
        print("window overflow cycles", over, "over-budget gaps", [(g, b) for g, b in budget.items() if b < 0], file=sys.stderr)
    for g in sorted(k for k in rd_at if k < 0):
        if g in barrier_at:
            st.drain()
            st.raw("s_barrier")
            for t in addr_update(barrier_at[g]):
                st.raw(t)
        for rg in rd_at[g]:
            rg.ids = [st.ds(t) for t in rg.texts]

    def emit(t):
        if isinstance(t, tuple):
            st.ds(t[0])
        elif callable(t):
            t()
        else:
            st.raw(t)

    for i, m in enumerate(mfs):
        for t in pre.get(i, []):
            emit(t)
        ids = []
        for rg in m.reads:
            assert rg.ids is not None, "read not issued before use at mfma %d" % i
            ids += rg.ids
        st.need(ids)
        st.raw(m.text)
        if i in shadow:
            for t in shadow[i]:
                emit(t)
        if i in barrier_at:
            if barrier_at[i] not in virtual and not ("N" in cfg.dbg and barrier_at[i] in (10, 11, 12, 13, 14, 15, 17, 18, 19, 20, 21)):
                if not cfg.nodrain:
                    st.drain()
                st.raw("s_barrier")
            if i not in upd_done:
                for t in addr_update(barrier_at[i]):
                    st.raw(t)
        elif i not in shadow:
            ids = []
            for j in range(i + 1, min(n, i + 3)):
                for rg in mfs[j].reads:
                    if rg.ids is not None and (j == i + 1 or j - 1 in shadow or rd_gap[id(rg)] <= i - cfg.WL):
                        ids += rg.ids
            st.need(ids)
        for rg in rd_at.get(i, []):
            rg.ids = [st.ds(t) for t in rg.texts]
        for t in gaps.get(i, []):
            emit(t)


def kv_items(cfg):
    k = cfg.skew
    items = [("K", t) for t in range(k)]
    for t in range(k, 16):
        items += [("K", t), ("V", t - k)]
    items += [("V", t) for t in range(16 - k, 16)]
    return items


def softmax_ops(t, sub_first, nb):
    S, P, lt = SB[t % nb], PB[t % nb], LT[t & 1]
    e = lambda i: ET + (i % 8)
    out = []
    for i in range(16):
        if sub_first:
            out.append("v_add_f32 v%d, v%d, v%d" % (S + i, NEGM, S + i))
        out.append("v_exp_f32 v%d, v%d" % (e(i), S + i))
        j = i - 1
        if j >= 1:
            out.append("v_add_f32 v%d, v%d, v%d" % (lt, e(j), e(0) if j == 1 else lt))
            if j & 1:
                out.append("v_cvt_pk_bf16_f32 v%d, v%d, v%d" % (P + j // 2, e(j - 1), e(j)))
    out.append("v_add_f32 v%d, v%d, v%d" % (lt, e(15), lt))
    out.append("v_cvt_pk_bf16_f32 v%d, v%d, v%d" % (P + 7, e(14), e(15)))
    return out


def rare_path(t, nb, live_s, pend_p):
    S = SB[t % nb]
    L = ["L_rare%d:" % t, "s_nop 15", "s_nop 3"]
    L.append("v_max3_f32 v%d, v%d, v%d, v%d" % (V_T0, S, S + 1, S + 2))
    for i in range(3, 15, 2):
        L.append("v_max3_f32 v%d, v%d, v%d, v%d" % (V_T0, V_T0, S + i, S + i + 1))
    L.append("v_max3_f32 v%d, v%d, v%d, 0" % (V_T0, V_T0, S + 15))
    L.append("v_mov_b32 v%d, v%d" % (V_T1, V_T0))
    L.append("s_nop 1")
    L.append("v_permlane32_swap_b32 v%d, v%d" % (V_T0, V_T1))
    L.append("v_max_f32 v%d, v%d, v%d" % (V_T0, V_T0, V_T1))
    L.append("v_ceil_f32 v%d, v%d" % (V_T0, V_T0))
    L.append("v_sub_f32 v%d, 0, v%d" % (V_T1, V_T0))
    L.append("v_exp_f32 v%d, v%d" % (V_T1, V_T1))
    for i in range(16):
        L.append("v_sub_f32 v%d, v%d, v%d" % (NEGM + i, NEGM + i, V_T0))
        for u in [t] + live_s:
            L.append("v_sub_f32 v%d, v%d, v%d" % (SB[u % nb] + i, SB[u % nb] + i, V_T0))
    L.append("v_mul_f32 v%d, v%d, v%d" % (V_L, V_L, V_T1))
    for i in range(64):
        L.append("v_mul_f32 v%d, v%d, v%d" % (ACC + i, ACC + i, V_T1))
    for u in pend_p:
        for i in range(8):
            p = PB[u % nb] + i
            L += ["v_lshlrev_b32 v%d, 16, v%d" % (ET, p), "v_and_b32 v%d, 0xffff0000, v%d" % (ET + 1, p),
                  "v_mul_f32 v%d, v%d, v%d" % (ET, ET, V_T1), "v_mul_f32 v%d, v%d, v%d" % (ET + 1, ET + 1, V_T1),
                  "v_cvt_pk_bf16_f32 v%d, v%d, v%d" % (p, ET, ET + 1)]
    L += softmax_ops(t, False, nb)
    L.append("s_nop 1")
    L.append("s_branch L_back%d" % t)
    return L


S_EP = 80
EPOCH = f"""
s_waitcnt lgkmcnt(0)
s_mul_i32 s{S_EP+2}, s{S_EP+2}, 1664525
s_add_u32 s{S_EP+2}, s{S_EP+2}, 1013904223
"""
EPOCH_NEXT = f"""s_or_b32 s{S_T0}, s{S_HP}, s{S_W}
s_cmp_lg_u32 s{S_T0}, 0
s_cbranch_scc1 L_noep
v_mov_b32 v12, 0
global_store_dword v12, v6, s[{S_EP}:{S_EP+1}]
L_noep:
"""
H_FL, H_TAG, H_PL, H_RD, H_OUT = 1, 6, 4, 5, 2


S_OWN = 94


def flag_addr(cfg):
    o = f"""
v_and_b32 v12, 63, v0
s_lshl_b32 s{S_T1}, s{S_W}, 11
s_lshl_b32 s{S_T2}, s{S_HP}, 3
s_add_u32 s{S_T1}, s{S_T1}, s{S_T2}
v_lshlrev_b32 v13, 9, v12
v_add_u32 v13, s{S_T1}, v13
v_mov_b32 v14, 0x7fff0000
v_cmp_gt_u32 vcc, 4, v12
v_mov_b32 v{H_TAG}, s{S_EP+2}
s_lshl_b32 s{S_T1}, s{S_W}, 2
v_cndmask_b32 v{H_FL}, v14, v13, vcc
v_not_b32 v{H_TAG+1}, v{H_TAG}
v_mov_b32 v2, s{S_T1}
"""
    if cfg.own:
        o += f"""
s_lshr_b32 s{S_T1}, s{S_HP}, 2
s_bfe_u32 s{S_OWN}, s{S_HP}, 0x10001
s_cmp_eq_u32 s{S_T1}, s{S_W}|s_cselect_b32 s{S_OWN}, s{S_OWN}, 2
v_bfe_u32 v13, v12, 4, 1
s_and_b32 s{S_T1}, s{S_HP}, 1
v_cmp_eq_u32 vcc, s{S_T1}, v13
s_cmp_eq_u32 s{S_OWN}, 0|s_cselect_b64 s[96:97], vcc, 0
s_cmp_eq_u32 s{S_OWN}, 1|s_cselect_b64 vcc, vcc, 0
v_cndmask_b32 v4, v{V_ST}, v14, s[96:97]
v_cndmask_b32 v5, v{V_ST}, v14, vcc
"""
    return [l.strip().replace("|", "\n") for l in o.strip().split("\n") if l.strip()]


def handoff_addr(i, mode):
    o = f"""
v_and_b32 v12, 63, v0
s_lshl_b32 s{S_T1}, s{S_W}, 11
s_lshl_b32 s{S_T2}, s{S_HP}, 3
s_add_u32 s{S_T1}, s{S_T1}, s{S_T2}
v_lshlrev_b32 v13, 9, v12
v_add_u32 v13, s{S_T1}, v13
v_mov_b32 v14, 0x7fff0000
v_cmp_gt_u32 vcc, 4, v12
v_mov_b32 v{H_TAG}, s{S_EP+2}
s_lshl_b32 s{S_T1}, s{S_HP}, 9
v_cndmask_b32 v{H_FL}, v14, v13, vcc
v_not_b32 v{H_TAG+1}, v{H_TAG}
v_and_b32 v13, 15, v12
v_lshlrev_b32 v14, 3, v13
v_add_u32 v{H_PL}, s{S_T1}, v14
s_lshr_b32 s{S_T1}, s{S_HP}, 1
s_lshl_b32 s{S_T1}, s{S_T1}, 11
s_and_b32 s{S_T2}, s{S_HP}, 1
s_lshl_b32 s{S_T2}, s{S_T2}, 8
s_add_u32 s{S_T1}, s{S_T1}, s{S_T2}
v_lshrrev_b32 v14, 4, v12
"""
    if mode == "q":
        o += f"""
s_lshl_b32 s{S_T2}, s{S_W}, 6
s_add_u32 s{S_T1}, s{S_T1}, s{S_T2}
v_lshlrev_b32 v15, 9, v14
v_lshl_add_u32 v15, v13, 2, v15
v_add_u32 v{H_RD}, s{S_T1}, v15
v_lshrrev_b32 v15, 2, v13
v_lshlrev_b32 v15, 11, v15
v_lshl_add_u32 v15, v14, 4, v15
v_and_b32 v13, 3, v13
v_lshl_add_u32 v15, v13, 2, v15
s_lshl_b32 s{S_T2}, s{S_W}, 13
"""
    else:
        o += f"""
v_lshlrev_b32 v15, 9, v14
v_lshl_add_u32 v15, v13, 4, v15
v_add_u32 v{H_RD}, s{S_T1}, v15
v_lshlrev_b32 v15, 11, v13
v_lshl_add_u32 v15, v14, 4, v15
s_mov_b32 s{S_T2}, 0
"""
    o += f"""
s_and_b32 s{S_T1}, s{S_HP}, 3
s_lshl_b32 s{S_T1}, s{S_T1}, 15
s_add_u32 s{S_T2}, s{S_T2}, s{S_T1}
s_lshr_b32 s{S_T1}, s{S_HP}, 2
s_lshl_b32 s{S_T1}, s{S_T1}, 6
s_add_u32 s{S_T2}, s{S_T2}, s{S_T1}
v_add_u32 v{H_OUT}, s{S_T2}, v15
"""
    return [l.strip() for l in o.strip().split("\n") if l.strip()]


def reduce_code(cfg, i, mode, tag):
    nd = 1 if mode == "q" else 4
    B = 16
    if isinstance(i, int):
        o = f"s_mov_b32 s{S_T0}, {i}\n"
    else:
        o = f"s_mov_b32 s{S_T0}, {i}\n"
    o += f"""
s_lshl_b32 s{S_T1}, s{S_T0}, 7
s_mov_b32 s{S_CNT}, 0
L_poll_{tag}:
buffer_load_dwordx2 v[12:13], v{H_PL}, s[{S_IN}:{S_IN+3}], s{S_T1} offen sc1
s_add_u32 s{S_CNT}, s{S_CNT}, 1
s_cmp_gt_u32 s{S_CNT}, {cfg.spin}
s_cbranch_scc1 L_go_{tag}
{"s_sleep %d" % cfg.psleep if cfg.psleep and tag == "l" else ""}
s_waitcnt vmcnt(0)
v_cmp_ne_u64 vcc, v[12:13], v[{H_TAG}:{H_TAG+1}]
s_cbranch_vccnz L_poll_{tag}
L_go_{tag}:
{tstamp(cfg, 4)}
s_lshl_b32 s{S_T1}, s{S_T0}, 14
"""
    sfx = "dword" if nd == 1 else "dwordx4"
    for p in range(16):
        o += f"buffer_load_{sfx} {vr(B + nd*p, nd)}, v{H_RD}, s[{S_WS}:{S_WS+3}], s{S_T1} offen {cfg.red_pol}\n"
        if p < 15:
            o += f"s_add_u32 s{S_T1}, s{S_T1}, 0x10000\n"
    o += f"""
s_add_u32 s{S_T0}, s{S_T0}, s{S_B}
s_and_b32 s{S_T0}, s{S_T0}, 3
s_lshl_b32 s{S_T0}, s{S_T0}, 8
s_mov_b32 s{S_T2}, 0xffff0000
"""
    A = B + 16 * nd
    for p in range(16):
        o += f"s_waitcnt vmcnt({15-p})\n"
        for j in range(nd):
            r = B + nd * p + j
            if p == 0:
                o += f"v_lshlrev_b32 v{A+2*j}, 16, v{r}\nv_and_b32 v{A+2*j+1}, s{S_T2}, v{r}\n"
            else:
                o += f"v_lshlrev_b32 v12, 16, v{r}\nv_and_b32 v13, s{S_T2}, v{r}\nv_add_f32 v{A+2*j}, v12, v{A+2*j}\nv_add_f32 v{A+2*j+1}, v13, v{A+2*j+1}\n"
    o += tstamp(cfg, 5) + "\n"
    for j in range(nd):
        o += f"v_cvt_pk_bf16_f32 v{12+j}, v{A+2*j}, v{A+2*j+1}\n"
    o += f"buffer_store_{sfx} {vr(12, nd)}, v{H_OUT}, s[{S_OUT}:{S_OUT+3}], s{S_T0} offen {cfg.out_pol}\n"
    return o


def reduce_dyn(cfg):
    B, A = 16, 80
    S_TODO, S_NOW = 94, 95
    poll = f"buffer_load_dwordx2 v[8:9], v3, s[{S_IN}:{S_IN+3}], 0 offen {cfg.ppol}\n"
    o = f"""s_mov_b32 s{S_T2}, 0xffff0000
s_mov_b32 s{S_TODO}, 15
s_mov_b32 s{S_CNT}, 0
{poll}s_waitcnt vmcnt(0)
L_dyn:
v_cmp_ne_u64 vcc, v[8:9], v[{H_TAG}:{H_TAG+1}]
s_add_u32 s{S_CNT}, s{S_CNT}, 1
s_cmp_gt_u32 s{S_CNT}, {cfg.spin}
s_cselect_b64 vcc, 0, vcc
s_mov_b32 s{S_NOW}, 0
"""
    for i in range(4):
        half = "vcc_lo" if i < 2 else "vcc_hi"
        o += f"""s_bitcmp1_b32 s{S_TODO}, {i}
s_cbranch_scc0 L_dn{i}
s_bfe_u32 s{S_T0}, {half}, {hex(0x100000 + 16*(i & 1))}
s_cbranch_scc1 L_dn{i}
s_bitset1_b32 s{S_NOW}, {i}
{tstamp(cfg, (4, 0, 1, 2)[i])}
s_mov_b32 s{S_T1}, {i*16384}
{"s_waitcnt vmcnt(46)" if i == 3 else ""}
"""
        for p in range(16):
            o += f"buffer_load_dword v{B+16*i+p}, v{H_RD}, s[{S_WS}:{S_WS+3}], s{S_T1} offen {cfg.red_pol}\n"
            if p < 15:
                o += f"s_add_u32 s{S_T1}, s{S_T1}, 0x10000\n"
        o += f"L_dn{i}:\n"
    o += f"""s_andn2_b32 s{S_TODO}, s{S_TODO}, s{S_NOW}
s_cbranch_scc0 L_dnp
{poll}L_dnp:
s_waitcnt vmcnt(0)
"""
    for i in range(4):
        o += f"s_bitcmp1_b32 s{S_NOW}, {i}\ns_cbranch_scc0 L_ds{i}\n"
        o += f"s_add_u32 s{S_T0}, s{S_B}, {i}\ns_and_b32 s{S_T0}, s{S_T0}, 3\ns_lshl_b32 s{S_T0}, s{S_T0}, 8\n"
        r = B + 16 * i
        o += f"v_lshlrev_b32 v{A}, 16, v{r}\nv_and_b32 v{A+1}, s{S_T2}, v{r}\n"
        for p in range(1, 16):
            o += f"v_lshlrev_b32 v12, 16, v{r+p}\nv_and_b32 v13, s{S_T2}, v{r+p}\nv_add_f32 v{A}, v12, v{A}\nv_add_f32 v{A+1}, v13, v{A+1}\n"
        o += f"v_cvt_pk_bf16_f32 v{A+2+i}, v{A}, v{A+1}\n"
        o += f"buffer_store_dword v{A+2+i}, v{H_OUT}, s[{S_OUT}:{S_OUT+3}], s{S_T0} offen {cfg.out_pol}\nL_ds{i}:\n"
    o += f"""s_cmp_lg_u32 s{S_TODO}, 0
s_cbranch_scc1 L_dyn
{tstamp(cfg, 5)}
"""
    o += EPOCH_NEXT
    return o


def reduce_loop(cfg):
    B, A = 16, 32
    S_I, S_DRY, S_PO, S_RO, S_OO = 50, 51, 52, 53, 54
    poll = f"buffer_load_dwordx2 v[8:9], v{H_PL}, s[{S_IN}:{S_IN+3}], s{S_PO} offen {cfg.ppol}\n"
    o = f"""s_mov_b32 s{S_T2}, 0xffff0000
s_mul_i32 s{S_T0}, s{S_W}, {SLOT}
s_add_u32 s{S_T0}, s{S_T0}, {AUX}
v_mov_b32 v11, s{S_T0}
s_mov_b32 s{S_I}, 0
s_mov_b32 s{S_PO}, 0
s_mov_b32 s{S_DRY}, {1 if cfg.dry else 0}
s_cmp_eq_u32 s{S_DRY}, 1
s_cbranch_scc1 L_rl_go
L_rl_start:
s_mov_b32 s{S_CNT}, 0
L_rl_wait:
ds_read_b32 v12, v11
s_add_u32 s{S_CNT}, s{S_CNT}, 1
s_cmp_gt_u32 s{S_CNT}, {cfg.spin}
s_cbranch_scc1 L_rl_on
s_sleep 1
s_waitcnt lgkmcnt(0)
v_cmp_ne_u32 vcc, v12, v{H_TAG}
s_cbranch_vccnz L_rl_wait
L_rl_on:
{tstamp(cfg, 3)}
{poll}s_waitcnt vmcnt(0)
L_rl_row:
s_mov_b32 s{S_CNT}, 0
L_rl_spin:
v_cmp_ne_u64 vcc, v[8:9], v[{H_TAG}:{H_TAG+1}]
s_cbranch_vccz L_rl_go
{poll}s_add_u32 s{S_CNT}, s{S_CNT}, 1
s_cmp_lt_u32 s{S_CNT}, {cfg.spin}
s_waitcnt vmcnt(0)
s_cbranch_scc1 L_rl_spin
L_rl_go:
s_lshl_b32 s{S_RO}, s{S_I}, 14
s_add_u32 s{S_OO}, s{S_B}, s{S_I}
s_and_b32 s{S_OO}, s{S_OO}, 3
s_lshl_b32 s{S_OO}, s{S_OO}, 8
s_cmp_eq_u32 s{S_DRY}, 1
s_cbranch_scc1 L_rl_sum
"""
    for p in range(16):
        o += f"buffer_load_dword v{B+p}, v{H_RD}, s[{S_WS}:{S_WS+3}], s{S_RO} offen {cfg.red_pol}\n"
        if p < 15:
            o += f"s_add_u32 s{S_RO}, s{S_RO}, 0x10000\n"
    o += f"s_add_u32 s{S_PO}, s{S_PO}, 128\ns_min_u32 s{S_PO}, s{S_PO}, 384\n{poll}L_rl_sum:\n"
    for p in range(16):
        o += f"s_waitcnt vmcnt({16-p})\n"
        q = B + p
        if p == 0:
            o += f"v_lshlrev_b32 v{A}, 16, v{q}\nv_and_b32 v{A+1}, s{S_T2}, v{q}\n"
        else:
            o += f"v_lshlrev_b32 v12, 16, v{q}\nv_and_b32 v13, s{S_T2}, v{q}\nv_add_f32 v{A}, v12, v{A}\nv_add_f32 v{A+1}, v13, v{A+1}\n"
    o += f"""v_cvt_pk_bf16_f32 v12, v{A}, v{A+1}
s_cmp_eq_u32 s{S_DRY}, 1
s_mov_b32 s{S_DRY}, 0
s_cbranch_scc1 L_rl_start
buffer_store_dword v12, v{H_OUT}, s[{S_OUT}:{S_OUT+3}], s{S_OO} offen {cfg.out_pol}
s_add_u32 s{S_I}, s{S_I}, 1
s_cmp_lt_u32 s{S_I}, 4
s_waitcnt vmcnt(1)
s_cbranch_scc1 L_rl_row
{tstamp(cfg, 5)}
"""
    o += EPOCH_NEXT
    return o


def reduce_x4(cfg):
    B, A = 16, 80
    VO = 88
    rounds = [[int(ch) for ch in r] for r in cfg.rounds.split(",")]
    poll = lambda r: f"buffer_load_dwordx2 v[8:9], v{H_PL if len(r) == 1 else 3}, s[{S_IN}:{S_IN+3}], 0 offen offset:{128*r[0]} {cfg.ppol}\n"
    o = f"""s_mov_b32 s{S_T2}, 0xffff0000
v_and_b32 v12, 15, v10
v_lshrrev_b32 v13, 4, v10
s_lshr_b32 s{S_T0}, s{S_HP}, 1
s_lshl_b32 s{S_T0}, s{S_T0}, 11
s_and_b32 s{S_T1}, s{S_HP}, 1
s_lshl_b32 s{S_T1}, s{S_T1}, 8
s_add_u32 s{S_T0}, s{S_T0}, s{S_T1}
s_lshl_b32 s{S_T1}, s{S_W}, 9
s_add_u32 s{S_T0}, s{S_T0}, s{S_T1}
v_lshlrev_b32 v14, 4, v12
v_add_u32 v14, s{S_T0}, v14
s_add_u32 s{S_T1}, s{S_HP}, 1
v_add_u32 v15, s{S_T1}, v13
"""
    for k in range(4):
        o += f"v_and_b32 v{VO+k}, 15, v15\nv_lshl_add_u32 v{VO+k}, v{VO+k}, 16, v14\nv_add_u32 v15, 4, v15\n"
    o += f"""s_lshr_b32 s{S_T0}, s{S_HP}, 2
s_lshl_b32 s{S_T1}, s{S_T0}, 2
v_mov_b32 v11, s{S_T1}
s_mul_i32 s{S_T1}, s{S_T0}, {SLOT}
s_add_u32 s{S_T1}, s{S_T1}, {AUX}
v_and_b32 v14, 0x7ff, v14
v_add_u32 v14, s{S_T1}, v14
s_lshl_b32 s{S_T0}, s{S_T0}, 6
s_and_b32 s{S_T1}, s{S_HP}, 3
s_lshl_b32 s{S_T1}, s{S_T1}, 15
s_add_u32 s{S_T0}, s{S_T0}, s{S_T1}
s_lshl_b32 s{S_T1}, s{S_W}, 4
s_add_u32 s{S_T0}, s{S_T0}, s{S_T1}
v_lshlrev_b32 v12, 11, v12
v_lshl_add_u32 v12, v13, 2, v12
v_add_u32 v{H_OUT}, s{S_T0}, v12
s_mov_b32 s{S_CNT}, 0
L_go_a:
ds_read_b32 v12, v11
s_add_u32 s{S_CNT}, s{S_CNT}, 1
s_cmp_gt_u32 s{S_CNT}, {cfg.spin}
s_cbranch_scc1 L_gone_a
s_sleep 1
s_waitcnt lgkmcnt(0)
v_cmp_ne_u32 vcc, v12, v{H_TAG}
s_cbranch_vccnz L_go_a
L_gone_a:
{tstamp(cfg, 3)}
"""
    o += poll(rounds[0]) + "s_waitcnt vmcnt(0)\n"
    for n, r in enumerate(rounds):
        o += f"""s_mov_b32 s{S_CNT}, 0
L_sp{n}:
v_cmp_ne_u64 vcc, v[8:9], v[{H_TAG}:{H_TAG+1}]
s_cbranch_vccz L_sg{n}
{poll(r)}s_add_u32 s{S_CNT}, s{S_CNT}, 1
s_cmp_lt_u32 s{S_CNT}, {cfg.spin}
s_waitcnt vmcnt(0)
s_cbranch_scc1 L_sp{n}
L_sg{n}:
"""
        for i in r:
            o += tstamp(cfg, (4, 0, 1, 2)[i]) + f"\ns_mov_b32 s{S_T1}, {i*16384}\n"
            for k in range(4):
                d = B + 16 * i + 4 * k
                if k == 3:
                    o += "s_mov_b32 exec_hi, 0x0000ffff\n"
                o += f"buffer_load_dwordx4 v[{d}:{d+3}], v{VO+k}, s[{S_WS}:{S_WS+3}], s{S_T1} offen {cfg.red_pol}\n"
            o += f"s_mov_b32 exec_lo, 0\ns_mov_b32 exec_hi, 0xffff0000\nds_read_b128 v[{d}:{d+3}], v14 offset:{i*2048}\ns_mov_b64 exec, -1\n"
        k1 = 0
        if n + 1 < len(rounds):
            o += poll(rounds[n + 1])
            k1 = 1
        left = 4 * len(r) + k1
        for i in r:
            o += f"s_add_u32 s{50+i}, s{S_B}, {i}\ns_and_b32 s{50+i}, s{50+i}, 3\ns_lshl_b32 s{50+i}, s{50+i}, 8\n"
            for k in range(4):
                left -= 1
                o += f"s_waitcnt vmcnt({left})" + (" lgkmcnt(0)\n" if k == 3 else "\n")
                for j in range(4):
                    q = B + 16 * i + 4 * k + j
                    if k == 0:
                        o += f"v_lshlrev_b32 v{A+2*j}, 16, v{q}\nv_and_b32 v{A+2*j+1}, s{S_T2}, v{q}\n"
                    else:
                        o += f"v_lshlrev_b32 v12, 16, v{q}\nv_and_b32 v13, s{S_T2}, v{q}\nv_add_f32 v{A+2*j}, v12, v{A+2*j}\nv_add_f32 v{A+2*j+1}, v13, v{A+2*j+1}\n"
            o += "s_nop 1\n"
            for j in range(4):
                o += f"v_permlane32_swap_b32 v{A+j}, v{A+j+4}\n"
            for j in range(4):
                o += f"v_add_f32 v{A+j}, v{A+j}, v{A+j+4}\n"
            o += "s_nop 1\n"
            for j in range(2):
                o += f"v_permlane16_swap_b32 v{A+j}, v{A+j+2}\n"
            for j in range(2):
                o += f"v_add_f32 v{A+j}, v{A+j}, v{A+j+2}\n"
            o += f"v_cvt_pk_bf16_f32 v{92+i}, v{A}, v{A+1}\n"
        if k1:
            o += "s_waitcnt vmcnt(0)\n"
        else:
            o += tstamp(cfg, 5) + "\n"
        for i in r:
            o += f"buffer_store_dword v{92+i}, v{H_OUT}, s[{S_OUT}:{S_OUT+3}], s{50+i} offen {cfg.out_pol}\n"
    o += EPOCH_NEXT
    return o


def reduce_seq(cfg):
    B, A = 16, 80
    rounds = [[int(ch) for ch in r] for r in cfg.rounds.split(",")]
    o = f"s_mov_b32 s{S_T2}, 0xffff0000\n"
    poll = lambda r: f"buffer_load_dwordx2 v[8:9], v{H_PL if len(r) == 1 else 3}, s[{S_IN}:{S_IN+3}], 0 offen offset:{128*r[0]} {cfg.ppol}\n"
    go = f"""s_mov_b32 s{S_CNT}, 0
L_go_%s:
ds_read_b32 v12, v11
s_add_u32 s{S_CNT}, s{S_CNT}, 1
s_cmp_gt_u32 s{S_CNT}, {cfg.spin}
s_cbranch_scc1 L_gone_%s
s_sleep 1
s_waitcnt lgkmcnt(0)
v_cmp_ne_u32 vcc, v12, v{H_TAG}
s_cbranch_vccnz L_go_%s
L_gone_%s:
"""
    if cfg.ldsgo:
        o += f"s_lshr_b32 s{S_T0}, s{S_HP}, 2\ns_lshl_b32 s{S_T1}, s{S_T0}, 2\nv_mov_b32 v11, s{S_T1}\n"
        if cfg.own:
            o += f"s_mul_i32 s{S_T0}, s{S_T0}, {SLOT}\ns_add_u32 s{S_T0}, s{S_T0}, {AUX}\nv_and_b32 v14, 0x7ff, v{H_RD}\nv_add_u32 v14, s{S_T0}, v14\n"
    if cfg.early:
        if cfg.esleep:
            o += f"s_sleep {cfg.esleep}\n"
        o += poll(rounds[0]) + f"s_waitcnt vmcnt(0)\nv_cmp_ne_u64 vcc, v[8:9], v[{H_TAG}:{H_TAG+1}]\ns_mov_b32 s94, 1\ns_cbranch_vccz L_sg0\ns_mov_b32 s94, 0\n"
    if cfg.ldsgo:
        o += go % (("a",) * 4)
    o += tstamp(cfg, 3) + "\n"
    o += poll(rounds[0]) + "s_waitcnt vmcnt(0)\n"
    for n, r in enumerate(rounds):
        o += f"""s_mov_b32 s{S_CNT}, 0
L_sp{n}:
v_cmp_ne_u64 vcc, v[8:9], v[{H_TAG}:{H_TAG+1}]
s_cbranch_vccz L_sg{n}
{poll(r)}s_add_u32 s{S_CNT}, s{S_CNT}, 1
s_cmp_lt_u32 s{S_CNT}, {cfg.spin}
s_waitcnt vmcnt(0)
s_cbranch_scc1 L_sp{n}
L_sg{n}:
"""
        NP = 15 if cfg.own else 16
        for i in r:
            o += tstamp(cfg, (4, 0, 1, 2)[i]) + "\n"
            if cfg.own:
                o += f"ds_read_b32 v{B+16*i+15}, v14 offset:{i*2048}\ns_add_u32 s{S_T1}, s{S_HPO}, {i*16384}\n"
            else:
                o += f"s_mov_b32 s{S_T1}, {i*16384}\n"
            for p in range(NP):
                if cfg.own:
                    o += f"s_add_u32 s{S_T1}, s{S_T1}, 0x10000\ns_and_b32 s{S_T1}, s{S_T1}, 0xfffff\n"
                o += f"buffer_load_dword v{B+16*i+p}, v{H_RD}, s[{S_WS}:{S_WS+3}], s{S_T1} offen {cfg.red_pol}\n"
                if p < 15 and not cfg.own:
                    o += f"s_add_u32 s{S_T1}, s{S_T1}, 0x10000\n"
        k = 0
        if n + 1 < len(rounds):
            if cfg.early and n == 0:
                o += "s_cmp_eq_u32 s94, 1\ns_cbranch_scc1 L_e_nopoll\n" + poll(rounds[n + 1]) + "L_e_nopoll:\n"
            else:
                o += poll(rounds[n + 1])
                k = 1
        left = NP * len(r) + k
        for i in r:
            o += f"s_add_u32 s{S_T0}, s{S_B}, {i}\ns_and_b32 s{S_T0}, s{S_T0}, 3\ns_lshl_b32 s{S_T0}, s{S_T0}, 8\n"
            for p in ([15] + list(range(15)) if cfg.own else range(16)):
                if cfg.own and p == 15:
                    o += "s_waitcnt lgkmcnt(0)\n"
                else:
                    left -= 1
                    o += f"s_waitcnt vmcnt({left})\n"
                q = B + 16 * i + p
                if p == (15 if cfg.own else 0):
                    o += f"v_lshlrev_b32 v{A}, 16, v{q}\nv_and_b32 v{A+1}, s{S_T2}, v{q}\n"
                else:
                    o += f"v_lshlrev_b32 v12, 16, v{q}\nv_and_b32 v13, s{S_T2}, v{q}\nv_add_f32 v{A}, v12, v{A}\nv_add_f32 v{A+1}, v13, v{A+1}\n"
            o += f"v_cvt_pk_bf16_f32 v{A+2+i}, v{A}, v{A+1}\ns_mov_b32 s{50+i}, s{S_T0}\n"
        if n + 1 < len(rounds):
            o += "s_waitcnt vmcnt(0)\n"
        else:
            o += tstamp(cfg, 5) + "\n"
        for i in r:
            o += f"buffer_store_dword v{A+2+i}, v{H_OUT}, s[{S_OUT}:{S_OUT+3}], s{50+i} offen {cfg.out_pol}\n"
        if cfg.early and n == 0:
            o += "s_cmp_eq_u32 s94, 0\ns_cbranch_scc1 L_e_late\n" + go % (("b",) * 4) + poll(rounds[1]) + "s_waitcnt vmcnt(0)\nL_e_late:\n"
    o += EPOCH_NEXT
    return o


REG = re.compile(r"v\[(\d+):(\d+)\]|v(\d+)")


def regs_of(tok):
    m = REG.fullmatch(tok.strip().lstrip("-"))
    if not m:
        return set()
    if m.group(3):
        return {int(m.group(3))}
    return set(range(int(m.group(1)), int(m.group(2)) + 1))


def parse(line):
    l = line.split(";")[0].strip()
    if not l or l.endswith(":") or l.startswith("."):
        return None
    op, _, rest = l.partition(" ")
    toks = [t.strip() for t in rest.split(",")] if rest else []
    toks = [t.split(" ")[0] for t in toks]
    rd, wr = set(), set()
    if op.startswith("v_cmp"):
        for t in toks[1:]:
            rd |= regs_of(t)
    elif op.startswith("v_permlane"):
        rd = wr = regs_of(toks[0]) | regs_of(toks[1])
    elif op.startswith(("v_readfirstlane", "v_readlane")):
        rd = regs_of(toks[1])
    elif op.startswith("v_"):
        wr = regs_of(toks[0])
        for t in toks[1:]:
            rd |= regs_of(t)
        if op.startswith(("v_fmac", "v_writelane")):
            rd |= wr
    elif op.startswith("ds_read"):
        wr = regs_of(toks[0]); rd = regs_of(toks[1])
    elif op.startswith("ds_write"):
        rd = regs_of(toks[0]) | regs_of(toks[1])
    elif op.startswith(("buffer_store", "buffer_atomic", "global_store", "global_atomic")):
        for t in toks:
            rd |= regs_of(t)
    elif op.startswith(("buffer_load", "global_load")):
        if "lds" in l.split():
            rd = regs_of(toks[0])
        else:
            wr = regs_of(toks[0]); rd = regs_of(toks[1])
    return op, rd, wr, toks


def fix_hazards(lines):
    out = []
    hist = []
    t = 0
    last_mf = -100
    for line in lines:
        p = parse(line)
        if p is None:
            out.append(line)
            continue
        op, rd, wr, toks = p
        is_mf = op.startswith("v_mfma")
        is_valu = op.startswith("v_") and not is_mf
        is_mem = op.startswith(("ds_", "buffer_", "global_"))
        need = 0
        tt = max(t, last_mf + 8) if is_mf else t
        dist = 0
        for (o2, r2, w2, k2, st2, t2) in reversed(hist[-40:]):
            m2 = o2.startswith("v_mfma")
            v2 = o2.startswith("v_") and not m2
            req = 0
            d = dist
            if v2 and o2.startswith(("v_exp", "v_rcp", "v_log", "v_rsq")) and is_valu and not op.startswith(("v_exp", "v_rcp")) and (w2 & rd):
                req = 1
            if v2 and is_mf and (w2 & rd):
                req = 2
            if v2 and op.startswith("v_permlane") and (w2 & rd):
                req = 2
            if v2 and op.startswith(("v_readfirstlane", "v_readlane")) and (w2 & rd):
                req = 1
            if o2.startswith(("buffer_store_dwordx4", "global_store_dwordx4")) and is_valu and (regs_of(k2[0] if o2.startswith("buffer") else k2[1]) & wr):
                req = 2
            if m2 and (is_valu or is_mem) and (w2 & (rd | wr)):
                req = 12
                d = tt - t2 - 1
            if m2 and is_mf and (w2 & (regs_of(toks[1]) | regs_of(toks[2]))):
                req = 12
                d = tt - t2 - 1
            if m2 and is_mf and (w2 & regs_of(toks[3])) and regs_of(toks[3]) != w2:
                req = 10
                d = tt - t2 - 1
            if m2 and is_valu and (regs_of(k2[3]) & wr):
                req = max(req, 7)
                d = tt - t2 - 1
            if req > d:
                need = max(need, req - d)
            dist += st2
        while need > 0:
            k = min(need, 16)
            out.append("  s_nop %d" % (k - 1))
            hist.append(("s_nop", set(), set(), [], k, t))
            t += k
            need -= k
        tt = max(t, last_mf + 8) if is_mf else t
        st_ = int(toks[0]) + 1 if op == "s_nop" else 1
        hist.append((op, rd, wr, toks, st_, tt))
        t = tt + st_
        if is_mf:
            last_mf = tt
        out.append(line)
    return out


TS = [4, 8, 10, 64, 66, 68, 70, 72, 96, 98]


def tstamp(cfg, k):
    return f"s_memrealtime s[{TS[k]}:{TS[k]+1}]" if cfg.tst else ""


def tst_end(cfg, base):
    o = f"""s_waitcnt vmcnt(0)
{tstamp(cfg, 7)}
s_lshl_b32 s14, s2, 3
s_add_u32 s14, s14, s{S_W}
s_add_u32 s14, s14, {base}
s_lshl_b32 s14, s14, 6
s_add_u32 s14, s14, 0x2300000
s_add_u32 s12, s74, s14
s_addc_u32 s13, s75, 0
s_waitcnt lgkmcnt(0)
v_mov_b32 v14, 0
"""
    for k in range(8):
        o += f"v_mov_b32 v{16+k}, s{TS[k]}\n"
    o += f"""v_mov_b32 v24, s60
v_mov_b32 v25, s{S_CNT}
global_store_dwordx4 v14, v[16:19], s[12:13]
global_store_dwordx4 v14, v[20:23], s[12:13] offset:16
v_mov_b32 v26, s96
v_mov_b32 v27, s98
global_store_dwordx4 v14, v[24:27], s[12:13] offset:32
"""
    return o


def span_end(cfg, base):
    if not cfg.span:
        return ""
    return f"""s_waitcnt vmcnt(0)
s_memrealtime s[{S_STT}:{S_STT+1}]
s_lshl_b32 s14, s2, 3
s_add_u32 s14, s14, s{S_W}
s_lshl_b32 s14, s14, 3
s_add_u32 s14, s14, {0x2200000 + base*8}
s_add_u32 s12, s74, s14
s_addc_u32 s13, s75, 0
s_waitcnt lgkmcnt(0)
v_mov_b32 v12, s60
v_mov_b32 v13, s{S_STT}
v_mov_b32 v14, 0
global_store_dwordx2 v14, v[12:13], s[12:13]
"""


def gen_compute(cfg):
    st = Stream()
    R = st.raw
    R("""
L_compute:
v_and_b32 v%(ln)d, 63, v0
""" % dict(ln=V_T0))
    ln = V_T0
    t1 = V_T1
    R("s_waitcnt lgkmcnt(0)")
    R(rest_setup())
    if cfg.tlb:
        R(f"""s_load_dword s96, s[{S_K}:{S_K+1}], 0
s_load_dword s96, s[{S_V}:{S_V+1}], 0
s_load_dword s96, s[{S_WO}:{S_WO+1}], 0
s_load_dword s96, s[{S_WS}:{S_WS+1}], s{S_HPO}
s_load_dword s96, s[{S_OUT}:{S_OUT+1}], 0""")
    if cfg.codepf == 2:
        R(f"""
s_getpc_b64 s[94:95]
s_lshr_b32 s{S_T0}, s2, 3
s_lshl_b32 s{S_T0}, s{S_T0}, 2
s_add_u32 s{S_T0}, s{S_T0}, s{S_W}
s_lshl_b32 s{S_T0}, s{S_T0}, 7
s_load_dword s96, s[94:95], s{S_T0}
s_lshr_b32 s{S_T0}, s{S_T0}, 2
s_add_u32 s{S_T0}, s{S_T0}, 0x4000
s_load_dword s97, s[94:95], s{S_T0}
""")
    if cfg.codepf == 1:
        R("""
s_getpc_b64 s[%d:%d]
s_sub_u32 s44, s44, 0x1800
s_subb_u32 s45, s45, 0
v_lshlrev_b32 v16, 7, v0
v_min_u32 v16, CODE_BYTES, v16
global_load_dword v255, v16, s[%d:%d]
""" % (S_T0, S_T0 + 1, S_T0, S_T0 + 1))
    R(f"""
v_lshrrev_b32 v18, 5, v{ln}              ; h
v_bfe_u32 v19, v{ln}, 2, 2
v_xor_b32 v20, v18, v19                  ; h^g
v_lshlrev_b32 v20, 4, v20
v_and_b32 v21, 3, v{ln}
v_lshl_add_u32 v20, v21, 6, v20          ; (key&3)*64 + (h^g)*16
v_bfe_u32 v22, v{ln}, 2, 3               ; key>>2
v_lshl_add_u32 v{V_KL}, v22, 10, v20
v_bfe_u32 v22, v{ln}, 3, 2               ; tok>>3
v_lshl_add_u32 v23, v22, 10, v20
v_bfe_u32 v22, v{ln}, 2, 1
v_lshl_add_u32 v23, v22, 8, v23
s_and_b32 s{S_T0}, s{S_W}, 1
s_lshl_b32 s{S_T0}, s{S_T0}, 12
s_add_u32 s{S_T0}, s{S_T0}, {AUX}
v_add_u32 v{V_XL}, s{S_T0}, v23
v_bfe_u32 v22, v{ln}, 4, 1               ; G&1
v_lshlrev_b32 v22, 5, v22
v_lshl_add_u32 v22, v19, 6, v22          ; r*64 + (G&1)*32
v_lshl_add_u32 v23, v21, 3, v22          ; + c4*8
v_lshl_add_u32 v{V_VL}, v18, 10, v23
v_and_b32 v23, 1, v21
v_lshrrev_b32 v24, 1, v21
v_lshl_add_u32 v23, v23, 1, v24          ; bitswap(c4)
v_lshl_add_u32 v23, v23, 3, v22
s_lshr_b32 s{S_T0}, s{S_W}, 1
s_lshl_b32 s{S_T0}, s{S_T0}, 14
v_lshl_add_u32 v24, v18, 11, v23
v_add_u32 v{V_WQL}, s{S_T0}, v24
s_lshl_b32 s{S_T0}, s{S_W}, 8
v_lshl_add_u32 v24, v18, 10, v23
v_add_u32 v{V_WOL}, s{S_T0}, v24
s_mul_i32 s{S_T0}, s{S_W}, {SLOT}
s_add_u32 s{S_T0}, s{S_T0}, {AUX}
v_lshlrev_b32 v24, 4, v{ln}
v_add_u32 v{V_OW}, s{S_T0}, v24
{f"s_lshr_b32 s{S_T0}, s{S_B}, 2" if cfg.khrot else f"s_mov_b32 s{S_T0}, 0"}            ; first head
s_mul_i32 s{S_T0}, s{S_T0}, {2*SLOT}
s_add_u32 s{S_T0}, s{S_T0}, {AUX}
v_add_u32 v{V_OR}, s{S_T0}, v24          ; O read (first head, th=0)
s_lshl_b32 s{S_T0}, s{S_W}, 12
v_add_u32 v{V_ST}, s{S_T0}, v24          ; partial store voffset: w*4096 + lane*16
s_mov_b32 s{S_THR}, {hex(f2u(2.0**cfg.thr_log2 if not cfg.force_rare else 4.0))}
s_mov_b32 s{S_QS}, {hex(f2u(QSCALE))}
""")
    R(EPOCH)
    if cfg.prio:
        R(f"s_setprio {cfg.prio}")
    if cfg.itlb:
        R("%WARM%")
    stamp(st, cfg, 1)

    def addr_update(c):
        base = (c % 4) * SLOT
        if c < 8:
            return [f"v_add_u32 v{V_XA0}, {base}, v{V_XL}", f"v_add_u32 v{V_TA}, {base}, v{V_WQL}",
                    f"v_xor_b32 v{V_XA1}, 32, v{V_XA0}"]
        if c < 16:
            return [f"v_add_u32 v{V_XA0}, {base}, v{V_KL}", f"v_add_u32 v{V_TA}, {base}, v{V_VL}",
                    f"v_xor_b32 v{V_XA1}, 32, v{V_XA0}"]
        return [f"v_add_u32 v{V_TA}, {base}, v{V_WOL}"]

    fr_i = [0]

    def next_frag():
        f = FR + 4 * (fr_i[0] % 8)
        fr_i[0] += 1
        return f

    def tr_pair(f, off0, off1, chunk, lead=None):
        return RG([f"ds_read_b64_tr_b16 {vr(f,2)}, v{V_TA} offset:{off0}",
                   f"ds_read_b64_tr_b16 {vr(f+2,2)}, v{V_TA} offset:{off1}"], chunk, lead)

    mfs, wins, pre, shadow, bar = [], [], {}, {}, {}
    xi = 0
    for c in range(8):
        bar[len(mfs) - 1 - cfg.BL if c else -1] = c
        xr = []
        for s in range(4):
            xf = XF + 4 * (xi % 4)
            xi += 1
            xr.append((xf, RG([f"ds_read_b128 {vr(xf,4)}, v{V_XA0 + (s & 1)} offset:{(s >> 1) * 512}"], c, cfg.D1)))
        order = [(s, t) for s in range(4) for t in range(4)]
        if c == 7 and cfg.t1:
            order = [(s, t) for t in range(4) for s in range(4)]
        for s, t in order:
            f = next_frag()
            rg = tr_pair(f, (4 * s) * 1024 + t * 256, (4 * s + 1) * 1024 + t * 256, c, cfg.D1)
            cin = "0" if (c == 0 and s == 0) else ACC + 16 * t
            mfs.append(MF(mfma(ACC + 16 * t, f, xr[s][0], cin), [xr[s][1], rg], c))
    n1 = len(mfs)
    pre[n1] = [lambda: stamp(st, cfg, 2)] + (["s_waitcnt vmcnt(0)"] if cfg.codepf == 1 else [])
    for h in range(8):
        ops = [f"v_mul_f32 v{ACC+8*h+i}, s{S_QS}, v{ACC+8*h+i}" for i in range(8)]
        ops += [f"v_cvt_pk_bf16_f32 v{QR+4*h+i}, v{ACC+8*h+2*i}, v{ACC+8*h+2*i+1}" for i in range(4)]
        if cfg.t1:
            wins.append((ops, n1 - 16 + 4 * (h >> 1) + 5, n1 + h - 1))
        else:
            pre[n1] += ops
    items = kv_items(cfg)
    NB = cfg.skew + 1
    start = {}
    for q, (kind, t) in enumerate(items):
        c = 8 + (q >> 2)
        tb = (q & 3) * 8192
        if (q & 3) == 0:
            bar[len(mfs) - 1 - cfg.BL] = c
        start[(kind, t)] = len(mfs)
        if kind == "K":
            S = SB[t % NB]
            for s in range(8):
                f = next_frag()
                rg = RG([f"ds_read_b128 {vr(f,4)}, v{V_XA0 + (s & 1)} offset:{tb + (s >> 1) * 256}"], c, cfg.D2)
                cin = S if s else ("0" if t <= cfg.skew else NEGM)
                mfs.append(MF(mfma(S, f, QR + 4 * s, cin), [rg], c))
        else:
            order = [(u, d) for u in range(2) for d in range(4)]
            if t == 15 and cfg.t3:
                order = [(u, d) for d in range(4) for u in range(2)]
            for u, d in order:
                if True:
                    f = next_frag()
                    rg = tr_pair(f, tb + (4 * u) * 1024 + d * 256, tb + (4 * u + 2) * 1024 + d * 256, c, cfg.D2)
                    cin = "0" if (t == 0 and u == 0) else ACC + 16 * d
                    mfs.append(MF(mfma(ACC + 16 * d, f, PB[t % NB] + 4 * u, cin), [rg], c))
    S = SB[0]
    ops0 = ["v_max3_f32 v%d, v%d, v%d, v%d" % (V_T0, S, S + 1, S + 2)]
    for i in range(3, 15, 2):
        ops0.append("v_max3_f32 v%d, v%d, v%d, v%d" % (V_T0, V_T0, S + i, S + i + 1))
    ops0.append("v_max_f32 v%d, v%d, v%d" % (V_T0, V_T0, S + 15))
    ops0.append("v_mov_b32 v%d, v%d" % (V_T1, V_T0))
    ops0.append("v_permlane32_swap_b32 v%d, v%d" % (V_T0, V_T1))
    ops0.append("v_max_f32 v%d, v%d, v%d" % (V_T0, V_T0, V_T1))
    ops0.append("v_sub_f32 v%d, 0, v%d" % (NEGM, V_T0))
    ops0 += softmax_ops(0, True, NB)
    ops0.append("v_mov_b32 v%d, v%d" % (V_L, LT[0]))
    chain = [(ops0, start[("K", 1)] + 1, start[("V", 0)] - 1, None)]
    nb = ["v_mov_b32 v%d, v%d" % (NEGM + i, NEGM) for i in range(1, 16)]
    chain.append((nb, start[("V", 0)], start[("K", cfg.skew + 1)] - 2, None))
    for t in range(1, 16):
        ops = softmax_ops(t, t <= cfg.skew, NB) + ["v_cmp_nge_f32 vcc, s%d, v%d" % (S_THR, LT[t & 1])]
        chain.append((ops, start[("K", t)] + 9, start[("V", t)] - 1, t))
    rare = []

    def place_check(t, g):
        live = [u for u in range(t + 1, 16) if start[("K", u)] <= g and u > cfg.skew]
        pend = [u for u in range(t) if start[("V", u)] + 7 > g]
        rare.extend(rare_path(t, NB, live, pend))
        return ["s_cbranch_vccnz L_rare%d" % t, "L_back%d:" % t], "v_add_f32 v%d, v%d, v%d" % (V_L, LT[t & 1], V_L)
    wins.append(("chain", chain, place_check))
    pv = start[("V", 15)]
    nend = len(mfs)
    lops = [f"v_mov_b32 v{V_T0}, v{V_L}", "s_nop 0", "s_nop 0", f"v_permlane32_swap_b32 v{V_L}, v{V_T0}",
            f"v_add_f32 v{V_L}, v{V_L}, v{V_T0}", f"v_rcp_f32 v{V_L}, v{V_L}"]

    def norm_ops(ks, packed):
        a = ACC + 8 * ks
        if packed:
            o = [f"v_pk_mul_f32 v[{a+2*i}:{a+2*i+1}], v[{a+2*i}:{a+2*i+1}], v[{V_L}:{V_L+1}] op_sel_hi:[1,0]" for i in range(4)]
        else:
            o = [f"v_mul_f32 v{a+i}, v{V_L}, v{a+i}" for i in range(8)]
        o += [f"v_cvt_pk_bf16_f32 v{QR+4*ks+i}, v{a+2*i}, v{a+2*i+1}" for i in range(4)]
        return o + [(f"ds_write_b128 v{V_OW}, {vr(QR+4*ks,4)} offset:{ks*1024}", 12)]
    if cfg.t3:
        wins.append((lops, pv, pv + 2))
        for ks in range(cfg.t3):
            wins.append((norm_ops(ks, False), pv + 3 + 2 * (ks >> 1), nend - 1))
        post = sum((norm_ops(ks, cfg.pk) for ks in range(cfg.t3, 8)), [])
    else:
        post = lops + sum((norm_ops(ks, cfg.pk) for ks in range(8)), [])
    emit_schedule(st, mfs, wins, pre, shadow, cfg, cfg.D2, bar, addr_update)
    stamp(st, cfg, 3)
    for o in pre.get(nend, []) + post:
        if isinstance(o, tuple):
            st.ds(o[0])
        else:
            R(o)
    R((f"s_lshr_b32 s{S_T0}, s{S_B}, 2" if cfg.khrot else f"s_mov_b32 s{S_T0}, 0") + f"\ns_xor_b32 s{S_T0}, s{S_T0}, 1\ns_mul_i32 s{S_T0}, s{S_T0}, {2*SLOT}\ns_add_u32 s{S_T0}, s{S_T0}, {AUX}")
    R(f"v_and_b32 v{V_OW+0}, 63, v0\nv_lshlrev_b32 v{V_T0}, 4, v{V_OW}")
    st.lines.pop(); st.lines.pop()
    R(f"v_and_b32 v{V_T1}, 63, v0\nv_lshlrev_b32 v{V_T1}, 4, v{V_T1}\nv_add_u32 v{V_XA0}, s{S_T0}, v{V_T1}")
    mfs, wins, pre, shadow, bar = [], [], {}, {}, {}
    orgs = {}
    for i in range(4):
        A = ACC + 32 * (i & 1)
        for kh in range(2):
            c = 16 + 2 * i + kh
            bar[len(mfs) - 1 - cfg.BL if c > 16 else -1] = c
            for ks in range(8):
                f = next_frag()
                rg = tr_pair(f, (4 * ks) * 1024, (4 * ks + 2) * 1024, c, cfg.D3)
                for th in range(2):
                    o = OF + 64 * kh + 32 * th + 4 * ks
                    reads = [rg]
                    if i == 0:
                        areg = V_OR if kh == 0 else V_XA0
                        reads.append(RG([f"ds_read_b128 {vr(o,4)}, v{areg} offset:{th*SLOT + ks*1024}"], 16, cfg.D3 - 2))
                        reads[-1].free = True
                    cin = "0" if (kh == 0 and ks == 0) else A + 16 * th
                    mfs.append(MF(mfma(A + 16 * th, f, o, cin), reads, c))

    def cvt_ops(i, f):
        A = ACC + 32 * (i & 1) + 8 * f
        return [f"v_cvt_pk_bf16_f32 v{PK+4*f+j}, v{A+2*j}, v{A+2*j+1}" for j in range(4)]

    def st_op(i, f):
        va = (4 + (f >> 1)) if cfg.own else V_ST
        o = [f"buffer_store_dwordx4 {vr(PK+4*f,4)}, v{va}, s[{S_WS}:{S_WS+3}], s{S_NC0+i} offen offset:{f*1024} {cfg.st_pol}"]
        if cfg.own:
            o = [f"s_cmp_eq_u32 s{S_OWN}, {f >> 1}\ns_cbranch_scc0 L_own{i}{f}\n"
                 f"ds_write_b128 v{V_OW}, {vr(PK+4*f,4)} offset:{i*2048 + (f & 1)*1024}\nL_own{i}{f}:"] + o
        return o

    def flag_op(i):
        return f"buffer_store_dwordx2 v[{H_TAG}:{H_TAG+1}], v{H_FL}, s[{S_IN}:{S_IN+3}], 0 offen offset:{128*i} {cfg.fpol}"
    wins.append(([f"s_add_u32 s{S_NC0+i}, s{S_HPO}, {i*16384}" for i in range(4)], 33, 40))
    vq, sent = [], set()

    def vwait(tag):
        p = max(k for k, t in enumerate(vq) if t == tag)
        n = len(vq) - 1 - p
        del vq[:p + 1]
        return f"s_waitcnt vmcnt({n})"
    if cfg.stmode == "late":
        vq += [("st", 0)] * 3 + [("st", 1), ("st", 0)] + [("st", 1)] * 3 + [("st", 2)] * 4
        wins.append((sum((cvt_ops(0, f) for f in range(4)), []), 33, 60))
        wins.append((handoff_addr(3, "q"), 40, 78))
        g = 80 + cfg.ST0
        for f in range(4):
            wins.append((st_op(0, f), g + 2 * f, 94))
        for f in range(4):
            wins.append((cvt_ops(1, f) + st_op(1, f), g + 2 * f + 3, 94))
        for f in range(4):
            wins.append((cvt_ops(2, f) + st_op(2, f), 97 + 3 * f, 126))
    else:
        wins.append((flag_addr(cfg), 26, 33) if cfg.seq else (handoff_addr(3, "q"), 33, 60))
        ev = []
        for i in range(3):
            for f in range(4):
                ev.append((32 * (i + 1) + 2 + cfg.STS * f, "st", i, f))
        ev.append((cfg.FL0, "fl", 0, 0))
        ev.append((cfg.FL1, "fl", 1, 0))
        for g, kind, i, f in sorted(ev):
            if kind == "st":
                wins.append((cvt_ops(i, f) + st_op(i, f), g, 32 * (i + 2) - 1))
                vq.append(("st", i))
            elif g < 128:
                wins.append(([vwait(("st", i)), flag_op(i)], g, 127))
                vq.append(("fl", i))
                sent.add(i)
    if cfg.endbar and cfg.EB < 128:
        shadow[cfg.EB] = ["s_barrier"]
    emit_schedule(st, mfs, wins, pre, shadow, cfg, cfg.D3, bar, addr_update, virtual={23})
    stamp(st, cfg, 4)
    if cfg.tst:
        R(tstamp(cfg, 0))
    if cfg.stamps:
        vq.append("stamp")
    for f in range(4):
        R("\n".join(cvt_ops(3, f) + st_op(3, f)))
        vq.append(("st", 3))
    if cfg.tst:
        R(tstamp(cfg, 1))
    for i in range(4):
        if i not in sent:
            if ("st", i) in vq:
                R(vwait(("st", i)))
            R(flag_op(i))
            vq.append(("fl", i))
        if i == 1 and cfg.endbar and cfg.EB >= 128:
            R("s_barrier" if not cfg.ldsgo else f"ds_write_b32 v2, v{H_TAG}")
        if i == 2 and cfg.tst:
            R(tstamp(cfg, 2))
    if cfg.tst:
        R(tstamp(cfg, 3))
    stamp(st, cfg, 8)
    if not cfg.seq:
        rc = reduce_code(cfg, 3, "q", "c").split("L_go_c:\n")
        R(rc[0] + "L_go_c:")
        stamp(st, cfg, 9)
        R(rc[1])
        R(EPOCH_NEXT)
    stamp(st, cfg, 10)
    if cfg.stamps:
        R("s_waitcnt vmcnt(0)")
        stamp(st, cfg, 5)
        R(f"s_memrealtime s[{S_STT}:{S_STT+1}]\ns_waitcnt lgkmcnt(0)\nv_mov_b32 v{V_T0}, s{S_STT}\nv_mov_b32 v{V_T1}, 28\nglobal_store_dword v{V_T1}, v{V_T0}, s[{S_STB}:{S_STB+1}]")
    if cfg.tst:
        R(tst_end(cfg, 0))
    if cfg.span:
        R(span_end(cfg, 0))
    R("s_endpgm")
    R("L_main_end:")
    R("\n".join(rare))
    if cfg.dbg:
        keep = []
        nmf = [0]
        for l in st.lines:
            t = l.strip()
            if "E" in cfg.dbg and t.startswith("v_exp"): continue
            if "A" in cfg.dbg and t.startswith("v_add_f32"): continue
            if "C" in cfg.dbg and t.startswith("v_cvt_pk") and (" v19" in t.split(",")[0] or " v20" in t.split(",")[0]): continue
            if "K" in cfg.dbg and t.startswith("ds_read_b128"): continue
            if "T" in cfg.dbg and t.startswith("ds_read_b64_tr"): continue
            if "W" in cfg.dbg and t.startswith("s_waitcnt lgkmcnt"): continue
            if "B" in cfg.dbg and (t.startswith("s_cbranch_vccnz") or t.startswith("v_cmp_nge")): continue
            if t.startswith("v_mfma"):
                nmf[0] += 1
                ph = 1 if nmf[0] <= 128 else 2 if nmf[0] <= 384 else 3
                if "xyz"[ph - 1] in cfg.dbg:
                    continue
                if str(ph) in cfg.dbg:
                    m = re.match(r"v_mfma_f32_32x32x16_bf16 v\[(\d+):\d+\], (v\[\d+:\d+\]), (v\[\d+:\d+\]), (.*)", t)
                    d = int(m.group(1)) + 8 * (nmf[0] >> 2 & 1)
                    for q in range(2):
                        dd = "v[%d:%d]" % (d + 4 * q, d + 4 * q + 3)
                        keep.append("  v_mfma_f32_16x16x32_bf16 %s, %s, %s, %s" % (dd, m.group(2), m.group(3), dd if m.group(4) != "0" else "0"))
                    continue
            keep.append(l)
        st.lines = keep
    n0 = len(st.lines)
    st.lines = fix_hazards(st.lines)
    if cfg.verbose:
        print("hazard nops inserted:", len(st.lines) - n0, file=sys.stderr)
    return st.text()


def rest_setup():
    return f"""
s_lshl_b32 s{S_GRP}, s{S_BR}, 3
s_add_u32 s{S_GRP}, s{S_GRP}, s{S_B}
s_lshl_b32 s18, s{S_GRP}, 8
s_add_u32 s18, s18, 0x1040000
s_add_u32 s{S_EP}, s74, s18
s_addc_u32 s{S_EP+1}, s75, 0
s_load_dword s{S_EP+2}, s[{S_EP}:{S_EP+1}], 0
s_lshl_b32 s10, s{S_B}, 3
s_add_u32 s10, s10, s91
s_lshl_b32 s10, s10, 17
s_lshl_b32 s13, s{S_HP}, 18
s_lshl_b32 s14, s{S_GRP}, 20
s_lshl_b32 s{S_HPO}, s{S_HP}, 16
s_lshl_b32 s15, s{S_GRP}, 13
s_add_u32 s15, s15, 0x1000000
s_lshl_b32 s90, s{S_BR}, 10
s_lshl_b32 s19, s{S_B}, 17
s_add_u32 s19, s19, s90
s_add_u32 s{S_K}, s66, s10
s_addc_u32 s{S_K+1}, s67, 0
s_mov_b32 s{S_K+2}, 0x20000
s_mov_b32 s{S_K+3}, 0x20000
s_add_u32 s{S_V}, s68, s10
s_addc_u32 s{S_V+1}, s69, 0
s_mov_b32 s{S_V+2}, 0x20000
s_mov_b32 s{S_V+3}, 0x20000
s_add_u32 s{S_WO}, s72, s13
s_addc_u32 s{S_WO+1}, s73, 0
s_mov_b32 s{S_WO+2}, 0x40000
s_mov_b32 s{S_WO+3}, 0x20000
s_add_u32 s{S_WS}, s74, s14
s_addc_u32 s{S_WS+1}, s75, 0
s_mov_b32 s{S_WS+2}, 0x100000
s_mov_b32 s{S_WS+3}, 0x20000
s_add_u32 s{S_IN}, s74, s15
s_addc_u32 s{S_IN+1}, s75, 0
s_mov_b32 s{S_IN+2}, 0x2000
s_mov_b32 s{S_IN+3}, 0x20000
s_add_u32 s{S_OUT}, s92, s19
s_addc_u32 s{S_OUT+1}, s93, 0
s_sub_u32 s{S_OUT+2}, 0x20000, s90
s_mov_b32 s{S_OUT+3}, 0x20000
"""


def gen_loader(cfg):
    L = []
    R = lambda t: L.extend(("  " + l.strip()) if not l.endswith(":") else l for l in t.strip("\n").split("\n"))
    vWQ, vX, vK, vV, vWO = 1, 2, 3, 4, 5
    R(f"""
L_loader:
s_sub_u32 s{S_W}, s{S_W}, 4
s_lshl_b32 s5, s5, 1
s_add_u32 s5, s5, s{S_ROT}
%ROT%
s_lshl_b32 s11, s{S_B}, 16      ; x offset
s_lshl_b32 s12, s{S_HP}, 9
s_mov_b32 s{S_X+2}, 0x10000
s_mov_b32 s{S_X+3}, 0x20000
s_sub_u32 s{S_WQ+2}, 0x400000, s12
s_mov_b32 s{S_WQ+3}, 0x20000
v_and_b32 v10, 63, v0
v_lshrrev_b32 v11, 4, v10               ; t = i>>4
v_bfe_u32 v12, v10, 2, 2                ; r
v_and_b32 v13, 3, v10                   ; c
v_lshlrev_b32 v14, 6, v11
v_lshl_add_u32 v15, v13, 4, v14         ; t*64 + c*16
s_and_b32 s{S_T0}, s{S_W}, 1
s_lshl_b32 s{S_T0}, s{S_T0}, 18
s_lshr_b32 s{S_T1}, s{S_W}, 1
s_lshl_b32 s{S_T1}, s{S_T1}, 8
s_add_u32 s{S_T0}, s{S_T0}, s{S_T1}
v_lshl_add_u32 v16, v12, 13, v15
v_add_u32 v{vWQ}, s{S_T0}, v16
s_lshl_b32 s{S_M8}, s{S_W}, 13
s_lshl_b32 s{S_M1}, s{S_W}, 10
v_and_b32 v16, 1, v11                   ; tq
s_and_b32 s{S_T0}, s{S_W}, 1
s_lshl_b32 s{S_T0}, s{S_T0}, 1
v_or_b32 v17, s{S_T0}, v16              ; g
v_xor_b32 v17, v17, v13
v_lshlrev_b32 v17, 4, v17
v_lshrrev_b32 v18, 1, v11               ; ch
v_lshl_add_u32 v17, v18, 6, v17
v_lshl_add_u32 v18, v16, 2, v12         ; 4tq + t3
v_lshl_add_u32 v17, v18, 10, v17
v_add_u32 v{vX}, s{S_M8}, v17           ; + 8*lw*1024
s_waitcnt lgkmcnt(0)
s_add_u32 s{S_X}, s64, s11
s_addc_u32 s{S_X+1}, s65, 0
s_add_u32 s{S_WQ}, s70, s12
s_addc_u32 s{S_WQ+1}, s71, 0
""")
    vq = []

    def pieces(c):
        base = (c % 4) * SLOT
        sa, sb = (50 + 2 * (c & 1), 51 + 2 * (c & 1)) if c < cfg.rst else (54, 55)
        P = []
        if c < 8:
            if cfg.ramp:
                pro = f"s_bfe_u32 s{sa}, s{S_ROT}, {hex(0x30000 + 4*c)}\n"
            else:
                pro = f"s_add_u32 s{sa}, s{S_ROT}, {c}\ns_and_b32 s{sa}, s{sa}, 7\n"
            pro += f"s_lshl_b32 s{sb}, s{sa}, 7\ns_lshl_b32 s{sa}, s{sa}, 19\n"
            for p in range(2):
                P.append(f"s_add_u32 m0, s{S_M1}, {base + AUX + p*4096}\ns_add_u32 s{S_T2}, s{sb}, {p*32768}\n"
                         f"buffer_load_dwordx4 v{vX}, s[{S_X}:{S_X+3}], s{S_T2} offen {cfg.nt_w} lds")
            for p in range(8):
                P.append(f"s_add_u32 m0, s{S_M8}, {base + p*1024}\ns_add_u32 s{S_T2}, s{sa}, {p*32768}\n"
                         f"buffer_load_dwordx4 v{vWQ}, s[{S_WQ}:{S_WQ+3}], s{S_T2} offen {cfg.nt_w} lds")
        elif c < 16:
            pro = ""
            js = list(range(4))
            if cfg.kkvv:
                js.sort(key=lambda j: kv_items(cfg)[(c - 8) * 4 + j])
            for j in js:
                kind, t = kv_items(cfg)[(c - 8) * 4 + j]
                v, sr = (vK, S_K) if kind == "K" else (vV, S_V)
                for p in range(2):
                    if cfg.kvrot:
                        off = f"s_add_u32 s{S_T2}, s{S_KVR}, {t*8192 + p*4096}\ns_and_b32 s{S_T2}, s{S_T2}, 0x1ffff"
                    else:
                        off = f"s_mov_b32 s{S_T2}, {t*8192 + p*4096}"
                    P.append(f"s_add_u32 m0, s{S_M1}, {base + j*8192 + p*4096}\n{off}\n"
                             f"buffer_load_dwordx4 v{v}, s[{sr}:{sr+3}], s{S_T2} offen {cfg.nt_kv} lds")
        else:
            i, kh = (c - 16) >> 1, (c - 16) & 1
            pro = f"s_add_u32 s{sa}, s{S_B}, {i}\ns_and_b32 s{sa}, s{sa}, 3\ns_lshl_b32 s{sa}, s{sa}, 8\n"
            if cfg.khrot:
                pro += f"s_lshr_b32 s{sb}, s{S_B}, 2\ns_xor_b32 s{sb}, s{sb}, {kh}\ns_lshl_b32 s{sb}, s{sb}, 17\ns_add_u32 s{sa}, s{sa}, s{sb}\n"
            for p in range(8):
                if c >= cfg.rst:
                    rg = 256 - 32 * (24 - c) + 4 * p
                    P.append(f"s_add_u32 s{S_T2}, s{sa}, {p*4096 + (0 if cfg.khrot else kh << 17)}\n"
                             f"buffer_load_dwordx4 v[{rg}:{rg+3}], v{vWO}, s[{S_WO}:{S_WO+3}], s{S_T2} offen {cfg.nt_w}")
                    continue
                P.append(f"s_add_u32 m0, s{S_M8}, {base + p*1024}\ns_add_u32 s{S_T2}, s{sa}, {p*4096 + (0 if cfg.khrot else kh << 17)}\n"
                         f"buffer_load_dwordx4 v{vWO}, s[{S_WO}:{S_WO+3}], s{S_T2} offen {cfg.nt_w} lds")
        P[0] = pro + P[0]
        return P

    todo = [(c, k, len(pieces(c)), t) for c in range(cfg.rst) for k, t in enumerate(pieces(c))]
    rtodo = [(c, t) for c in range(cfg.rst, 24) for t in pieces(c)]
    rcum = {int(e[0], 36): int(e[1:]) for e in cfg.rplan.split(",") if e}
    nstaged = [0]

    def issue_staged(s):
        want = rcum.get(s, 0) * 4 if s in rcum else 0
        if s == max(rcum, default=16):
            want = 999
        while rtodo and nstaged[0] < want:
            c, t = rtodo.pop(0)
            R(t)
            vq.append(("r", c))
            nstaged[0] += 1

    def write_staged(c):
        wait_for(("r", c))
        R(f"v_add_u32 v9, {(c % 4) * SLOT}, v11")
        for p in range(8):
            rg = 256 - 32 * (24 - c) + 4 * p
            R(f"ds_write_b128 v9, v[{rg}:{rg+3}] offset:{p*1024}")

    def issue_to(pos):
        while todo and todo[0][0] + (todo[0][1] + 1) / todo[0][2] <= pos + 1e-6:
            c, k, n, t = todo.pop(0)
            if c == 1 and k == 0 and cfg.prow >= 0:
                R(f"s_waitcnt vmcnt({cfg.prow})")
            if cfg.win and cfg.pace0 <= c <= cfg.pace1 and len(vq) >= cfg.win:
                R(f"s_waitcnt vmcnt({cfg.win - 1})")
                del vq[:len(vq) - (cfg.win - 1)]
            R(t)
            if cfg.pace and cfg.pace0 <= c <= cfg.pace1:
                R(cfg.pace.replace(";", "\n"))
            vq.append(("c", c))

    def lstamp(i):
        if cfg.lstamps:
            R(f"s_memtime s[{S_STT}:{S_STT+1}]\ns_waitcnt lgkmcnt(0)\nv_writelane_b32 v100, s{S_STT}, {i}")
    lstamp(50)
    issue_to(1)
    lstamp(51)
    R(rest_setup())
    R(f"v_lshlrev_b32 v11, 4, v10\nv_add_u32 v11, s{S_M8}, v11") if False else None
    if cfg.kvrot == 1:
        R(f"s_lshl_b32 s{S_KVR}, s{S_B}, 1\ns_add_u32 s{S_KVR}, s{S_KVR}, s91\ns_lshl_b32 s{S_KVR}, s{S_KVR}, 13")
    elif cfg.kvrot == 2:
        R(f"s_mul_i32 s{S_KVR}, s91, 5\ns_mul_i32 s{S_T0}, s{S_B}, 3\ns_add_u32 s{S_KVR}, s{S_KVR}, s{S_T0}\ns_lshl_b32 s{S_KVR}, s{S_KVR}, 13")
    elif cfg.kvrot == 3:
        R(f"s_lshl_b32 s{S_KVR}, s{S_B}, 1\ns_add_u32 s{S_KVR}, s{S_KVR}, s91\ns_and_b32 s{S_T0}, s{S_HP}, 1\ns_mul_i32 s{S_T0}, s{S_T0}, {cfg.kvd}\ns_add_u32 s{S_KVR}, s{S_KVR}, s{S_T0}\ns_lshl_b32 s{S_KVR}, s{S_KVR}, 13")
    R(f"""
v_lshl_add_u32 v16, v12, 8, v15
v_add_u32 v{vV}, s{S_M1}, v16
v_xor_b32 v16, s{S_W}, v13
v_lshl_add_u32 v16, v16, 4, v14
v_lshl_add_u32 v16, v12, 8, v16
v_add_u32 v{vK}, s{S_M1}, v16
v_lshl_add_u32 v16, v12, 10, v15
s_lshl_b32 s{S_T0}, s{S_W}, 15
v_add_u32 v{vWO}, s{S_T0}, v16
v_lshlrev_b32 v11, 4, v10
v_add_u32 v11, s{S_M8}, v11
""")
    depth = [int(ch, 16) / 4 for ch in cfg.plan]
    depth += [depth[-1]] * (24 - len(depth))

    def wait_for(*tags):
        pos = [k for k, t in enumerate(vq) if t in tags]
        if pos:
            n = len(vq) - 1 - max(pos)
            R(f"s_waitcnt vmcnt({n})")
            del vq[:max(pos) + 1]

    for s in range(23):
        assert s + depth[s] <= max(3, s + 2)
        issue_to(s + 1 + depth[s])
        issue_staged(s)
        if s + 2 >= cfg.rst and s + 2 < 24 and s >= 3:
            write_staged(s + 2)
        if s == 0:
            lstamp(48)
        if s == cfg.openin:
            R(f"""s_mul_i32 s{S_T0}, s{S_HP}, 520
v_lshlrev_b32 v6, 7, v10
v_mov_b32 v7, 0x7fff0000
v_cmp_gt_u32 vcc, 4, v0
v_mov_b32 v8, 0
v_mov_b32 v9, 0
v_lshlrev_b32 v6, 7, v10
v_subrev_u32 v16, 256, v0
v_cmp_gt_u32 vcc, 4, v16
s_nop 1
v_cndmask_b32 v6, v7, v6, vcc
buffer_store_dwordx2 v[8:9], v6, s[{S_IN}:{S_IN+3}], s{S_T0} offen sc1""")
            vq.append("open")
        if s == cfg.openout:
            R(f"""s_and_b32 s{S_T0}, s{S_HP}, 3
s_lshl_b32 s{S_T0}, s{S_T0}, 15
s_lshr_b32 s{S_T1}, s{S_HP}, 2
s_lshl_b32 s{S_T1}, s{S_T1}, 6
s_add_u32 s{S_T0}, s{S_T0}, s{S_T1}
v_and_b32 v6, 15, v10
v_lshlrev_b32 v6, 11, v6
v_lshrrev_b32 v7, 4, v10
v_lshl_add_u32 v6, v7, 8, v6
s_cmp_lg_u32 s{S_W}, 1
s_cbranch_scc1 L_noout
buffer_load_dword v7, v6, s[{S_OUT}:{S_OUT+3}], s{S_T0} offen
L_noout:""")
            vq.insert(0, "x") if False else None
        if s == 12:
            R(EPOCH)
        wait_for(("c", s if s < 22 else 23))
        if s >= cfg.rst:
            R("s_waitcnt lgkmcnt(%d)" % (8 if s < 22 and not (cfg.tst or cfg.cyc or cfg.lstamps) else 0 if s == 22 else 8))
        lstamp(2 * s)
        if not ("N" in cfg.dbg and s in (10, 11, 12, 13, 14, 15, 17, 18, 19, 20, 21)):
            R("s_barrier")
        if cfg.tst and s in (0, 8, 16):
            R(tstamp(cfg, s // 8) if not cfg.seq else tstamp(cfg, 6) if s == 16 else tstamp(cfg, 8 + s // 8))
        if cfg.cyc:
            if s:
                R(f"s_waitcnt lgkmcnt(0)\nv_writelane_b32 v100, s100, {2*s-2}\nv_writelane_b32 v100, s58, {2*s-1}")
            R("s_memtime s[100:101]\ns_memrealtime s[58:59]")
        lstamp(2 * s + 1)
    if not cfg.seq:
        R(f"s_cmp_eq_u32 s{S_W}, 3\ns_cbranch_scc1 L_ld_done")
    R("\n".join(handoff_addr(0, "q" if cfg.seq else "w")))
    R(f"s_lshl_b32 s{S_T1}, s{S_HP}, 9\nv_and_b32 v3, {63 if cfg.dyn else 31}, v10\nv_lshlrev_b32 v3, 3, v3\nv_add_u32 v3, s{S_T1}, v3")
    lstamp(46)
    if cfg.endbar and not cfg.ldsgo:
        R("s_barrier")
    if cfg.tst and not cfg.seq:
        R(tstamp(cfg, 3))
    lstamp(47)
    R(reduce_x4(cfg) if cfg.x4 else reduce_loop(cfg) if cfg.loopred else reduce_dyn(cfg) if cfg.seq and cfg.dyn else reduce_seq(cfg) if cfg.seq else reduce_code(cfg, f"s{S_W}", "w", "l"))
    R("L_ld_done:")
    if cfg.lstamps or cfg.cyc:
        R(f"""s_waitcnt lgkmcnt(0)
v_writelane_b32 v100, s62, 49
v_writelane_b32 v100, s60, 50
s_lshl_b32 s14, s2, 2
s_add_u32 s14, s14, s{S_W}
s_lshl_b32 s14, s14, 8
s_add_u32 s14, s14, 0x2100000
s_add_u32 s{S_STT}, s74, s14
s_addc_u32 s{S_STT+1}, s75, 0
v_lshlrev_b32 v21, 2, v10
global_store_dword v21, v100, s[{S_STT}:{S_STT+1}]""")
    if cfg.tst:
        R(tst_end(cfg, 4))
    if cfg.span:
        R(span_end(cfg, 4))
    R("s_endpgm")
    return "\n".join(L) + "\n"


def gen_main(cfg):
    name = NAME + "_kernel"
    s = f""".globl {name}
.p2align 12
.p2align 8
.type {name},@function
{name}:
  s_cmp_ge_u32 s2, 256
  s_cbranch_scc1 L_exit
"""
    if cfg.stamps or cfg.lstamps or cfg.span or cfg.tst:
        s += f"  s_memrealtime s[60:61]\n  s_memtime s[62:63]\n"
    s += f"""
  s_bfe_u32 s{S_BR}, s2, 0x10002
  s_mul_i32 s5, s{S_BR}, 40
  s_add_u32 s8, s0, s5
  s_addc_u32 s9, s1, 0
  s_load_dwordx8 s[64:71], s[8:9], 0      ; x k v wq
  s_load_dwordx2 s[72:73], s[8:9], 32     ; wo
  s_load_dwordx2 s[74:75], s[0:1], 96     ; ws
  s_load_dwordx2 s[92:93], s[0:1], 80     ; out
  v_lshrrev_b32 v1, 6, v0
  s_lshr_b32 s4, s2, 3            ; slot
  s_and_b32 s{S_ROT}, s4, 1
  v_readfirstlane_b32 s{S_W}, v1
  s_and_b32 s91, s2, 3
  s_lshl_b32 s91, s91, 1
  s_add_u32 s91, s91, s{S_ROT}    ; hkv
  {f"s_lshr_b32 s{S_B}, s4, 2" if cfg.remap else f"s_bfe_u32 s{S_B}, s4, 0x30001"}   ; b
  {"s_bfe_u32 s5, s4, 0x10001" if cfg.remap else "s_lshr_b32 s5, s4, 4"}            ; half
  s_lshl_b32 s{S_HP}, s91, 1
  s_add_u32 s{S_HP}, s{S_HP}, s5  ; hp
"""
    if cfg.stamps:
        s += f"""
  s_waitcnt lgkmcnt(0)
  s_lshl_b32 s14, s2, 3
  s_add_u32 s14, s14, s{S_W}
  s_lshl_b32 s14, s14, 6
  s_add_u32 s14, s14, 0x2000000
  s_add_u32 s{S_STB}, s74, s14
  s_addc_u32 s{S_STB+1}, s75, 0
  v_mov_b32 v{V_T0}, s62
  v_mov_b32 v{V_T1}, 0
  global_store_dword v{V_T1}, v{V_T0}, s[{S_STB}:{S_STB+1}]
  v_mov_b32 v{V_T0}, s60
  v_mov_b32 v{V_T1}, 24
  global_store_dword v{V_T1}, v{V_T0}, s[{S_STB}:{S_STB+1}]
  s_waitcnt vmcnt(0)
"""
    s += f"""
  s_cmp_lt_u32 s{S_W}, 4
  s_cbranch_scc1 L_compute
"""
    s += gen_loader(cfg)
    comp = gen_compute(cfg)
    s += ".p2align 12\n" + comp
    s += "L_exit:\n  s_endpgm\nL_code_end:\n"
    s = s.replace("CODE_BYTES", "0x7f80")
    rot = {8: f"  s_lshl_b32 s5, s5, 1\n  s_add_u32 s{S_ROT}, s5, s{S_B}",
           -8: f"  s_mov_b32 s{S_ROT}, s{S_B}",
           4: f"  s_add_u32 s5, s5, s{S_B}\n  s_lshl_b32 s{S_ROT}, s5, 1",
           2: f"  s_add_u32 s5, s5, s{S_B}\n  s_lshl_b32 s{S_ROT}, s5, 2",
           1: f"  s_mov_b32 s{S_ROT}, 0"}[cfg.rot]
    if cfg.ramp:
        sizes = [int(ch) for ch in cfg.ramp]
        tabs = []
        for q in range(8):
            first, o = 0, []
            for n in sizes:
                o.append(first + ((q >> 2) if n == 2 else (q >> 1) if n == 4 else q % n))
                first += n
            o += [c for c in range(8) if c not in o]
            tabs.append(sum(c << (4 * i) for i, c in enumerate(o)))
        rot = f"  s_lshl_b32 s5, s5, 1\n  s_add_u32 s5, s5, s{S_B}\n  s_and_b32 s5, s5, 7\n  s_mov_b32 s{S_ROT}, {hex(tabs[0])}"
        for q in range(1, 8):
            rot += f"\n  s_cmp_eq_u32 s5, {q}\n  s_cselect_b32 s{S_ROT}, {hex(tabs[q])}, s{S_ROT}"
    s = s.replace("%ROT%", rot)
    return s


def gen_reduce(cfg):
    name = "reduce_kernel"
    s = f""".globl {name}
.p2align 8
.type {name},@function
{name}:
  s_cmp_ge_u32 s2, 256
  s_cbranch_scc1 L_rexit
  s_load_dwordx2 s[4:5], s[0:1], 96
  s_load_dwordx2 s[6:7], s[0:1], 80
  s_lshr_b32 s8, s2, 4            ; group
  s_and_b32 s9, s2, 15            ; slice
  s_lshl_b32 s10, s8, 20
  s_lshl_b32 s11, s9, 12
  s_add_u32 s10, s10, s11
  v_lshlrev_b32 v1, 4, v0
  s_mov_b32 s14, 0x100000
  s_mov_b32 s15, 0x20000
  s_mov_b32 s18, 0x100000
  s_mov_b32 s19, 0x20000
  s_waitcnt lgkmcnt(0)
  s_add_u32 s12, s4, s10
  s_addc_u32 s13, s5, 0
  s_mov_b32 s16, s6
  s_mov_b32 s17, s7
"""
    for p in range(16):
        s += f"  s_mov_b32 s20, {p*65536}\n  buffer_load_dwordx4 v[{16+4*p}:{19+4*p}], v1, s[12:15], s20 offen {cfg.red_pol}\n"
    s += """
  s_and_b32 s20, s8, 7
  s_lshl_b32 s20, s20, 17
  s_lshr_b32 s21, s8, 3
  s_lshl_b32 s21, s21, 10
  s_add_u32 s20, s20, s21
  s_and_b32 s21, s9, 1
  s_lshl_b32 s21, s21, 16
  s_add_u32 s20, s20, s21
  s_lshr_b32 s21, s9, 1
  s_lshl_b32 s21, s21, 7
  s_add_u32 s20, s20, s21
  v_and_b32 v2, 31, v0
  v_lshlrev_b32 v2, 11, v2
  v_lshrrev_b32 v3, 5, v0
  v_lshl_add_u32 v2, v3, 4, v2
  s_mov_b32 s22, 0xffff0000
"""
    for p in range(16):
        s += f"  s_waitcnt vmcnt({15-p})\n"
        for j in range(4):
            r = 16 + 4 * p + j
            if p == 0:
                s += f"  v_lshlrev_b32 v{4+2*j}, 16, v{r}\n  v_and_b32 v{5+2*j}, s22, v{r}\n"
            else:
                s += f"  v_lshlrev_b32 v12, 16, v{r}\n  v_and_b32 v13, s22, v{r}\n  v_add_f32 v{4+2*j}, v12, v{4+2*j}\n  v_add_f32 v{5+2*j}, v13, v{5+2*j}\n"
    for j in range(4):
        s += f"  v_cvt_pk_bf16_f32 v{12+j}, v{4+2*j}, v{5+2*j}\n"
    s += """  buffer_store_dwordx4 v[12:15], v2, s[16:19], s20 offen
L_rexit:
  s_endpgm
"""
    return s


def desc(name, nv, ns):
    return f""".p2align 6
.amdhsa_kernel {name}
  .amdhsa_next_free_vgpr {nv}
  .amdhsa_next_free_sgpr {ns}
  .amdhsa_accum_offset {nv}
  .amdhsa_group_segment_fixed_size 0
  .amdhsa_kernarg_size 104
  .amdhsa_user_sgpr_count 2
  .amdhsa_user_sgpr_kernarg_segment_ptr 1
  .amdhsa_system_sgpr_workgroup_id_x 1
.end_amdhsa_kernel
"""


def generate(cfg):
    ref = open("cdna_kernels/%s.s.ref" % NAME).read().split("\n")
    head = [l for l in ref if l.startswith(";") and "@launch" not in l and "Override launch" not in l and "grid=ceil" not in l]
    head = head[:14]
    s = "\n".join(head) + "\n"
    s += f"; @launch grid=(256,1,1) block=(512,1,1) lds=163840\n"
    s += '.amdgcn_target "amdgcn-amd-amdhsa--gfx950"\n.text\n'
    s += gen_main(cfg)
    s += '.section .rodata,"a"\n'
    s += desc(NAME + "_kernel", 256, 102)
    return s


def add_page_stubs(text):
    import subprocess, tempfile, os
    lines = text.split("\n")
    i0 = lines.index("L_compute:")
    i1 = lines.index("L_main_end:")
    iw = next(i for i, l in enumerate(lines) if l.strip() == "%WARM%")
    nwarm = 10
    probe = lines[:iw] + ["  s_nop 0"] * nwarm + lines[iw + 1:]
    d = tempfile.mkdtemp()
    open(d + "/p.s", "w").write("\n".join(probe))
    subprocess.check_call(["clang", "-x", "assembler", "-target", "amdgcn-amd-amdhsa", "-mcpu=gfx950", "-c", d + "/p.s", "-o", d + "/p.o"])
    dis = subprocess.check_output(["llvm-objdump", "-d", "--mcpu=gfx950", d + "/p.o"], text=True).split("\n")
    k = next(i for i, l in enumerate(dis) if l.endswith("<L_compute>:"))
    sizes = [4 * len(l.split("//")[1].split(":")[1].split()) for l in dis[k:] if "//" in l]
    out, addr, n, stubs = probe[:i0 + 1], 0, 0, []
    for l in probe[i0 + 1:i1 + nwarm - 1]:
        t = l.split(";")[0].strip()
        if t and not t.endswith(":"):
            if addr // 4096 > len(stubs):
                stubs.append(len(out))
                out.append(None)
                addr += 4
            addr += sizes[n]
            n += 1
        out.append(l)
    out += probe[i1 + nwarm - 1:]
    ns = len(stubs)
    for j, p in enumerate(stubs):
        tgt = "L_stub%d" % (j + 4) if j + 4 < ns else "L_warm_ret"
        out[p] = "L_stub%d:\n  s_cbranch_execz %s" % (j, tgt)
    warm = ["  s_mov_b64 exec, 0"]
    for w in range(4):
        warm += ["  s_cmp_eq_u32 s%d, %d" % (S_W, w), "  s_cbranch_scc1 %s" % ("L_stub%d" % w if w < ns else "L_warm_ret")]
    warm += ["L_warm_ret:\n  s_mov_b64 exec, -1"]
    out[iw:iw + nwarm] = warm
    return "\n".join(out)


if __name__ == "__main__":
    cfg = Cfg()
    out = sys.argv[1]
    for a in sys.argv[2:]:
        k, v = a.split("=")
        old = getattr(cfg, k)
        if isinstance(old, bool):
            v = v in ("1", "True", "true")
        elif isinstance(old, int):
            v = int(v)
        elif isinstance(old, float):
            v = float(v)
        else:
            v = v.replace("+", " ").replace("/", ",")
        setattr(cfg, k, v)
    txt = generate(cfg)
    if cfg.itlb:
        txt = add_page_stubs(txt)
    open(out, "w").write(txt)
```

```python
import sys, re, math

NAME = "concat_heads__gqa_block_cached__gqa_block_cached__near_ridge"
SLOT = 40960
AUX = 32768
QSCALE = math.log2(math.e) / math.sqrt(128.0)


def f2u(x):
    import struct
    return struct.unpack("<I", struct.pack("<f", x))[0]


class Cfg:
    nt_w = ""
    nt_kv = ""
    st_pol = "sc1"
    red_pol = "sc1"
    out_pol = ""
    spin = 2000000
    ST0 = 0
    kvrot = 0
    kvd = 0
    cyc = False
    prow = -1
    tlb = False
    seq = True
    dyn = False
    EB = 200
    t1 = True
    t3 = 2
    pk = True
    touch = ''
    part1 = 10
    FL0 = 84
    FL1 = 116
    endbar = True
    psleep = 0
    remap = True
    span = False
    tst = False
    itlb = True
    STS = 4
    stmode = 'spread'
    prio = 0
    pace = ''
    pace0 = 8
    pace1 = 17
    D1 = 7
    D2 = 7
    D3 = 8
    BL = 3
    stamps = False
    lstamps = False
    codepf = 2
    thr_log2 = 24.0
    rot = 2
    WP = 2
    dbg = ''
    verbose = False
    CAP = 4
    CAPB = 2
    BARC = 4
    MINLEAD = 3
    WL = 3
    nodrain = False
    pro = 4
    plan = '8888888777789aceg'
    ppol = 'sc1'
    fpol = 'sc1'
    rounds = '0,1,2,3'
    khrot = False
    rst = 22
    rplan = 'g4'
    openin = 1
    openout = -1
    skew = 2
    own = True
    x4 = True
    pipe = True
    win = 7
    pacem = 99
    kkvv = False
    early = 0
    esleep = 0
    ldsgo = True
    loopred = False
    dry = True
    ramp = ''
    force_rare = False


class Stream:
    def __init__(self):
        self.lines = []
        self.dsq = []
        self.nid = 0

    def raw(self, t):
        for l in t.strip("\n").split("\n"):
            self.lines.append(l if l.endswith(":") else "  " + l.strip())

    def ds(self, t):
        if len(self.dsq) >= 15:
            self.lines.append("  s_waitcnt lgkmcnt(11)")
            self.dsq = self.dsq[-11:]
        self.nid += 1
        self.dsq.append(self.nid)
        self.lines.append("  " + t)
        return self.nid

    def need(self, ids):
        pos = [self.dsq.index(i) for i in ids if i in self.dsq]
        if not pos:
            return
        p = max(pos)
        n = len(self.dsq) - 1 - p
        self.lines.append("  s_waitcnt lgkmcnt(%d)" % n)
        self.dsq = self.dsq[p + 1:]

    def drain(self):
        if self.dsq:
            self.lines.append("  s_waitcnt lgkmcnt(0)")
        self.dsq = []

    def text(self):
        return "\n".join(self.lines) + "\n"


def vr(a, n=1):
    return "v%d" % a if n == 1 else "v[%d:%d]" % (a, a + n - 1)


def mfma(d, a, b, c):
    cs = c if isinstance(c, str) else vr(c, 16)
    return "v_mfma_f32_32x32x16_bf16 %s, %s, %s, %s" % (vr(d, 16), vr(a, 4), vr(b, 4), cs)


V_TID = 0
V_XA0, V_XA1 = 1, 2
V_TA = 3
V_XL, V_KL = 4, 5
V_WQL, V_VL, V_WOL = 6, 7, 8
V_OW, V_OR = 9, 10
V_ST = 11
V_L, V_LT = 12, 13
V_T0, V_T1 = 14, 15
V_PF = 255
FR = 16
XF = 48
ET = 48
PK = 48
ACC = 64
QR = 128
SB = [160, 176, 224]
PB = [192, 200, 240]
LT = [13, 60]
NEGM = 208
OF = 128

S_W = 3
S_B, S_HP, S_GRP, S_BR = 6, 7, 16, 17
S_X, S_K, S_V, S_WQ, S_WO = 20, 24, 28, 32, 36
S_WS = 40
S_T0, S_T1, S_T2 = 44, 45, 46
S_M8, S_M1 = 47, 48
S_NC0 = 50
S_THR = 54
S_QS = 55
S_ROT = 49
S_KVR = 83
S_IN, S_OUT = 76, 84
S_HPO = 88
S_CNT = 89
S_STB = 56
S_STT = 58


class MF:
    def __init__(self, text, reads=None, chunk=None):
        self.text = text
        self.reads = reads or []
        self.chunk = chunk


class RG:
    def __init__(self, texts, chunk, lead=None):
        self.texts = texts
        self.chunk = chunk
        self.ids = None
        self.lead = lead


def stamp(st, cfg, idx):
    if not cfg.stamps:
        return
    st_l = []
    st_l.append("s_memtime s[%d:%d]" % (S_STT, S_STT + 1))
    st_l.append("s_waitcnt lgkmcnt(0)")
    st_l.append("v_mov_b32 v%d, s%d" % (V_T0, S_STT))
    st_l.append("v_mov_b32 v%d, %d" % (V_T1, idx * 4))
    st_l.append("global_store_dword v%d, v%d, s[%d:%d]" % (V_T1, V_T0, S_STB, S_STB + 1))
    st.dsq = []
    st.raw("\n".join(st_l))


def vcost(t):
    if isinstance(t, tuple):
        return t[1]
    if not isinstance(t, str):
        return 0
    if t.endswith(":"):
        return 0
    if t.startswith(("v_exp", "v_rcp")):
        return 8
    if t.startswith("buffer_store"):
        return 12
    if "\n" in t:
        return 8
    return 4


def emit_schedule(st, mfs, wins, pre, shadow, cfg, D, barrier_at, addr_update, virtual=()):
    n = len(mfs)
    open_gap = {c: g for g, c in barrier_at.items()}
    rd_at, rd_gap, seen, pend = {}, {}, set(), []
    for i, m in enumerate(mfs):
        for rg in m.reads:
            if id(rg) in seen:
                continue
            seen.add(id(rg))
            lead = rg.lead if rg.lead is not None else D
            pend.append((max(i - lead, open_gap[rg.chunk]), i, rg))
    g, k = -1, 0
    while k < len(pend):
        cap = 99 if g < 0 else (cfg.CAPB if g in barrier_at else cfg.CAP)
        used = 0
        while k < len(pend) and pend[k][0] <= g and (used + len(pend[k][2].texts) <= cap or pend[k][1] - g <= cfg.MINLEAD):
            rg = pend[k][2]
            rd_at.setdefault(g, []).append(rg)
            rd_gap[id(rg)] = g
            used += len(rg.texts)
            k += 1
        g += 1
    for _, i, rg in pend:
        if rg.chunk + 1 in open_gap and not getattr(rg, "free", False):
            assert rd_gap[id(rg)] < open_gap[rg.chunk + 1], "read of chunk %d after the next barrier" % rg.chunk
    budget = {}
    for g in range(n):
        b = 24 - 4 * sum(len(rg.texts) for rg in rd_at.get(g, []))
        if g in barrier_at:
            b -= cfg.BARC
        budget[g] = b
    gaps = {}
    upd_done = set()
    for g, c in barrier_at.items():
        if g >= 0 and not cfg.nodrain:
            lo = max(gg for gg, l in rd_at.items() if gg < g and any(not getattr(r, "free", False) for r in l))
            if lo <= g - 1:
                for j, t in enumerate(addr_update(c)):
                    gg = min(g - 1, lo + 1 + j)
                    gaps.setdefault(gg, []).append(t)
                    budget[gg] -= 4
                upd_done.add(g)
    over = 0

    def fill(ops, g, g1):
        nonlocal over
        for o in ops:
            c = vcost(o)
            while g <= g1 and budget[g] < c:
                g += 1
            if g > g1:
                pre.setdefault(g1 + 1, []).append(o)
                over += c
            else:
                gaps.setdefault(g, []).append(o)
                budget[g] -= c
        return g
    for w in wins:
        if w[0] == "chain":
            cur = 0
            for ops, g0, g1, t in w[1]:
                cur = fill(ops, max(cur, g0), g1)
                if t is None:
                    continue
                gb = cur + 1
                while gb in barrier_at or gb in shadow:
                    gb += 1
                if gb <= g1:
                    br, ladd = w[2](t, gb)
                    shadow[gb] = br
                    cur = fill([ladd], gb, gb + 2)
                else:
                    br, ladd = w[2](t, g1)
                    pre.setdefault(g1 + 1, []).extend(br)
                    cur = fill([ladd], g1 + 1, g1 + 3)
                if cfg.verbose:
                    print("tile", t, "check at", gb, "deadline", g1, file=sys.stderr)
            continue
        ops, g0, g1 = w
        g = g0
        for o in ops:
            c = vcost(o)
            while g <= g1 and budget[g] < c:
                g += 1
            if g > g1:
                pre.setdefault(g1 + 1, []).append(o)
                over += c
            else:
                gaps.setdefault(g, []).append(o)
                budget[g] -= c
    if cfg.verbose:
        print("window overflow cycles", over, "over-budget gaps", [(g, b) for g, b in budget.items() if b < 0], file=sys.stderr)
    for g in sorted(k for k in rd_at if k < 0):
        if g in barrier_at:
            st.drain()
            st.raw("s_barrier")
            for t in addr_update(barrier_at[g]):
                st.raw(t)
        for rg in rd_at[g]:
            rg.ids = [st.ds(t) for t in rg.texts]

    def emit(t):
        if isinstance(t, tuple):
            st.ds(t[0])
        elif callable(t):
            t()
        else:
            st.raw(t)

    for i, m in enumerate(mfs):
        for t in pre.get(i, []):
            emit(t)
        ids = []
        for rg in m.reads:
            assert rg.ids is not None, "read not issued before use at mfma %d" % i
            ids += rg.ids
        st.need(ids)
        st.raw(m.text)
        if i in shadow:
            for t in shadow[i]:
                emit(t)
        if i in barrier_at:
            if barrier_at[i] not in virtual and not ("N" in cfg.dbg and barrier_at[i] in (10, 11, 12, 13, 14, 15, 17, 18, 19, 20, 21)):
                if not cfg.nodrain:
                    st.drain()
                st.raw("s_barrier")
            if i not in upd_done:
                for t in addr_update(barrier_at[i]):
                    st.raw(t)
        elif i not in shadow:
            ids = []
            for j in range(i + 1, min(n, i + 3)):
                for rg in mfs[j].reads:
                    if rg.ids is not None and (j == i + 1 or j - 1 in shadow or rd_gap[id(rg)] <= i - cfg.WL):
                        ids += rg.ids
            st.need(ids)
        for rg in rd_at.get(i, []):
            rg.ids = [st.ds(t) for t in rg.texts]
        for t in gaps.get(i, []):
            emit(t)


def kv_items(cfg):
    k = cfg.skew
    items = [("K", t) for t in range(k)]
    for t in range(k, 16):
        items += [("K", t), ("V", t - k)]
    items += [("V", t) for t in range(16 - k, 16)]
    return items


def softmax_ops(t, sub_first, nb):
    S, P, lt = SB[t % nb], PB[t % nb], LT[t & 1]
    e = lambda i: ET + (i % 8)
    out = []
    for i in range(16):
        if sub_first:
            out.append("v_add_f32 v%d, v%d, v%d" % (S + i, NEGM, S + i))
        out.append("v_exp_f32 v%d, v%d" % (e(i), S + i))
        j = i - 1
        if j >= 1:
            out.append("v_add_f32 v%d, v%d, v%d" % (lt, e(j), e(0) if j == 1 else lt))
            if j & 1:
                out.append("v_cvt_pk_bf16_f32 v%d, v%d, v%d" % (P + j // 2, e(j - 1), e(j)))
    out.append("v_add_f32 v%d, v%d, v%d" % (lt, e(15), lt))
    out.append("v_cvt_pk_bf16_f32 v%d, v%d, v%d" % (P + 7, e(14), e(15)))
    return out


def rare_path(t, nb, live_s, pend_p):
    S = SB[t % nb]
    L = ["L_rare%d:" % t, "s_nop 15", "s_nop 3"]
    L.append("v_max3_f32 v%d, v%d, v%d, v%d" % (V_T0, S, S + 1, S + 2))
    for i in range(3, 15, 2):
        L.append("v_max3_f32 v%d, v%d, v%d, v%d" % (V_T0, V_T0, S + i, S + i + 1))
    L.append("v_max3_f32 v%d, v%d, v%d, 0" % (V_T0, V_T0, S + 15))
    L.append("v_mov_b32 v%d, v%d" % (V_T1, V_T0))
    L.append("s_nop 1")
    L.append("v_permlane32_swap_b32 v%d, v%d" % (V_T0, V_T1))
    L.append("v_max_f32 v%d, v%d, v%d" % (V_T0, V_T0, V_T1))
    L.append("v_ceil_f32 v%d, v%d" % (V_T0, V_T0))
    L.append("v_sub_f32 v%d, 0, v%d" % (V_T1, V_T0))
    L.append("v_exp_f32 v%d, v%d" % (V_T1, V_T1))
    for i in range(16):
        L.append("v_sub_f32 v%d, v%d, v%d" % (NEGM + i, NEGM + i, V_T0))
        for u in [t] + live_s:
            L.append("v_sub_f32 v%d, v%d, v%d" % (SB[u % nb] + i, SB[u % nb] + i, V_T0))
    L.append("v_mul_f32 v%d, v%d, v%d" % (V_L, V_L, V_T1))
    for i in range(64):
        L.append("v_mul_f32 v%d, v%d, v%d" % (ACC + i, ACC + i, V_T1))
    for u in pend_p:
        for i in range(8):
            p = PB[u % nb] + i
            L += ["v_lshlrev_b32 v%d, 16, v%d" % (ET, p), "v_and_b32 v%d, 0xffff0000, v%d" % (ET + 1, p),
                  "v_mul_f32 v%d, v%d, v%d" % (ET, ET, V_T1), "v_mul_f32 v%d, v%d, v%d" % (ET + 1, ET + 1, V_T1),
                  "v_cvt_pk_bf16_f32 v%d, v%d, v%d" % (p, ET, ET + 1)]
    L += softmax_ops(t, False, nb)
    L.append("s_nop 1")
    L.append("s_branch L_back%d" % t)
    return L


S_EP = 80
EPOCH = f"""
s_waitcnt lgkmcnt(0)
s_mul_i32 s{S_EP+2}, s{S_EP+2}, 1664525
s_add_u32 s{S_EP+2}, s{S_EP+2}, 1013904223
"""
EPOCH_NEXT = f"""s_or_b32 s{S_T0}, s{S_HP}, s{S_W}
s_cmp_lg_u32 s{S_T0}, 0
s_cbranch_scc1 L_noep
v_mov_b32 v12, 0
global_store_dword v12, v6, s[{S_EP}:{S_EP+1}]
L_noep:
"""
H_FL, H_TAG, H_PL, H_RD, H_OUT = 1, 6, 4, 5, 2


S_OWN = 94


def flag_addr(cfg):
    o = f"""
v_and_b32 v12, 63, v0
s_lshl_b32 s{S_T1}, s{S_W}, 11
s_lshl_b32 s{S_T2}, s{S_HP}, 3
s_add_u32 s{S_T1}, s{S_T1}, s{S_T2}
v_lshlrev_b32 v13, 9, v12
v_add_u32 v13, s{S_T1}, v13
v_mov_b32 v14, 0x7fff0000
v_cmp_gt_u32 vcc, 4, v12
v_mov_b32 v{H_TAG}, s{S_EP+2}
s_lshl_b32 s{S_T1}, s{S_W}, 2
v_cndmask_b32 v{H_FL}, v14, v13, vcc
v_not_b32 v{H_TAG+1}, v{H_TAG}
v_mov_b32 v2, s{S_T1}
"""
    if cfg.own:
        o += f"""
s_lshr_b32 s{S_T1}, s{S_HP}, 2
s_bfe_u32 s{S_OWN}, s{S_HP}, 0x10001
s_cmp_eq_u32 s{S_T1}, s{S_W}|s_cselect_b32 s{S_OWN}, s{S_OWN}, 2
v_bfe_u32 v13, v12, 4, 1
s_and_b32 s{S_T1}, s{S_HP}, 1
v_cmp_eq_u32 vcc, s{S_T1}, v13
s_cmp_eq_u32 s{S_OWN}, 0|s_cselect_b64 s[96:97], vcc, 0
s_cmp_eq_u32 s{S_OWN}, 1|s_cselect_b64 vcc, vcc, 0
v_cndmask_b32 v4, v{V_ST}, v14, s[96:97]
v_cndmask_b32 v5, v{V_ST}, v14, vcc
"""
    return [l.strip().replace("|", "\n") for l in o.strip().split("\n") if l.strip()]


def handoff_addr(i, mode):
    o = f"""
v_and_b32 v12, 63, v0
s_lshl_b32 s{S_T1}, s{S_W}, 11
s_lshl_b32 s{S_T2}, s{S_HP}, 3
s_add_u32 s{S_T1}, s{S_T1}, s{S_T2}
v_lshlrev_b32 v13, 9, v12
v_add_u32 v13, s{S_T1}, v13
v_mov_b32 v14, 0x7fff0000
v_cmp_gt_u32 vcc, 4, v12
v_mov_b32 v{H_TAG}, s{S_EP+2}
s_lshl_b32 s{S_T1}, s{S_HP}, 9
v_cndmask_b32 v{H_FL}, v14, v13, vcc
v_not_b32 v{H_TAG+1}, v{H_TAG}
v_and_b32 v13, 15, v12
v_lshlrev_b32 v14, 3, v13
v_add_u32 v{H_PL}, s{S_T1}, v14
s_lshr_b32 s{S_T1}, s{S_HP}, 1
s_lshl_b32 s{S_T1}, s{S_T1}, 11
s_and_b32 s{S_T2}, s{S_HP}, 1
s_lshl_b32 s{S_T2}, s{S_T2}, 8
s_add_u32 s{S_T1}, s{S_T1}, s{S_T2}
v_lshrrev_b32 v14, 4, v12
"""
    if mode == "q":
        o += f"""
s_lshl_b32 s{S_T2}, s{S_W}, 6
s_add_u32 s{S_T1}, s{S_T1}, s{S_T2}
v_lshlrev_b32 v15, 9, v14
v_lshl_add_u32 v15, v13, 2, v15
v_add_u32 v{H_RD}, s{S_T1}, v15
v_lshrrev_b32 v15, 2, v13
v_lshlrev_b32 v15, 11, v15
v_lshl_add_u32 v15, v14, 4, v15
v_and_b32 v13, 3, v13
v_lshl_add_u32 v15, v13, 2, v15
s_lshl_b32 s{S_T2}, s{S_W}, 13
"""
    else:
        o += f"""
v_lshlrev_b32 v15, 9, v14
v_lshl_add_u32 v15, v13, 4, v15
v_add_u32 v{H_RD}, s{S_T1}, v15
v_lshlrev_b32 v15, 11, v13
v_lshl_add_u32 v15, v14, 4, v15
s_mov_b32 s{S_T2}, 0
"""
    o += f"""
s_and_b32 s{S_T1}, s{S_HP}, 3
s_lshl_b32 s{S_T1}, s{S_T1}, 15
s_add_u32 s{S_T2}, s{S_T2}, s{S_T1}
s_lshr_b32 s{S_T1}, s{S_HP}, 2
s_lshl_b32 s{S_T1}, s{S_T1}, 6
s_add_u32 s{S_T2}, s{S_T2}, s{S_T1}
v_add_u32 v{H_OUT}, s{S_T2}, v15
"""
    return [l.strip() for l in o.strip().split("\n") if l.strip()]


def reduce_code(cfg, i, mode, tag):
    nd = 1 if mode == "q" else 4
    B = 16
    if isinstance(i, int):
        o = f"s_mov_b32 s{S_T0}, {i}\n"
    else:
        o = f"s_mov_b32 s{S_T0}, {i}\n"
    o += f"""
s_lshl_b32 s{S_T1}, s{S_T0}, 7
s_mov_b32 s{S_CNT}, 0
L_poll_{tag}:
buffer_load_dwordx2 v[12:13], v{H_PL}, s[{S_IN}:{S_IN+3}], s{S_T1} offen sc1
s_add_u32 s{S_CNT}, s{S_CNT}, 1
s_cmp_gt_u32 s{S_CNT}, {cfg.spin}
s_cbranch_scc1 L_go_{tag}
{"s_sleep %d" % cfg.psleep if cfg.psleep and tag == "l" else ""}
s_waitcnt vmcnt(0)
v_cmp_ne_u64 vcc, v[12:13], v[{H_TAG}:{H_TAG+1}]
s_cbranch_vccnz L_poll_{tag}
L_go_{tag}:
{tstamp(cfg, 4)}
s_lshl_b32 s{S_T1}, s{S_T0}, 14
"""
    sfx = "dword" if nd == 1 else "dwordx4"
    for p in range(16):
        o += f"buffer_load_{sfx} {vr(B + nd*p, nd)}, v{H_RD}, s[{S_WS}:{S_WS+3}], s{S_T1} offen {cfg.red_pol}\n"
        if p < 15:
            o += f"s_add_u32 s{S_T1}, s{S_T1}, 0x10000\n"
    o += f"""
s_add_u32 s{S_T0}, s{S_T0}, s{S_B}
s_and_b32 s{S_T0}, s{S_T0}, 3
s_lshl_b32 s{S_T0}, s{S_T0}, 8
s_mov_b32 s{S_T2}, 0xffff0000
"""
    A = B + 16 * nd
    for p in range(16):
        o += f"s_waitcnt vmcnt({15-p})\n"
        for j in range(nd):
            r = B + nd * p + j
            if p == 0:
                o += f"v_lshlrev_b32 v{A+2*j}, 16, v{r}\nv_and_b32 v{A+2*j+1}, s{S_T2}, v{r}\n"
            else:
                o += f"v_lshlrev_b32 v12, 16, v{r}\nv_and_b32 v13, s{S_T2}, v{r}\nv_add_f32 v{A+2*j}, v12, v{A+2*j}\nv_add_f32 v{A+2*j+1}, v13, v{A+2*j+1}\n"
    o += tstamp(cfg, 5) + "\n"
    for j in range(nd):
        o += f"v_cvt_pk_bf16_f32 v{12+j}, v{A+2*j}, v{A+2*j+1}\n"
    o += f"buffer_store_{sfx} {vr(12, nd)}, v{H_OUT}, s[{S_OUT}:{S_OUT+3}], s{S_T0} offen {cfg.out_pol}\n"
    return o


def reduce_dyn(cfg):
    B, A = 16, 80
    S_TODO, S_NOW = 94, 95
    poll = f"buffer_load_dwordx2 v[8:9], v3, s[{S_IN}:{S_IN+3}], 0 offen {cfg.ppol}\n"
    o = f"""s_mov_b32 s{S_T2}, 0xffff0000
s_mov_b32 s{S_TODO}, 15
s_mov_b32 s{S_CNT}, 0
{poll}s_waitcnt vmcnt(0)
L_dyn:
v_cmp_ne_u64 vcc, v[8:9], v[{H_TAG}:{H_TAG+1}]
s_add_u32 s{S_CNT}, s{S_CNT}, 1
s_cmp_gt_u32 s{S_CNT}, {cfg.spin}
s_cselect_b64 vcc, 0, vcc
s_mov_b32 s{S_NOW}, 0
"""
    for i in range(4):
        half = "vcc_lo" if i < 2 else "vcc_hi"
        o += f"""s_bitcmp1_b32 s{S_TODO}, {i}
s_cbranch_scc0 L_dn{i}
s_bfe_u32 s{S_T0}, {half}, {hex(0x100000 + 16*(i & 1))}
s_cbranch_scc1 L_dn{i}
s_bitset1_b32 s{S_NOW}, {i}
{tstamp(cfg, (4, 0, 1, 2)[i])}
s_mov_b32 s{S_T1}, {i*16384}
{"s_waitcnt vmcnt(46)" if i == 3 else ""}
"""
        for p in range(16):
            o += f"buffer_load_dword v{B+16*i+p}, v{H_RD}, s[{S_WS}:{S_WS+3}], s{S_T1} offen {cfg.red_pol}\n"
            if p < 15:
                o += f"s_add_u32 s{S_T1}, s{S_T1}, 0x10000\n"
        o += f"L_dn{i}:\n"
    o += f"""s_andn2_b32 s{S_TODO}, s{S_TODO}, s{S_NOW}
s_cbranch_scc0 L_dnp
{poll}L_dnp:
s_waitcnt vmcnt(0)
"""
    for i in range(4):
        o += f"s_bitcmp1_b32 s{S_NOW}, {i}\ns_cbranch_scc0 L_ds{i}\n"
        o += f"s_add_u32 s{S_T0}, s{S_B}, {i}\ns_and_b32 s{S_T0}, s{S_T0}, 3\ns_lshl_b32 s{S_T0}, s{S_T0}, 8\n"
        r = B + 16 * i
        o += f"v_lshlrev_b32 v{A}, 16, v{r}\nv_and_b32 v{A+1}, s{S_T2}, v{r}\n"
        for p in range(1, 16):
            o += f"v_lshlrev_b32 v12, 16, v{r+p}\nv_and_b32 v13, s{S_T2}, v{r+p}\nv_add_f32 v{A}, v12, v{A}\nv_add_f32 v{A+1}, v13, v{A+1}\n"
        o += f"v_cvt_pk_bf16_f32 v{A+2+i}, v{A}, v{A+1}\n"
        o += f"buffer_store_dword v{A+2+i}, v{H_OUT}, s[{S_OUT}:{S_OUT+3}], s{S_T0} offen {cfg.out_pol}\nL_ds{i}:\n"
    o += f"""s_cmp_lg_u32 s{S_TODO}, 0
s_cbranch_scc1 L_dyn
{tstamp(cfg, 5)}
"""
    o += EPOCH_NEXT
    return o


def reduce_loop(cfg):
    B, A = 16, 32
    S_I, S_DRY, S_PO, S_RO, S_OO = 50, 51, 52, 53, 54
    poll = f"buffer_load_dwordx2 v[8:9], v{H_PL}, s[{S_IN}:{S_IN+3}], s{S_PO} offen {cfg.ppol}\n"
    o = f"""s_mov_b32 s{S_T2}, 0xffff0000
s_mul_i32 s{S_T0}, s{S_W}, {SLOT}
s_add_u32 s{S_T0}, s{S_T0}, {AUX}
v_mov_b32 v11, s{S_T0}
s_mov_b32 s{S_I}, 0
s_mov_b32 s{S_PO}, 0
s_mov_b32 s{S_DRY}, {1 if cfg.dry else 0}
s_cmp_eq_u32 s{S_DRY}, 1
s_cbranch_scc1 L_rl_go
L_rl_start:
s_mov_b32 s{S_CNT}, 0
L_rl_wait:
ds_read_b32 v12, v11
s_add_u32 s{S_CNT}, s{S_CNT}, 1
s_cmp_gt_u32 s{S_CNT}, {cfg.spin}
s_cbranch_scc1 L_rl_on
s_sleep 1
s_waitcnt lgkmcnt(0)
v_cmp_ne_u32 vcc, v12, v{H_TAG}
s_cbranch_vccnz L_rl_wait
L_rl_on:
{tstamp(cfg, 3)}
{poll}s_waitcnt vmcnt(0)
L_rl_row:
s_mov_b32 s{S_CNT}, 0
L_rl_spin:
v_cmp_ne_u64 vcc, v[8:9], v[{H_TAG}:{H_TAG+1}]
s_cbranch_vccz L_rl_go
{poll}s_add_u32 s{S_CNT}, s{S_CNT}, 1
s_cmp_lt_u32 s{S_CNT}, {cfg.spin}
s_waitcnt vmcnt(0)
s_cbranch_scc1 L_rl_spin
L_rl_go:
s_lshl_b32 s{S_RO}, s{S_I}, 14
s_add_u32 s{S_OO}, s{S_B}, s{S_I}
s_and_b32 s{S_OO}, s{S_OO}, 3
s_lshl_b32 s{S_OO}, s{S_OO}, 8
s_cmp_eq_u32 s{S_DRY}, 1
s_cbranch_scc1 L_rl_sum
"""
    for p in range(16):
        o += f"buffer_load_dword v{B+p}, v{H_RD}, s[{S_WS}:{S_WS+3}], s{S_RO} offen {cfg.red_pol}\n"
        if p < 15:
            o += f"s_add_u32 s{S_RO}, s{S_RO}, 0x10000\n"
    o += f"s_add_u32 s{S_PO}, s{S_PO}, 128\ns_min_u32 s{S_PO}, s{S_PO}, 384\n{poll}L_rl_sum:\n"
    for p in range(16):
        o += f"s_waitcnt vmcnt({16-p})\n"
        q = B + p
        if p == 0:
            o += f"v_lshlrev_b32 v{A}, 16, v{q}\nv_and_b32 v{A+1}, s{S_T2}, v{q}\n"
        else:
            o += f"v_lshlrev_b32 v12, 16, v{q}\nv_and_b32 v13, s{S_T2}, v{q}\nv_add_f32 v{A}, v12, v{A}\nv_add_f32 v{A+1}, v13, v{A+1}\n"
    o += f"""v_cvt_pk_bf16_f32 v12, v{A}, v{A+1}
s_cmp_eq_u32 s{S_DRY}, 1
s_mov_b32 s{S_DRY}, 0
s_cbranch_scc1 L_rl_start
buffer_store_dword v12, v{H_OUT}, s[{S_OUT}:{S_OUT+3}], s{S_OO} offen {cfg.out_pol}
s_add_u32 s{S_I}, s{S_I}, 1
s_cmp_lt_u32 s{S_I}, 4
s_waitcnt vmcnt(1)
s_cbranch_scc1 L_rl_row
{tstamp(cfg, 5)}
"""
    o += EPOCH_NEXT
    return o


def reduce_x4(cfg):
    B, A = 16, 80
    VO = 88
    rounds = [[int(ch) for ch in r] for r in cfg.rounds.split(",")]
    poll = lambda r: f"buffer_load_dwordx2 v[8:9], v{H_PL if len(r) == 1 else 3}, s[{S_IN}:{S_IN+3}], 0 offen offset:{128*r[0]} {cfg.ppol}\n"
    o = f"""s_mov_b32 s{S_T2}, 0xffff0000
v_and_b32 v12, 15, v10
v_lshrrev_b32 v13, 4, v10
s_lshr_b32 s{S_T0}, s{S_HP}, 1
s_lshl_b32 s{S_T0}, s{S_T0}, 11
s_and_b32 s{S_T1}, s{S_HP}, 1
s_lshl_b32 s{S_T1}, s{S_T1}, 8
s_add_u32 s{S_T0}, s{S_T0}, s{S_T1}
s_lshl_b32 s{S_T1}, s{S_W}, 9
s_add_u32 s{S_T0}, s{S_T0}, s{S_T1}
v_lshlrev_b32 v14, 4, v12
v_add_u32 v14, s{S_T0}, v14
s_add_u32 s{S_T1}, s{S_HP}, 1
v_add_u32 v15, s{S_T1}, v13
"""
    for k in range(4):
        o += f"v_and_b32 v{VO+k}, 15, v15\nv_lshl_add_u32 v{VO+k}, v{VO+k}, 16, v14\nv_add_u32 v15, 4, v15\n"
    o += f"""s_lshr_b32 s{S_T0}, s{S_HP}, 2
s_lshl_b32 s{S_T1}, s{S_T0}, 2
v_mov_b32 v11, s{S_T1}
s_mul_i32 s{S_T1}, s{S_T0}, {SLOT}
s_add_u32 s{S_T1}, s{S_T1}, {AUX}
v_and_b32 v14, 0x7ff, v14
v_add_u32 v14, s{S_T1}, v14
s_lshl_b32 s{S_T0}, s{S_T0}, 6
s_and_b32 s{S_T1}, s{S_HP}, 3
s_lshl_b32 s{S_T1}, s{S_T1}, 15
s_add_u32 s{S_T0}, s{S_T0}, s{S_T1}
s_lshl_b32 s{S_T1}, s{S_W}, 4
s_add_u32 s{S_T0}, s{S_T0}, s{S_T1}
v_lshlrev_b32 v12, 11, v12
v_lshl_add_u32 v12, v13, 2, v12
v_add_u32 v{H_OUT}, s{S_T0}, v12
s_mov_b32 s{S_CNT}, 0
L_go_a:
ds_read_b32 v12, v11
s_add_u32 s{S_CNT}, s{S_CNT}, 1
s_cmp_gt_u32 s{S_CNT}, {cfg.spin}
s_cbranch_scc1 L_gone_a
s_sleep 1
s_waitcnt lgkmcnt(0)
v_cmp_ne_u32 vcc, v12, v{H_TAG}
s_cbranch_vccnz L_go_a
L_gone_a:
{tstamp(cfg, 3)}
"""
    o += poll(rounds[0]) + "s_waitcnt vmcnt(0)\n"
    for n, r in enumerate(rounds):
        o += f"""s_mov_b32 s{S_CNT}, 0
L_sp{n}:
v_cmp_ne_u64 vcc, v[8:9], v[{H_TAG}:{H_TAG+1}]
s_cbranch_vccz L_sg{n}
{poll(r)}s_add_u32 s{S_CNT}, s{S_CNT}, 1
s_cmp_lt_u32 s{S_CNT}, {cfg.spin}
s_waitcnt vmcnt(0)
s_cbranch_scc1 L_sp{n}
L_sg{n}:
"""
        for i in r:
            o += tstamp(cfg, (4, 0, 1, 2)[i]) + f"\ns_mov_b32 s{S_T1}, {i*16384}\n"
            for k in range(4):
                d = B + 16 * i + 4 * k
                if k == 3:
                    o += "s_mov_b32 exec_hi, 0x0000ffff\n"
                o += f"buffer_load_dwordx4 v[{d}:{d+3}], v{VO+k}, s[{S_WS}:{S_WS+3}], s{S_T1} offen {cfg.red_pol}\n"
            o += f"s_mov_b32 exec_lo, 0\ns_mov_b32 exec_hi, 0xffff0000\nds_read_b128 v[{d}:{d+3}], v14 offset:{i*2048}\ns_mov_b64 exec, -1\n"
        def total(r, left):
            o = ""
            for i in r:
                o += f"s_add_u32 s{50+i}, s{S_B}, {i}\ns_and_b32 s{50+i}, s{50+i}, 3\ns_lshl_b32 s{50+i}, s{50+i}, 8\n"
                for k in range(4):
                    if left is not None:
                        left -= 1
                        o += f"s_waitcnt vmcnt({left})" + (" lgkmcnt(0)\n" if k == 3 else "\n")
                    for j in range(4):
                        q = B + 16 * i + 4 * k + j
                        if k == 0:
                            o += f"v_lshlrev_b32 v{A+2*j}, 16, v{q}\nv_and_b32 v{A+2*j+1}, s{S_T2}, v{q}\n"
                        else:
                            o += f"v_lshlrev_b32 v12, 16, v{q}\nv_and_b32 v13, s{S_T2}, v{q}\nv_add_f32 v{A+2*j}, v12, v{A+2*j}\nv_add_f32 v{A+2*j+1}, v13, v{A+2*j+1}\n"
                o += "s_nop 1\n"
                for j in range(4):
                    o += f"v_permlane32_swap_b32 v{A+j}, v{A+j+4}\n"
                for j in range(4):
                    o += f"v_add_f32 v{A+j}, v{A+j}, v{A+j+4}\n"
                o += "s_nop 1\n"
                for j in range(2):
                    o += f"v_permlane16_swap_b32 v{A+j}, v{A+j+2}\n"
                for j in range(2):
                    o += f"v_add_f32 v{A+j}, v{A+j}, v{A+j+2}\n"
                o += f"v_cvt_pk_bf16_f32 v{92+i}, v{A}, v{A+1}\n"
            return o
        store = lambda r: "".join(f"buffer_store_dword v{92+i}, v{H_OUT}, s[{S_OUT}:{S_OUT+3}], s{50+i} offen {cfg.out_pol}\n" for i in r)
        last = n + 1 == len(rounds)
        if not last:
            o += poll(rounds[n + 1])
        if cfg.pipe:
            ns = 0
            if n:
                o += total(rounds[n - 1], None) + store(rounds[n - 1])
                ns = len(rounds[n - 1])
            if not last:
                o += f"s_waitcnt vmcnt({ns}) lgkmcnt(0)\n"
            else:
                o += total(r, 4 * len(r) + ns) + tstamp(cfg, 5) + "\n" + store(r)
        else:
            o += total(r, 4 * len(r) + (0 if last else 1))
            o += (tstamp(cfg, 5) + "\n") if last else "s_waitcnt vmcnt(0)\n"
            o += store(r)
    o += EPOCH_NEXT
    return o


def reduce_seq(cfg):
    B, A = 16, 80
    rounds = [[int(ch) for ch in r] for r in cfg.rounds.split(",")]
    o = f"s_mov_b32 s{S_T2}, 0xffff0000\n"
    poll = lambda r: f"buffer_load_dwordx2 v[8:9], v{H_PL if len(r) == 1 else 3}, s[{S_IN}:{S_IN+3}], 0 offen offset:{128*r[0]} {cfg.ppol}\n"
    go = f"""s_mov_b32 s{S_CNT}, 0
L_go_%s:
ds_read_b32 v12, v11
s_add_u32 s{S_CNT}, s{S_CNT}, 1
s_cmp_gt_u32 s{S_CNT}, {cfg.spin}
s_cbranch_scc1 L_gone_%s
s_sleep 1
s_waitcnt lgkmcnt(0)
v_cmp_ne_u32 vcc, v12, v{H_TAG}
s_cbranch_vccnz L_go_%s
L_gone_%s:
"""
    if cfg.ldsgo:
        o += f"s_lshr_b32 s{S_T0}, s{S_HP}, 2\ns_lshl_b32 s{S_T1}, s{S_T0}, 2\nv_mov_b32 v11, s{S_T1}\n"
        if cfg.own:
            o += f"s_mul_i32 s{S_T0}, s{S_T0}, {SLOT}\ns_add_u32 s{S_T0}, s{S_T0}, {AUX}\nv_and_b32 v14, 0x7ff, v{H_RD}\nv_add_u32 v14, s{S_T0}, v14\n"
    if cfg.early:
        if cfg.esleep:
            o += f"s_sleep {cfg.esleep}\n"
        o += poll(rounds[0]) + f"s_waitcnt vmcnt(0)\nv_cmp_ne_u64 vcc, v[8:9], v[{H_TAG}:{H_TAG+1}]\ns_mov_b32 s94, 1\ns_cbranch_vccz L_sg0\ns_mov_b32 s94, 0\n"
    if cfg.ldsgo:
        o += go % (("a",) * 4)
    o += tstamp(cfg, 3) + "\n"
    o += poll(rounds[0]) + "s_waitcnt vmcnt(0)\n"
    for n, r in enumerate(rounds):
        o += f"""s_mov_b32 s{S_CNT}, 0
L_sp{n}:
v_cmp_ne_u64 vcc, v[8:9], v[{H_TAG}:{H_TAG+1}]
s_cbranch_vccz L_sg{n}
{poll(r)}s_add_u32 s{S_CNT}, s{S_CNT}, 1
s_cmp_lt_u32 s{S_CNT}, {cfg.spin}
s_waitcnt vmcnt(0)
s_cbranch_scc1 L_sp{n}
L_sg{n}:
"""
        NP = 15 if cfg.own else 16
        for i in r:
            o += tstamp(cfg, (4, 0, 1, 2)[i]) + "\n"
            if cfg.own:
                o += f"ds_read_b32 v{B+16*i+15}, v14 offset:{i*2048}\ns_add_u32 s{S_T1}, s{S_HPO}, {i*16384}\n"
            else:
                o += f"s_mov_b32 s{S_T1}, {i*16384}\n"
            for p in range(NP):
                if cfg.own:
                    o += f"s_add_u32 s{S_T1}, s{S_T1}, 0x10000\ns_and_b32 s{S_T1}, s{S_T1}, 0xfffff\n"
                o += f"buffer_load_dword v{B+16*i+p}, v{H_RD}, s[{S_WS}:{S_WS+3}], s{S_T1} offen {cfg.red_pol}\n"
                if p < 15 and not cfg.own:
                    o += f"s_add_u32 s{S_T1}, s{S_T1}, 0x10000\n"
        k = 0
        if n + 1 < len(rounds):
            if cfg.early and n == 0:
                o += "s_cmp_eq_u32 s94, 1\ns_cbranch_scc1 L_e_nopoll\n" + poll(rounds[n + 1]) + "L_e_nopoll:\n"
            else:
                o += poll(rounds[n + 1])
                k = 1
        left = NP * len(r) + k
        for i in r:
            o += f"s_add_u32 s{S_T0}, s{S_B}, {i}\ns_and_b32 s{S_T0}, s{S_T0}, 3\ns_lshl_b32 s{S_T0}, s{S_T0}, 8\n"
            for p in ([15] + list(range(15)) if cfg.own else range(16)):
                if cfg.own and p == 15:
                    o += "s_waitcnt lgkmcnt(0)\n"
                else:
                    left -= 1
                    o += f"s_waitcnt vmcnt({left})\n"
                q = B + 16 * i + p
                if p == (15 if cfg.own else 0):
                    o += f"v_lshlrev_b32 v{A}, 16, v{q}\nv_and_b32 v{A+1}, s{S_T2}, v{q}\n"
                else:
                    o += f"v_lshlrev_b32 v12, 16, v{q}\nv_and_b32 v13, s{S_T2}, v{q}\nv_add_f32 v{A}, v12, v{A}\nv_add_f32 v{A+1}, v13, v{A+1}\n"
            o += f"v_cvt_pk_bf16_f32 v{A+2+i}, v{A}, v{A+1}\ns_mov_b32 s{50+i}, s{S_T0}\n"
        if n + 1 < len(rounds):
            o += "s_waitcnt vmcnt(0)\n"
        else:
            o += tstamp(cfg, 5) + "\n"
        for i in r:
            o += f"buffer_store_dword v{A+2+i}, v{H_OUT}, s[{S_OUT}:{S_OUT+3}], s{50+i} offen {cfg.out_pol}\n"
        if cfg.early and n == 0:
            o += "s_cmp_eq_u32 s94, 0\ns_cbranch_scc1 L_e_late\n" + go % (("b",) * 4) + poll(rounds[1]) + "s_waitcnt vmcnt(0)\nL_e_late:\n"
    o += EPOCH_NEXT
    return o


REG = re.compile(r"v\[(\d+):(\d+)\]|v(\d+)")


def regs_of(tok):
    m = REG.fullmatch(tok.strip().lstrip("-"))
    if not m:
        return set()
    if m.group(3):
        return {int(m.group(3))}
    return set(range(int(m.group(1)), int(m.group(2)) + 1))


def parse(line):
    l = line.split(";")[0].strip()
    if not l or l.endswith(":") or l.startswith("."):
        return None
    op, _, rest = l.partition(" ")
    toks = [t.strip() for t in rest.split(",")] if rest else []
    toks = [t.split(" ")[0] for t in toks]
    rd, wr = set(), set()
    if op.startswith("v_cmp"):
        for t in toks[1:]:
            rd |= regs_of(t)
    elif op.startswith("v_permlane"):
        rd = wr = regs_of(toks[0]) | regs_of(toks[1])
    elif op.startswith(("v_readfirstlane", "v_readlane")):
        rd = regs_of(toks[1])
    elif op.startswith("v_"):
        wr = regs_of(toks[0])
        for t in toks[1:]:
            rd |= regs_of(t)
        if op.startswith(("v_fmac", "v_writelane")):
            rd |= wr
    elif op.startswith("ds_read"):
        wr = regs_of(toks[0]); rd = regs_of(toks[1])
    elif op.startswith("ds_write"):
        rd = regs_of(toks[0]) | regs_of(toks[1])
    elif op.startswith(("buffer_store", "buffer_atomic", "global_store", "global_atomic")):
        for t in toks:
            rd |= regs_of(t)
    elif op.startswith(("buffer_load", "global_load")):
        if "lds" in l.split():
            rd = regs_of(toks[0])
        else:
            wr = regs_of(toks[0]); rd = regs_of(toks[1])
    return op, rd, wr, toks


def fix_hazards(lines):
    out = []
    hist = []
    t = 0
    last_mf = -100
    for line in lines:
        p = parse(line)
        if p is None:
            out.append(line)
            continue
        op, rd, wr, toks = p
        is_mf = op.startswith("v_mfma")
        is_valu = op.startswith("v_") and not is_mf
        is_mem = op.startswith(("ds_", "buffer_", "global_"))
        need = 0
        tt = max(t, last_mf + 8) if is_mf else t
        dist = 0
        for (o2, r2, w2, k2, st2, t2) in reversed(hist[-40:]):
            m2 = o2.startswith("v_mfma")
            v2 = o2.startswith("v_") and not m2
            req = 0
            d = dist
            if v2 and o2.startswith(("v_exp", "v_rcp", "v_log", "v_rsq")) and is_valu and not op.startswith(("v_exp", "v_rcp")) and (w2 & rd):
                req = 1
            if v2 and is_mf and (w2 & rd):
                req = 2
            if v2 and op.startswith("v_permlane") and (w2 & rd):
                req = 2
            if v2 and op.startswith(("v_readfirstlane", "v_readlane")) and (w2 & rd):
                req = 1
            if o2.startswith(("buffer_store_dwordx4", "global_store_dwordx4")) and is_valu and (regs_of(k2[0] if o2.startswith("buffer") else k2[1]) & wr):
                req = 2
            if m2 and (is_valu or is_mem) and (w2 & (rd | wr)):
                req = 12
                d = tt - t2 - 1
            if m2 and is_mf and (w2 & (regs_of(toks[1]) | regs_of(toks[2]))):
                req = 12
                d = tt - t2 - 1
            if m2 and is_mf and (w2 & regs_of(toks[3])) and regs_of(toks[3]) != w2:
                req = 10
                d = tt - t2 - 1
            if m2 and is_valu and (regs_of(k2[3]) & wr):
                req = max(req, 7)
                d = tt - t2 - 1
            if req > d:
                need = max(need, req - d)
            dist += st2
        while need > 0:
            k = min(need, 16)
            out.append("  s_nop %d" % (k - 1))
            hist.append(("s_nop", set(), set(), [], k, t))
            t += k
            need -= k
        tt = max(t, last_mf + 8) if is_mf else t
        st_ = int(toks[0]) + 1 if op == "s_nop" else 1
        hist.append((op, rd, wr, toks, st_, tt))
        t = tt + st_
        if is_mf:
            last_mf = tt
        out.append(line)
    return out


TS = [4, 8, 10, 64, 66, 68, 70, 72, 96, 98]


def tstamp(cfg, k):
    return f"s_memrealtime s[{TS[k]}:{TS[k]+1}]" if cfg.tst else ""


def tst_end(cfg, base):
    o = f"""s_waitcnt vmcnt(0)
{tstamp(cfg, 7)}
s_lshl_b32 s14, s2, 3
s_add_u32 s14, s14, s{S_W}
s_add_u32 s14, s14, {base}
s_lshl_b32 s14, s14, 6
s_add_u32 s14, s14, 0x2300000
s_add_u32 s12, s74, s14
s_addc_u32 s13, s75, 0
s_waitcnt lgkmcnt(0)
v_mov_b32 v14, 0
"""
    for k in range(8):
        o += f"v_mov_b32 v{16+k}, s{TS[k]}\n"
    o += f"""v_mov_b32 v24, s60
v_mov_b32 v25, s{S_CNT}
global_store_dwordx4 v14, v[16:19], s[12:13]
global_store_dwordx4 v14, v[20:23], s[12:13] offset:16
v_mov_b32 v26, s96
v_mov_b32 v27, s98
global_store_dwordx4 v14, v[24:27], s[12:13] offset:32
"""
    return o


def span_end(cfg, base):
    if not cfg.span:
        return ""
    return f"""s_waitcnt vmcnt(0)
s_memrealtime s[{S_STT}:{S_STT+1}]
s_lshl_b32 s14, s2, 3
s_add_u32 s14, s14, s{S_W}
s_lshl_b32 s14, s14, 3
s_add_u32 s14, s14, {0x2200000 + base*8}
s_add_u32 s12, s74, s14
s_addc_u32 s13, s75, 0
s_waitcnt lgkmcnt(0)
v_mov_b32 v12, s60
v_mov_b32 v13, s{S_STT}
v_mov_b32 v14, 0
global_store_dwordx2 v14, v[12:13], s[12:13]
"""


def gen_compute(cfg):
    st = Stream()
    R = st.raw
    R("""
L_compute:
v_and_b32 v%(ln)d, 63, v0
""" % dict(ln=V_T0))
    ln = V_T0
    t1 = V_T1
    R("s_waitcnt lgkmcnt(0)")
    R(rest_setup())
    if cfg.tlb:
        R(f"""s_load_dword s96, s[{S_K}:{S_K+1}], 0
s_load_dword s96, s[{S_V}:{S_V+1}], 0
s_load_dword s96, s[{S_WO}:{S_WO+1}], 0
s_load_dword s96, s[{S_WS}:{S_WS+1}], s{S_HPO}
s_load_dword s96, s[{S_OUT}:{S_OUT+1}], 0""")
    if cfg.codepf == 2:
        R(f"""
s_getpc_b64 s[94:95]
s_lshr_b32 s{S_T0}, s2, 3
s_lshl_b32 s{S_T0}, s{S_T0}, 2
s_add_u32 s{S_T0}, s{S_T0}, s{S_W}
s_lshl_b32 s{S_T0}, s{S_T0}, 7
s_load_dword s96, s[94:95], s{S_T0}
s_lshr_b32 s{S_T0}, s{S_T0}, 2
s_add_u32 s{S_T0}, s{S_T0}, 0x4000
s_load_dword s97, s[94:95], s{S_T0}
""")
    if cfg.codepf == 1:
        R("""
s_getpc_b64 s[%d:%d]
s_sub_u32 s44, s44, 0x1800
s_subb_u32 s45, s45, 0
v_lshlrev_b32 v16, 7, v0
v_min_u32 v16, CODE_BYTES, v16
global_load_dword v255, v16, s[%d:%d]
""" % (S_T0, S_T0 + 1, S_T0, S_T0 + 1))
    R(f"""
v_lshrrev_b32 v18, 5, v{ln}              ; h
v_bfe_u32 v19, v{ln}, 2, 2
v_xor_b32 v20, v18, v19                  ; h^g
v_lshlrev_b32 v20, 4, v20
v_and_b32 v21, 3, v{ln}
v_lshl_add_u32 v20, v21, 6, v20          ; (key&3)*64 + (h^g)*16
v_bfe_u32 v22, v{ln}, 2, 3               ; key>>2
v_lshl_add_u32 v{V_KL}, v22, 10, v20
v_bfe_u32 v22, v{ln}, 3, 2               ; tok>>3
v_lshl_add_u32 v23, v22, 10, v20
v_bfe_u32 v22, v{ln}, 2, 1
v_lshl_add_u32 v23, v22, 8, v23
s_and_b32 s{S_T0}, s{S_W}, 1
s_lshl_b32 s{S_T0}, s{S_T0}, 12
s_add_u32 s{S_T0}, s{S_T0}, {AUX}
v_add_u32 v{V_XL}, s{S_T0}, v23
v_bfe_u32 v22, v{ln}, 4, 1               ; G&1
v_lshlrev_b32 v22, 5, v22
v_lshl_add_u32 v22, v19, 6, v22          ; r*64 + (G&1)*32
v_lshl_add_u32 v23, v21, 3, v22          ; + c4*8
v_lshl_add_u32 v{V_VL}, v18, 10, v23
v_and_b32 v23, 1, v21
v_lshrrev_b32 v24, 1, v21
v_lshl_add_u32 v23, v23, 1, v24          ; bitswap(c4)
v_lshl_add_u32 v23, v23, 3, v22
s_lshr_b32 s{S_T0}, s{S_W}, 1
s_lshl_b32 s{S_T0}, s{S_T0}, 14
v_lshl_add_u32 v24, v18, 11, v23
v_add_u32 v{V_WQL}, s{S_T0}, v24
s_lshl_b32 s{S_T0}, s{S_W}, 8
v_lshl_add_u32 v24, v18, 10, v23
v_add_u32 v{V_WOL}, s{S_T0}, v24
s_mul_i32 s{S_T0}, s{S_W}, {SLOT}
s_add_u32 s{S_T0}, s{S_T0}, {AUX}
v_lshlrev_b32 v24, 4, v{ln}
v_add_u32 v{V_OW}, s{S_T0}, v24
{f"s_lshr_b32 s{S_T0}, s{S_B}, 2" if cfg.khrot else f"s_mov_b32 s{S_T0}, 0"}            ; first head
s_mul_i32 s{S_T0}, s{S_T0}, {2*SLOT}
s_add_u32 s{S_T0}, s{S_T0}, {AUX}
v_add_u32 v{V_OR}, s{S_T0}, v24          ; O read (first head, th=0)
s_lshl_b32 s{S_T0}, s{S_W}, 12
v_add_u32 v{V_ST}, s{S_T0}, v24          ; partial store voffset: w*4096 + lane*16
s_mov_b32 s{S_THR}, {hex(f2u(2.0**cfg.thr_log2 if not cfg.force_rare else 4.0))}
s_mov_b32 s{S_QS}, {hex(f2u(QSCALE))}
""")
    R(EPOCH)
    if cfg.prio:
        R(f"s_setprio {cfg.prio}")
    if cfg.itlb:
        R("%WARM%")
    stamp(st, cfg, 1)

    def addr_update(c):
        base = (c % 4) * SLOT
        if c < 8:
            return [f"v_add_u32 v{V_XA0}, {base}, v{V_XL}", f"v_add_u32 v{V_TA}, {base}, v{V_WQL}",
                    f"v_xor_b32 v{V_XA1}, 32, v{V_XA0}"]
        if c < 16:
            return [f"v_add_u32 v{V_XA0}, {base}, v{V_KL}", f"v_add_u32 v{V_TA}, {base}, v{V_VL}",
                    f"v_xor_b32 v{V_XA1}, 32, v{V_XA0}"]
        return [f"v_add_u32 v{V_TA}, {base}, v{V_WOL}"]

    fr_i = [0]

    def next_frag():
        f = FR + 4 * (fr_i[0] % 8)
        fr_i[0] += 1
        return f

    def tr_pair(f, off0, off1, chunk, lead=None):
        return RG([f"ds_read_b64_tr_b16 {vr(f,2)}, v{V_TA} offset:{off0}",
                   f"ds_read_b64_tr_b16 {vr(f+2,2)}, v{V_TA} offset:{off1}"], chunk, lead)

    mfs, wins, pre, shadow, bar = [], [], {}, {}, {}
    xi = 0
    for c in range(8):
        bar[len(mfs) - 1 - cfg.BL if c else -1] = c
        xr = []
        for s in range(4):
            xf = XF + 4 * (xi % 4)
            xi += 1
            xr.append((xf, RG([f"ds_read_b128 {vr(xf,4)}, v{V_XA0 + (s & 1)} offset:{(s >> 1) * 512}"], c, cfg.D1)))
        order = [(s, t) for s in range(4) for t in range(4)]
        if c == 7 and cfg.t1:
            order = [(s, t) for t in range(4) for s in range(4)]
        for s, t in order:
            f = next_frag()
            rg = tr_pair(f, (4 * s) * 1024 + t * 256, (4 * s + 1) * 1024 + t * 256, c, cfg.D1)
            cin = "0" if (c == 0 and s == 0) else ACC + 16 * t
            mfs.append(MF(mfma(ACC + 16 * t, f, xr[s][0], cin), [xr[s][1], rg], c))
    n1 = len(mfs)
    pre[n1] = [lambda: stamp(st, cfg, 2)] + (["s_waitcnt vmcnt(0)"] if cfg.codepf == 1 else [])
    for h in range(8):
        ops = [f"v_mul_f32 v{ACC+8*h+i}, s{S_QS}, v{ACC+8*h+i}" for i in range(8)]
        ops += [f"v_cvt_pk_bf16_f32 v{QR+4*h+i}, v{ACC+8*h+2*i}, v{ACC+8*h+2*i+1}" for i in range(4)]
        if cfg.t1:
            wins.append((ops, n1 - 16 + 4 * (h >> 1) + 5, n1 + h - 1))
        else:
            pre[n1] += ops
    items = kv_items(cfg)
    NB = cfg.skew + 1
    start = {}
    for q, (kind, t) in enumerate(items):
        c = 8 + (q >> 2)
        tb = (q & 3) * 8192
        if (q & 3) == 0:
            bar[len(mfs) - 1 - cfg.BL] = c
        start[(kind, t)] = len(mfs)
        if kind == "K":
            S = SB[t % NB]
            for s in range(8):
                f = next_frag()
                rg = RG([f"ds_read_b128 {vr(f,4)}, v{V_XA0 + (s & 1)} offset:{tb + (s >> 1) * 256}"], c, cfg.D2)
                cin = S if s else ("0" if t <= cfg.skew else NEGM)
                mfs.append(MF(mfma(S, f, QR + 4 * s, cin), [rg], c))
        else:
            order = [(u, d) for u in range(2) for d in range(4)]
            if t == 15 and cfg.t3:
                order = [(u, d) for d in range(4) for u in range(2)]
            for u, d in order:
                if True:
                    f = next_frag()
                    rg = tr_pair(f, tb + (4 * u) * 1024 + d * 256, tb + (4 * u + 2) * 1024 + d * 256, c, cfg.D2)
                    cin = "0" if (t == 0 and u == 0) else ACC + 16 * d
                    mfs.append(MF(mfma(ACC + 16 * d, f, PB[t % NB] + 4 * u, cin), [rg], c))
    S = SB[0]
    ops0 = ["v_max3_f32 v%d, v%d, v%d, v%d" % (V_T0, S, S + 1, S + 2)]
    for i in range(3, 15, 2):
        ops0.append("v_max3_f32 v%d, v%d, v%d, v%d" % (V_T0, V_T0, S + i, S + i + 1))
    ops0.append("v_max_f32 v%d, v%d, v%d" % (V_T0, V_T0, S + 15))
    ops0.append("v_mov_b32 v%d, v%d" % (V_T1, V_T0))
    ops0.append("v_permlane32_swap_b32 v%d, v%d" % (V_T0, V_T1))
    ops0.append("v_max_f32 v%d, v%d, v%d" % (V_T0, V_T0, V_T1))
    ops0.append("v_sub_f32 v%d, 0, v%d" % (NEGM, V_T0))
    ops0 += softmax_ops(0, True, NB)
    ops0.append("v_mov_b32 v%d, v%d" % (V_L, LT[0]))
    chain = [(ops0, start[("K", 1)] + 1, start[("V", 0)] - 1, None)]
    nb = ["v_mov_b32 v%d, v%d" % (NEGM + i, NEGM) for i in range(1, 16)]
    chain.append((nb, start[("V", 0)], start[("K", cfg.skew + 1)] - 2, None))
    for t in range(1, 16):
        ops = softmax_ops(t, t <= cfg.skew, NB) + ["v_cmp_nge_f32 vcc, s%d, v%d" % (S_THR, LT[t & 1])]
        chain.append((ops, start[("K", t)] + 9, start[("V", t)] - 1, t))
    rare = []

    def place_check(t, g):
        live = [u for u in range(t + 1, 16) if start[("K", u)] <= g and u > cfg.skew]
        pend = [u for u in range(t) if start[("V", u)] + 7 > g]
        rare.extend(rare_path(t, NB, live, pend))
        return ["s_cbranch_vccnz L_rare%d" % t, "L_back%d:" % t], "v_add_f32 v%d, v%d, v%d" % (V_L, LT[t & 1], V_L)
    wins.append(("chain", chain, place_check))
    pv = start[("V", 15)]
    nend = len(mfs)
    lops = [f"v_mov_b32 v{V_T0}, v{V_L}", "s_nop 0", "s_nop 0", f"v_permlane32_swap_b32 v{V_L}, v{V_T0}",
            f"v_add_f32 v{V_L}, v{V_L}, v{V_T0}", f"v_rcp_f32 v{V_L}, v{V_L}"]

    def norm_ops(ks, packed):
        a = ACC + 8 * ks
        if packed:
            o = [f"v_pk_mul_f32 v[{a+2*i}:{a+2*i+1}], v[{a+2*i}:{a+2*i+1}], v[{V_L}:{V_L+1}] op_sel_hi:[1,0]" for i in range(4)]
        else:
            o = [f"v_mul_f32 v{a+i}, v{V_L}, v{a+i}" for i in range(8)]
        o += [f"v_cvt_pk_bf16_f32 v{QR+4*ks+i}, v{a+2*i}, v{a+2*i+1}" for i in range(4)]
        return o + [(f"ds_write_b128 v{V_OW}, {vr(QR+4*ks,4)} offset:{ks*1024}", 12)]
    if cfg.t3:
        wins.append((lops, pv, pv + 2))
        for ks in range(cfg.t3):
            wins.append((norm_ops(ks, False), pv + 3 + 2 * (ks >> 1), nend - 1))
        post = sum((norm_ops(ks, cfg.pk) for ks in range(cfg.t3, 8)), [])
    else:
        post = lops + sum((norm_ops(ks, cfg.pk) for ks in range(8)), [])
    emit_schedule(st, mfs, wins, pre, shadow, cfg, cfg.D2, bar, addr_update)
    stamp(st, cfg, 3)
    for o in pre.get(nend, []) + post:
        if isinstance(o, tuple):
            st.ds(o[0])
        else:
            R(o)
    R((f"s_lshr_b32 s{S_T0}, s{S_B}, 2" if cfg.khrot else f"s_mov_b32 s{S_T0}, 0") + f"\ns_xor_b32 s{S_T0}, s{S_T0}, 1\ns_mul_i32 s{S_T0}, s{S_T0}, {2*SLOT}\ns_add_u32 s{S_T0}, s{S_T0}, {AUX}")
    R(f"v_and_b32 v{V_OW+0}, 63, v0\nv_lshlrev_b32 v{V_T0}, 4, v{V_OW}")
    st.lines.pop(); st.lines.pop()
    R(f"v_and_b32 v{V_T1}, 63, v0\nv_lshlrev_b32 v{V_T1}, 4, v{V_T1}\nv_add_u32 v{V_XA0}, s{S_T0}, v{V_T1}")
    mfs, wins, pre, shadow, bar = [], [], {}, {}, {}
    orgs = {}
    for i in range(4):
        A = ACC + 32 * (i & 1)
        for kh in range(2):
            c = 16 + 2 * i + kh
            bar[len(mfs) - 1 - cfg.BL if c > 16 else -1] = c
            for ks in range(8):
                f = next_frag()
                rg = tr_pair(f, (4 * ks) * 1024, (4 * ks + 2) * 1024, c, cfg.D3)
                for th in range(2):
                    o = OF + 64 * kh + 32 * th + 4 * ks
                    reads = [rg]
                    if i == 0:
                        areg = V_OR if kh == 0 else V_XA0
                        reads.append(RG([f"ds_read_b128 {vr(o,4)}, v{areg} offset:{th*SLOT + ks*1024}"], 16, cfg.D3 - 2))
                        reads[-1].free = True
                    cin = "0" if (kh == 0 and ks == 0) else A + 16 * th
                    mfs.append(MF(mfma(A + 16 * th, f, o, cin), reads, c))

    def cvt_ops(i, f):
        A = ACC + 32 * (i & 1) + 8 * f
        return [f"v_cvt_pk_bf16_f32 v{PK+4*f+j}, v{A+2*j}, v{A+2*j+1}" for j in range(4)]

    def st_op(i, f):
        va = (4 + (f >> 1)) if cfg.own else V_ST
        o = [f"buffer_store_dwordx4 {vr(PK+4*f,4)}, v{va}, s[{S_WS}:{S_WS+3}], s{S_NC0+i} offen offset:{f*1024} {cfg.st_pol}"]
        if cfg.own:
            o = [f"s_cmp_eq_u32 s{S_OWN}, {f >> 1}\ns_cbranch_scc0 L_own{i}{f}\n"
                 f"ds_write_b128 v{V_OW}, {vr(PK+4*f,4)} offset:{i*2048 + (f & 1)*1024}\nL_own{i}{f}:"] + o
        return o

    def flag_op(i):
        return f"buffer_store_dwordx2 v[{H_TAG}:{H_TAG+1}], v{H_FL}, s[{S_IN}:{S_IN+3}], 0 offen offset:{128*i} {cfg.fpol}"
    wins.append(([f"s_add_u32 s{S_NC0+i}, s{S_HPO}, {i*16384}" for i in range(4)], 33, 40))
    vq, sent = [], set()

    def vwait(tag):
        p = max(k for k, t in enumerate(vq) if t == tag)
        n = len(vq) - 1 - p
        del vq[:p + 1]
        return f"s_waitcnt vmcnt({n})"
    if cfg.stmode == "late":
        vq += [("st", 0)] * 3 + [("st", 1), ("st", 0)] + [("st", 1)] * 3 + [("st", 2)] * 4
        wins.append((sum((cvt_ops(0, f) for f in range(4)), []), 33, 60))
        wins.append((handoff_addr(3, "q"), 40, 78))
        g = 80 + cfg.ST0
        for f in range(4):
            wins.append((st_op(0, f), g + 2 * f, 94))
        for f in range(4):
            wins.append((cvt_ops(1, f) + st_op(1, f), g + 2 * f + 3, 94))
        for f in range(4):
            wins.append((cvt_ops(2, f) + st_op(2, f), 97 + 3 * f, 126))
    else:
        wins.append((flag_addr(cfg), 26, 33) if cfg.seq else (handoff_addr(3, "q"), 33, 60))
        ev = []
        for i in range(3):
            for f in range(4):
                ev.append((32 * (i + 1) + 2 + cfg.STS * f, "st", i, f))
        ev.append((cfg.FL0, "fl", 0, 0))
        ev.append((cfg.FL1, "fl", 1, 0))
        for g, kind, i, f in sorted(ev):
            if kind == "st":
                wins.append((cvt_ops(i, f) + st_op(i, f), g, 32 * (i + 2) - 1))
                vq.append(("st", i))
            elif g < 128:
                wins.append(([vwait(("st", i)), flag_op(i)], g, 127))
                vq.append(("fl", i))
                sent.add(i)
    if cfg.endbar and cfg.EB < 128:
        shadow[cfg.EB] = ["s_barrier"]
    emit_schedule(st, mfs, wins, pre, shadow, cfg, cfg.D3, bar, addr_update, virtual={23})
    stamp(st, cfg, 4)
    if cfg.tst:
        R(tstamp(cfg, 0))
    if cfg.stamps:
        vq.append("stamp")
    for f in range(4):
        R("\n".join(cvt_ops(3, f) + st_op(3, f)))
        vq.append(("st", 3))
    if cfg.tst:
        R(tstamp(cfg, 1))
    for i in range(4):
        if i not in sent:
            if ("st", i) in vq:
                R(vwait(("st", i)))
            R(flag_op(i))
            vq.append(("fl", i))
        if i == 1 and cfg.endbar and cfg.EB >= 128:
            R("s_barrier" if not cfg.ldsgo else f"ds_write_b32 v2, v{H_TAG}")
        if i == 2 and cfg.tst:
            R(tstamp(cfg, 2))
    if cfg.tst:
        R(tstamp(cfg, 3))
    stamp(st, cfg, 8)
    if not cfg.seq:
        rc = reduce_code(cfg, 3, "q", "c").split("L_go_c:\n")
        R(rc[0] + "L_go_c:")
        stamp(st, cfg, 9)
        R(rc[1])
        R(EPOCH_NEXT)
    stamp(st, cfg, 10)
    if cfg.stamps:
        R("s_waitcnt vmcnt(0)")
        stamp(st, cfg, 5)
        R(f"s_memrealtime s[{S_STT}:{S_STT+1}]\ns_waitcnt lgkmcnt(0)\nv_mov_b32 v{V_T0}, s{S_STT}\nv_mov_b32 v{V_T1}, 28\nglobal_store_dword v{V_T1}, v{V_T0}, s[{S_STB}:{S_STB+1}]")
    if cfg.tst:
        R(tst_end(cfg, 0))
    if cfg.span:
        R(span_end(cfg, 0))
    R("s_endpgm")
    R("L_main_end:")
    R("\n".join(rare))
    if cfg.dbg:
        keep = []
        nmf = [0]
        for l in st.lines:
            t = l.strip()
            if "E" in cfg.dbg and t.startswith("v_exp"): continue
            if "A" in cfg.dbg and t.startswith("v_add_f32"): continue
            if "C" in cfg.dbg and t.startswith("v_cvt_pk") and (" v19" in t.split(",")[0] or " v20" in t.split(",")[0]): continue
            if "K" in cfg.dbg and t.startswith("ds_read_b128"): continue
            if "T" in cfg.dbg and t.startswith("ds_read_b64_tr"): continue
            if "W" in cfg.dbg and t.startswith("s_waitcnt lgkmcnt"): continue
            if "B" in cfg.dbg and (t.startswith("s_cbranch_vccnz") or t.startswith("v_cmp_nge")): continue
            if t.startswith("v_mfma"):
                nmf[0] += 1
                ph = 1 if nmf[0] <= 128 else 2 if nmf[0] <= 384 else 3
                if "xyz"[ph - 1] in cfg.dbg:
                    continue
                if str(ph) in cfg.dbg:
                    m = re.match(r"v_mfma_f32_32x32x16_bf16 v\[(\d+):\d+\], (v\[\d+:\d+\]), (v\[\d+:\d+\]), (.*)", t)
                    d = int(m.group(1)) + 8 * (nmf[0] >> 2 & 1)
                    for q in range(2):
                        dd = "v[%d:%d]" % (d + 4 * q, d + 4 * q + 3)
                        keep.append("  v_mfma_f32_16x16x32_bf16 %s, %s, %s, %s" % (dd, m.group(2), m.group(3), dd if m.group(4) != "0" else "0"))
                    continue
            keep.append(l)
        st.lines = keep
    n0 = len(st.lines)
    st.lines = fix_hazards(st.lines)
    if cfg.verbose:
        print("hazard nops inserted:", len(st.lines) - n0, file=sys.stderr)
    return st.text()


def rest_setup():
    return f"""
s_lshl_b32 s{S_GRP}, s{S_BR}, 3
s_add_u32 s{S_GRP}, s{S_GRP}, s{S_B}
s_lshl_b32 s18, s{S_GRP}, 8
s_add_u32 s18, s18, 0x1040000
s_add_u32 s{S_EP}, s74, s18
s_addc_u32 s{S_EP+1}, s75, 0
s_load_dword s{S_EP+2}, s[{S_EP}:{S_EP+1}], 0
s_lshl_b32 s10, s{S_B}, 3
s_add_u32 s10, s10, s91
s_lshl_b32 s10, s10, 17
s_lshl_b32 s13, s{S_HP}, 18
s_lshl_b32 s14, s{S_GRP}, 20
s_lshl_b32 s{S_HPO}, s{S_HP}, 16
s_lshl_b32 s15, s{S_GRP}, 13
s_add_u32 s15, s15, 0x1000000
s_lshl_b32 s90, s{S_BR}, 10
s_lshl_b32 s19, s{S_B}, 17
s_add_u32 s19, s19, s90
s_add_u32 s{S_K}, s66, s10
s_addc_u32 s{S_K+1}, s67, 0
s_mov_b32 s{S_K+2}, 0x20000
s_mov_b32 s{S_K+3}, 0x20000
s_add_u32 s{S_V}, s68, s10
s_addc_u32 s{S_V+1}, s69, 0
s_mov_b32 s{S_V+2}, 0x20000
s_mov_b32 s{S_V+3}, 0x20000
s_add_u32 s{S_WO}, s72, s13
s_addc_u32 s{S_WO+1}, s73, 0
s_mov_b32 s{S_WO+2}, 0x40000
s_mov_b32 s{S_WO+3}, 0x20000
s_add_u32 s{S_WS}, s74, s14
s_addc_u32 s{S_WS+1}, s75, 0
s_mov_b32 s{S_WS+2}, 0x100000
s_mov_b32 s{S_WS+3}, 0x20000
s_add_u32 s{S_IN}, s74, s15
s_addc_u32 s{S_IN+1}, s75, 0
s_mov_b32 s{S_IN+2}, 0x2000
s_mov_b32 s{S_IN+3}, 0x20000
s_add_u32 s{S_OUT}, s92, s19
s_addc_u32 s{S_OUT+1}, s93, 0
s_sub_u32 s{S_OUT+2}, 0x20000, s90
s_mov_b32 s{S_OUT+3}, 0x20000
"""


def gen_loader(cfg):
    L = []
    R = lambda t: L.extend(("  " + l.strip()) if not l.endswith(":") else l for l in t.strip("\n").split("\n"))
    vWQ, vX, vK, vV, vWO = 1, 2, 3, 4, 5
    R(f"""
L_loader:
s_sub_u32 s{S_W}, s{S_W}, 4
s_lshl_b32 s5, s5, 1
s_add_u32 s5, s5, s{S_ROT}
%ROT%
s_lshl_b32 s11, s{S_B}, 16      ; x offset
s_lshl_b32 s12, s{S_HP}, 9
s_mov_b32 s{S_X+2}, 0x10000
s_mov_b32 s{S_X+3}, 0x20000
s_sub_u32 s{S_WQ+2}, 0x400000, s12
s_mov_b32 s{S_WQ+3}, 0x20000
v_and_b32 v10, 63, v0
v_lshrrev_b32 v11, 4, v10               ; t = i>>4
v_bfe_u32 v12, v10, 2, 2                ; r
v_and_b32 v13, 3, v10                   ; c
v_lshlrev_b32 v14, 6, v11
v_lshl_add_u32 v15, v13, 4, v14         ; t*64 + c*16
s_and_b32 s{S_T0}, s{S_W}, 1
s_lshl_b32 s{S_T0}, s{S_T0}, 18
s_lshr_b32 s{S_T1}, s{S_W}, 1
s_lshl_b32 s{S_T1}, s{S_T1}, 8
s_add_u32 s{S_T0}, s{S_T0}, s{S_T1}
v_lshl_add_u32 v16, v12, 13, v15
v_add_u32 v{vWQ}, s{S_T0}, v16
s_lshl_b32 s{S_M8}, s{S_W}, 13
s_lshl_b32 s{S_M1}, s{S_W}, 10
v_and_b32 v16, 1, v11                   ; tq
s_and_b32 s{S_T0}, s{S_W}, 1
s_lshl_b32 s{S_T0}, s{S_T0}, 1
v_or_b32 v17, s{S_T0}, v16              ; g
v_xor_b32 v17, v17, v13
v_lshlrev_b32 v17, 4, v17
v_lshrrev_b32 v18, 1, v11               ; ch
v_lshl_add_u32 v17, v18, 6, v17
v_lshl_add_u32 v18, v16, 2, v12         ; 4tq + t3
v_lshl_add_u32 v17, v18, 10, v17
v_add_u32 v{vX}, s{S_M8}, v17           ; + 8*lw*1024
s_waitcnt lgkmcnt(0)
s_add_u32 s{S_X}, s64, s11
s_addc_u32 s{S_X+1}, s65, 0
s_add_u32 s{S_WQ}, s70, s12
s_addc_u32 s{S_WQ+1}, s71, 0
""")
    vq = []

    def pieces(c):
        base = (c % 4) * SLOT
        sa, sb = (50 + 2 * (c & 1), 51 + 2 * (c & 1)) if c < cfg.rst else (54, 55)
        P = []
        if c < 8:
            if cfg.ramp:
                pro = f"s_bfe_u32 s{sa}, s{S_ROT}, {hex(0x30000 + 4*c)}\n"
            else:
                pro = f"s_add_u32 s{sa}, s{S_ROT}, {c}\ns_and_b32 s{sa}, s{sa}, 7\n"
            pro += f"s_lshl_b32 s{sb}, s{sa}, 7\ns_lshl_b32 s{sa}, s{sa}, 19\n"
            for p in range(2):
                P.append(f"s_add_u32 m0, s{S_M1}, {base + AUX + p*4096}\ns_add_u32 s{S_T2}, s{sb}, {p*32768}\n"
                         f"buffer_load_dwordx4 v{vX}, s[{S_X}:{S_X+3}], s{S_T2} offen {cfg.nt_w} lds")
            for p in range(8):
                P.append(f"s_add_u32 m0, s{S_M8}, {base + p*1024}\ns_add_u32 s{S_T2}, s{sa}, {p*32768}\n"
                         f"buffer_load_dwordx4 v{vWQ}, s[{S_WQ}:{S_WQ+3}], s{S_T2} offen {cfg.nt_w} lds")
        elif c < 16:
            pro = ""
            js = list(range(4))
            if cfg.kkvv:
                js.sort(key=lambda j: kv_items(cfg)[(c - 8) * 4 + j])
            for j in js:
                kind, t = kv_items(cfg)[(c - 8) * 4 + j]
                v, sr = (vK, S_K) if kind == "K" else (vV, S_V)
                for p in range(2):
                    if cfg.kvrot:
                        off = f"s_add_u32 s{S_T2}, s{S_KVR}, {t*8192 + p*4096}\ns_and_b32 s{S_T2}, s{S_T2}, 0x1ffff"
                    else:
                        off = f"s_mov_b32 s{S_T2}, {t*8192 + p*4096}"
                    P.append(f"s_add_u32 m0, s{S_M1}, {base + j*8192 + p*4096}\n{off}\n"
                             f"buffer_load_dwordx4 v{v}, s[{sr}:{sr+3}], s{S_T2} offen {cfg.nt_kv} lds")
        else:
            i, kh = (c - 16) >> 1, (c - 16) & 1
            pro = f"s_add_u32 s{sa}, s{S_B}, {i}\ns_and_b32 s{sa}, s{sa}, 3\ns_lshl_b32 s{sa}, s{sa}, 8\n"
            if cfg.khrot:
                pro += f"s_lshr_b32 s{sb}, s{S_B}, 2\ns_xor_b32 s{sb}, s{sb}, {kh}\ns_lshl_b32 s{sb}, s{sb}, 17\ns_add_u32 s{sa}, s{sa}, s{sb}\n"
            for p in range(8):
                if c >= cfg.rst:
                    rg = 256 - 32 * (24 - c) + 4 * p
                    P.append(f"s_add_u32 s{S_T2}, s{sa}, {p*4096 + (0 if cfg.khrot else kh << 17)}\n"
                             f"buffer_load_dwordx4 v[{rg}:{rg+3}], v{vWO}, s[{S_WO}:{S_WO+3}], s{S_T2} offen {cfg.nt_w}")
                    continue
                P.append(f"s_add_u32 m0, s{S_M8}, {base + p*1024}\ns_add_u32 s{S_T2}, s{sa}, {p*4096 + (0 if cfg.khrot else kh << 17)}\n"
                         f"buffer_load_dwordx4 v{vWO}, s[{S_WO}:{S_WO+3}], s{S_T2} offen {cfg.nt_w} lds")
        P[0] = pro + P[0]
        return P

    todo = [(c, k, len(pieces(c)), t) for c in range(cfg.rst) for k, t in enumerate(pieces(c))]
    rtodo = [(c, t) for c in range(cfg.rst, 24) for t in pieces(c)]
    rcum = {int(e[0], 36): int(e[1:]) for e in cfg.rplan.split(",") if e}
    nstaged = [0]

    def issue_staged(s):
        want = rcum.get(s, 0) * 4 if s in rcum else 0
        if s == max(rcum, default=16):
            want = 999
        while rtodo and nstaged[0] < want:
            c, t = rtodo.pop(0)
            R(t)
            vq.append(("r", c))
            nstaged[0] += 1

    def write_staged(c):
        wait_for(("r", c))
        R(f"v_add_u32 v9, {(c % 4) * SLOT}, v11")
        for p in range(8):
            rg = 256 - 32 * (24 - c) + 4 * p
            R(f"ds_write_b128 v9, v[{rg}:{rg+3}] offset:{p*1024}")

    def issue_to(pos):
        while todo and todo[0][0] + (todo[0][1] + 1) / todo[0][2] <= pos + 1e-6:
            c, k, n, t = todo.pop(0)
            if c == 1 and k == 0 and cfg.prow >= 0:
                R(f"s_waitcnt vmcnt({cfg.prow})")
            win = cfg.win + (1 if c > cfg.pacem else 0)
            if cfg.win and cfg.pace0 <= c <= cfg.pace1 and len(vq) >= win:
                R(f"s_waitcnt vmcnt({win - 1})")
                del vq[:len(vq) - (win - 1)]
            R(t)
            if cfg.pace and cfg.pace0 <= c <= cfg.pace1:
                R(cfg.pace.replace(";", "\n"))
            vq.append(("c", c))

    def lstamp(i):
        if cfg.lstamps:
            R(f"s_memtime s[{S_STT}:{S_STT+1}]\ns_waitcnt lgkmcnt(0)\nv_writelane_b32 v100, s{S_STT}, {i}")
    lstamp(50)
    issue_to(1)
    lstamp(51)
    R(rest_setup())
    R(f"v_lshlrev_b32 v11, 4, v10\nv_add_u32 v11, s{S_M8}, v11") if False else None
    if cfg.kvrot == 1:
        R(f"s_lshl_b32 s{S_KVR}, s{S_B}, 1\ns_add_u32 s{S_KVR}, s{S_KVR}, s91\ns_lshl_b32 s{S_KVR}, s{S_KVR}, 13")
    elif cfg.kvrot == 2:
        R(f"s_mul_i32 s{S_KVR}, s91, 5\ns_mul_i32 s{S_T0}, s{S_B}, 3\ns_add_u32 s{S_KVR}, s{S_KVR}, s{S_T0}\ns_lshl_b32 s{S_KVR}, s{S_KVR}, 13")
    elif cfg.kvrot == 3:
        R(f"s_lshl_b32 s{S_KVR}, s{S_B}, 1\ns_add_u32 s{S_KVR}, s{S_KVR}, s91\ns_and_b32 s{S_T0}, s{S_HP}, 1\ns_mul_i32 s{S_T0}, s{S_T0}, {cfg.kvd}\ns_add_u32 s{S_KVR}, s{S_KVR}, s{S_T0}\ns_lshl_b32 s{S_KVR}, s{S_KVR}, 13")
    R(f"""
v_lshl_add_u32 v16, v12, 8, v15
v_add_u32 v{vV}, s{S_M1}, v16
v_xor_b32 v16, s{S_W}, v13
v_lshl_add_u32 v16, v16, 4, v14
v_lshl_add_u32 v16, v12, 8, v16
v_add_u32 v{vK}, s{S_M1}, v16
v_lshl_add_u32 v16, v12, 10, v15
s_lshl_b32 s{S_T0}, s{S_W}, 15
v_add_u32 v{vWO}, s{S_T0}, v16
v_lshlrev_b32 v11, 4, v10
v_add_u32 v11, s{S_M8}, v11
""")
    depth = [int(ch, 36) / 8 for ch in cfg.plan]
    depth += [depth[-1]] * (24 - len(depth))

    def wait_for(*tags):
        pos = [k for k, t in enumerate(vq) if t in tags]
        if pos:
            n = len(vq) - 1 - max(pos)
            R(f"s_waitcnt vmcnt({n})")
            del vq[:max(pos) + 1]

    for s in range(23):
        assert s + depth[s] <= max(3, s + 2)
        issue_to(s + 1 + depth[s])
        issue_staged(s)
        if s + 2 >= cfg.rst and s + 2 < 24 and s >= 3:
            write_staged(s + 2)
        if s == 0:
            lstamp(48)
        if s == cfg.openin:
            R(f"""s_mul_i32 s{S_T0}, s{S_HP}, 520
v_lshlrev_b32 v6, 7, v10
v_mov_b32 v7, 0x7fff0000
v_cmp_gt_u32 vcc, 4, v0
v_mov_b32 v8, 0
v_mov_b32 v9, 0
v_lshlrev_b32 v6, 7, v10
v_subrev_u32 v16, 256, v0
v_cmp_gt_u32 vcc, 4, v16
s_nop 1
v_cndmask_b32 v6, v7, v6, vcc
buffer_store_dwordx2 v[8:9], v6, s[{S_IN}:{S_IN+3}], s{S_T0} offen sc1""")
            vq.append("open")
        if s == cfg.openout:
            R(f"""s_and_b32 s{S_T0}, s{S_HP}, 3
s_lshl_b32 s{S_T0}, s{S_T0}, 15
s_lshr_b32 s{S_T1}, s{S_HP}, 2
s_lshl_b32 s{S_T1}, s{S_T1}, 6
s_add_u32 s{S_T0}, s{S_T0}, s{S_T1}
v_and_b32 v6, 15, v10
v_lshlrev_b32 v6, 11, v6
v_lshrrev_b32 v7, 4, v10
v_lshl_add_u32 v6, v7, 8, v6
s_cmp_lg_u32 s{S_W}, 1
s_cbranch_scc1 L_noout
buffer_load_dword v7, v6, s[{S_OUT}:{S_OUT+3}], s{S_T0} offen
L_noout:""")
            vq.insert(0, "x") if False else None
        if s == 12:
            R(EPOCH)
        wait_for(("c", s if s < 22 else 23))
        if s >= cfg.rst:
            R("s_waitcnt lgkmcnt(%d)" % (8 if s < 22 and not (cfg.tst or cfg.cyc or cfg.lstamps) else 0 if s == 22 else 8))
        lstamp(2 * s)
        if not ("N" in cfg.dbg and s in (10, 11, 12, 13, 14, 15, 17, 18, 19, 20, 21)):
            R("s_barrier")
        if cfg.tst and s in (0, 8, 16):
            R(tstamp(cfg, s // 8) if not cfg.seq else tstamp(cfg, 6) if s == 16 else tstamp(cfg, 8 + s // 8))
        if cfg.cyc:
            if s:
                R(f"s_waitcnt lgkmcnt(0)\nv_writelane_b32 v100, s100, {2*s-2}\nv_writelane_b32 v100, s58, {2*s-1}")
            R("s_memtime s[100:101]\ns_memrealtime s[58:59]")
        lstamp(2 * s + 1)
    if not cfg.seq:
        R(f"s_cmp_eq_u32 s{S_W}, 3\ns_cbranch_scc1 L_ld_done")
    R("\n".join(handoff_addr(0, "q" if cfg.seq else "w")))
    R(f"s_lshl_b32 s{S_T1}, s{S_HP}, 9\nv_and_b32 v3, {63 if cfg.dyn else 31}, v10\nv_lshlrev_b32 v3, 3, v3\nv_add_u32 v3, s{S_T1}, v3")
    lstamp(46)
    if cfg.endbar and not cfg.ldsgo:
        R("s_barrier")
    if cfg.tst and not cfg.seq:
        R(tstamp(cfg, 3))
    lstamp(47)
    R(reduce_x4(cfg) if cfg.x4 else reduce_loop(cfg) if cfg.loopred else reduce_dyn(cfg) if cfg.seq and cfg.dyn else reduce_seq(cfg) if cfg.seq else reduce_code(cfg, f"s{S_W}", "w", "l"))
    R("L_ld_done:")
    if cfg.lstamps or cfg.cyc:
        R(f"""s_waitcnt lgkmcnt(0)
v_writelane_b32 v100, s62, 49
v_writelane_b32 v100, s60, 50
s_lshl_b32 s14, s2, 2
s_add_u32 s14, s14, s{S_W}
s_lshl_b32 s14, s14, 8
s_add_u32 s14, s14, 0x2100000
s_add_u32 s{S_STT}, s74, s14
s_addc_u32 s{S_STT+1}, s75, 0
v_lshlrev_b32 v21, 2, v10
global_store_dword v21, v100, s[{S_STT}:{S_STT+1}]""")
    if cfg.tst:
        R(tst_end(cfg, 4))
    if cfg.span:
        R(span_end(cfg, 4))
    R("s_endpgm")
    return "\n".join(L) + "\n"


def gen_main(cfg):
    name = NAME + "_kernel"
    s = f""".globl {name}
.p2align 12
.p2align 8
.type {name},@function
{name}:
  s_cmp_ge_u32 s2, 256
  s_cbranch_scc1 L_exit
"""
    if cfg.stamps or cfg.lstamps or cfg.span or cfg.tst:
        s += f"  s_memrealtime s[60:61]\n  s_memtime s[62:63]\n"
    s += f"""
  s_bfe_u32 s{S_BR}, s2, 0x10002
  s_mul_i32 s5, s{S_BR}, 40
  s_add_u32 s8, s0, s5
  s_addc_u32 s9, s1, 0
  s_load_dwordx8 s[64:71], s[8:9], 0      ; x k v wq
  s_load_dwordx2 s[72:73], s[8:9], 32     ; wo
  s_load_dwordx2 s[74:75], s[0:1], 96     ; ws
  s_load_dwordx2 s[92:93], s[0:1], 80     ; out
  v_lshrrev_b32 v1, 6, v0
  s_lshr_b32 s4, s2, 3            ; slot
  s_and_b32 s{S_ROT}, s4, 1
  v_readfirstlane_b32 s{S_W}, v1
  s_and_b32 s91, s2, 3
  s_lshl_b32 s91, s91, 1
  s_add_u32 s91, s91, s{S_ROT}    ; hkv
  {f"s_lshr_b32 s{S_B}, s4, 2" if cfg.remap else f"s_bfe_u32 s{S_B}, s4, 0x30001"}   ; b
  {"s_bfe_u32 s5, s4, 0x10001" if cfg.remap else "s_lshr_b32 s5, s4, 4"}            ; half
  s_lshl_b32 s{S_HP}, s91, 1
  s_add_u32 s{S_HP}, s{S_HP}, s5  ; hp
"""
    if cfg.stamps:
        s += f"""
  s_waitcnt lgkmcnt(0)
  s_lshl_b32 s14, s2, 3
  s_add_u32 s14, s14, s{S_W}
  s_lshl_b32 s14, s14, 6
  s_add_u32 s14, s14, 0x2000000
  s_add_u32 s{S_STB}, s74, s14
  s_addc_u32 s{S_STB+1}, s75, 0
  v_mov_b32 v{V_T0}, s62
  v_mov_b32 v{V_T1}, 0
  global_store_dword v{V_T1}, v{V_T0}, s[{S_STB}:{S_STB+1}]
  v_mov_b32 v{V_T0}, s60
  v_mov_b32 v{V_T1}, 24
  global_store_dword v{V_T1}, v{V_T0}, s[{S_STB}:{S_STB+1}]
  s_waitcnt vmcnt(0)
"""
    s += f"""
  s_cmp_lt_u32 s{S_W}, 4
  s_cbranch_scc1 L_compute
"""
    s += gen_loader(cfg)
    comp = gen_compute(cfg)
    s += ".p2align 12\n" + comp
    s += "L_exit:\n  s_endpgm\nL_code_end:\n"
    s = s.replace("CODE_BYTES", "0x7f80")
    rot = {8: f"  s_lshl_b32 s5, s5, 1\n  s_add_u32 s{S_ROT}, s5, s{S_B}",
           -8: f"  s_mov_b32 s{S_ROT}, s{S_B}",
           4: f"  s_add_u32 s5, s5, s{S_B}\n  s_lshl_b32 s{S_ROT}, s5, 1",
           2: f"  s_add_u32 s5, s5, s{S_B}\n  s_lshl_b32 s{S_ROT}, s5, 2",
           1: f"  s_mov_b32 s{S_ROT}, 0"}[cfg.rot]
    if cfg.ramp:
        sizes = [int(ch) for ch in cfg.ramp]
        tabs = []
        for q in range(8):
            first, o = 0, []
            for n in sizes:
                o.append(first + ((q >> 2) if n == 2 else (q >> 1) if n == 4 else q % n))
                first += n
            o += [c for c in range(8) if c not in o]
            tabs.append(sum(c << (4 * i) for i, c in enumerate(o)))
        rot = f"  s_lshl_b32 s5, s5, 1\n  s_add_u32 s5, s5, s{S_B}\n  s_and_b32 s5, s5, 7\n  s_mov_b32 s{S_ROT}, {hex(tabs[0])}"
        for q in range(1, 8):
            rot += f"\n  s_cmp_eq_u32 s5, {q}\n  s_cselect_b32 s{S_ROT}, {hex(tabs[q])}, s{S_ROT}"
    s = s.replace("%ROT%", rot)
    return s


def gen_reduce(cfg):
    name = "reduce_kernel"
    s = f""".globl {name}
.p2align 8
.type {name},@function
{name}:
  s_cmp_ge_u32 s2, 256
  s_cbranch_scc1 L_rexit
  s_load_dwordx2 s[4:5], s[0:1], 96
  s_load_dwordx2 s[6:7], s[0:1], 80
  s_lshr_b32 s8, s2, 4            ; group
  s_and_b32 s9, s2, 15            ; slice
  s_lshl_b32 s10, s8, 20
  s_lshl_b32 s11, s9, 12
  s_add_u32 s10, s10, s11
  v_lshlrev_b32 v1, 4, v0
  s_mov_b32 s14, 0x100000
  s_mov_b32 s15, 0x20000
  s_mov_b32 s18, 0x100000
  s_mov_b32 s19, 0x20000
  s_waitcnt lgkmcnt(0)
  s_add_u32 s12, s4, s10
  s_addc_u32 s13, s5, 0
  s_mov_b32 s16, s6
  s_mov_b32 s17, s7
"""
    for p in range(16):
        s += f"  s_mov_b32 s20, {p*65536}\n  buffer_load_dwordx4 v[{16+4*p}:{19+4*p}], v1, s[12:15], s20 offen {cfg.red_pol}\n"
    s += """
  s_and_b32 s20, s8, 7
  s_lshl_b32 s20, s20, 17
  s_lshr_b32 s21, s8, 3
  s_lshl_b32 s21, s21, 10
  s_add_u32 s20, s20, s21
  s_and_b32 s21, s9, 1
  s_lshl_b32 s21, s21, 16
  s_add_u32 s20, s20, s21
  s_lshr_b32 s21, s9, 1
  s_lshl_b32 s21, s21, 7
  s_add_u32 s20, s20, s21
  v_and_b32 v2, 31, v0
  v_lshlrev_b32 v2, 11, v2
  v_lshrrev_b32 v3, 5, v0
  v_lshl_add_u32 v2, v3, 4, v2
  s_mov_b32 s22, 0xffff0000
"""
    for p in range(16):
        s += f"  s_waitcnt vmcnt({15-p})\n"
        for j in range(4):
            r = 16 + 4 * p + j
            if p == 0:
                s += f"  v_lshlrev_b32 v{4+2*j}, 16, v{r}\n  v_and_b32 v{5+2*j}, s22, v{r}\n"
            else:
                s += f"  v_lshlrev_b32 v12, 16, v{r}\n  v_and_b32 v13, s22, v{r}\n  v_add_f32 v{4+2*j}, v12, v{4+2*j}\n  v_add_f32 v{5+2*j}, v13, v{5+2*j}\n"
    for j in range(4):
        s += f"  v_cvt_pk_bf16_f32 v{12+j}, v{4+2*j}, v{5+2*j}\n"
    s += """  buffer_store_dwordx4 v[12:15], v2, s[16:19], s20 offen
L_rexit:
  s_endpgm
"""
    return s


def desc(name, nv, ns):
    return f""".p2align 6
.amdhsa_kernel {name}
  .amdhsa_next_free_vgpr {nv}
  .amdhsa_next_free_sgpr {ns}
  .amdhsa_accum_offset {nv}
  .amdhsa_group_segment_fixed_size 0
  .amdhsa_kernarg_size 104
  .amdhsa_user_sgpr_count 2
  .amdhsa_user_sgpr_kernarg_segment_ptr 1
  .amdhsa_system_sgpr_workgroup_id_x 1
.end_amdhsa_kernel
"""


def generate(cfg):
    ref = open("cdna_kernels/%s.s.ref" % NAME).read().split("\n")
    head = [l for l in ref if l.startswith(";") and "@launch" not in l and "Override launch" not in l and "grid=ceil" not in l]
    head = head[:14]
    s = "\n".join(head) + "\n"
    s += f"; @launch grid=(256,1,1) block=(512,1,1) lds=163840\n"
    s += '.amdgcn_target "amdgcn-amd-amdhsa--gfx950"\n.text\n'
    s += gen_main(cfg)
    s += '.section .rodata,"a"\n'
    s += desc(NAME + "_kernel", 256, 102)
    return s


def add_page_stubs(text):
    import subprocess, tempfile, os
    lines = text.split("\n")
    i0 = lines.index("L_compute:")
    i1 = lines.index("L_main_end:")
    iw = next(i for i, l in enumerate(lines) if l.strip() == "%WARM%")
    nwarm = 10
    probe = lines[:iw] + ["  s_nop 0"] * nwarm + lines[iw + 1:]
    d = tempfile.mkdtemp()
    open(d + "/p.s", "w").write("\n".join(probe))
    subprocess.check_call(["clang", "-x", "assembler", "-target", "amdgcn-amd-amdhsa", "-mcpu=gfx950", "-c", d + "/p.s", "-o", d + "/p.o"])
    dis = subprocess.check_output(["llvm-objdump", "-d", "--mcpu=gfx950", d + "/p.o"], text=True).split("\n")
    k = next(i for i, l in enumerate(dis) if l.endswith("<L_compute>:"))
    sizes = [4 * len(l.split("//")[1].split(":")[1].split()) for l in dis[k:] if "//" in l]
    out, addr, n, stubs = probe[:i0 + 1], 0, 0, []
    for l in probe[i0 + 1:i1 + nwarm - 1]:
        t = l.split(";")[0].strip()
        if t and not t.endswith(":"):
            if addr // 4096 > len(stubs):
                stubs.append(len(out))
                out.append(None)
                addr += 4
            addr += sizes[n]
            n += 1
        out.append(l)
    out += probe[i1 + nwarm - 1:]
    ns = len(stubs)
    for j, p in enumerate(stubs):
        tgt = "L_stub%d" % (j + 4) if j + 4 < ns else "L_warm_ret"
        out[p] = "L_stub%d:\n  s_cbranch_execz %s" % (j, tgt)
    warm = ["  s_mov_b64 exec, 0"]
    for w in range(4):
        warm += ["  s_cmp_eq_u32 s%d, %d" % (S_W, w), "  s_cbranch_scc1 %s" % ("L_stub%d" % w if w < ns else "L_warm_ret")]
    warm += ["L_warm_ret:\n  s_mov_b64 exec, -1"]
    out[iw:iw + nwarm] = warm
    return "\n".join(out)


if __name__ == "__main__":
    cfg = Cfg()
    out = sys.argv[1]
    for a in sys.argv[2:]:
        k, v = a.split("=")
        old = getattr(cfg, k)
        if isinstance(old, bool):
            v = v in ("1", "True", "true")
        elif isinstance(old, int):
            v = int(v)
        elif isinstance(old, float):
            v = float(v)
        else:
            v = v.replace("+", " ").replace("/", ",")
        setattr(cfg, k, v)
    txt = generate(cfg)
    if cfg.itlb:
        txt = add_page_stubs(txt)
    open(out, "w").write(txt)
```

```python
import sys, re, math

NAME = "concat_heads__gqa_block_cached__gqa_block_cached__near_ridge"
SLOT = 40960
AUX = 32768
QSCALE = math.log2(math.e) / math.sqrt(128.0)


def f2u(x):
    import struct
    return struct.unpack("<I", struct.pack("<f", x))[0]


class Cfg:
    nt_w = ""
    nt_kv = ""
    st_pol = "sc1"
    red_pol = "sc1"
    out_pol = ""
    spin = 2000000
    ST0 = 0
    kvrot = 0
    kvd = 0
    cyc = False
    prow = -1
    tlb = False
    seq = True
    dyn = False
    EB = 200
    t1 = True
    t3 = 2
    pk = True
    touch = ''
    part1 = 10
    FL0 = 84
    FL1 = 116
    endbar = True
    psleep = 0
    remap = True
    span = False
    tst = False
    itlb = True
    STS = 4
    stmode = 'spread'
    prio = 0
    pace = ''
    pace0 = 8
    pace1 = 17
    D1 = 7
    D2 = 7
    D3 = 8
    BL = 3
    stamps = False
    lstamps = False
    codepf = 2
    thr_log2 = 24.0
    rot = 2
    WP = 2
    dbg = ''
    verbose = False
    CAP = 4
    CAPB = 2
    BARC = 4
    MINLEAD = 3
    WL = 3
    nodrain = False
    pro = 4
    plan = '8888888777789aceg'
    ppol = 'sc1'
    fpol = 'sc1'
    rounds = '0,1,2,3'
    khrot = False
    rst = 22
    rplan = 'g4'
    openin = 1
    openout = -1
    skew = 2
    own = True
    x4 = True
    pipe = True
    win = 7
    fastc = False
    q16 = True
    wsoff = 0
    pacem = 99
    kkvv = False
    early = 0
    esleep = 0
    ldsgo = True
    loopred = False
    dry = True
    ramp = ''
    force_rare = False


class Stream:
    def __init__(self):
        self.lines = []
        self.dsq = []
        self.nid = 0

    def raw(self, t):
        for l in t.strip("\n").split("\n"):
            self.lines.append(l if l.endswith(":") else "  " + l.strip())

    def ds(self, t):
        if len(self.dsq) >= 15:
            self.lines.append("  s_waitcnt lgkmcnt(11)")
            self.dsq = self.dsq[-11:]
        self.nid += 1
        self.dsq.append(self.nid)
        self.lines.append("  " + t)
        return self.nid

    def need(self, ids):
        pos = [self.dsq.index(i) for i in ids if i in self.dsq]
        if not pos:
            return
        p = max(pos)
        n = len(self.dsq) - 1 - p
        self.lines.append("  s_waitcnt lgkmcnt(%d)" % n)
        self.dsq = self.dsq[p + 1:]

    def drain(self):
        if self.dsq:
            self.lines.append("  s_waitcnt lgkmcnt(0)")
        self.dsq = []

    def text(self):
        return "\n".join(self.lines) + "\n"


def vr(a, n=1):
    return "v%d" % a if n == 1 else "v[%d:%d]" % (a, a + n - 1)


def mfma16(d, a, b, c):
    cs = c if isinstance(c, str) else vr(c, 4)
    return "v_mfma_f32_16x16x32_bf16 %s, %s, %s, %s" % (vr(d, 4), vr(a, 4), vr(b, 4), cs)


def mfma(d, a, b, c):
    cs = c if isinstance(c, str) else vr(c, 16)
    return "v_mfma_f32_32x32x16_bf16 %s, %s, %s, %s" % (vr(d, 16), vr(a, 4), vr(b, 4), cs)


V_TID = 0
V_XA0, V_XA1 = 1, 2
V_TA = 3
V_XL, V_KL = 4, 5
V_WQL, V_VL, V_WOL = 6, 7, 8
V_OW, V_OR = 9, 10
V_ST = 11
V_L, V_LT = 12, 13
V_T0, V_T1 = 14, 15
V_PF = 255
V_EP = 15
FR = 16
XF = 48
ET = 48
PK = 48
ACC = 64
QR = 128
SB = [160, 176, 224]
PB = [192, 200, 240]
LT = [13, 60]
NEGM = 208
OF = 128

S_W = 3
S_B, S_HP, S_GRP, S_BR = 6, 7, 16, 17
S_X, S_K, S_V, S_WQ, S_WO = 20, 24, 28, 32, 36
S_WS = 40
S_T0, S_T1, S_T2 = 44, 45, 46
S_M8, S_M1 = 47, 48
S_NC0 = 50
S_THR = 54
S_QS = 55
S_ROT = 49
S_KVR = 83
S_IN, S_OUT = 76, 84
S_HPO = 88
S_CNT = 89
S_STB = 56
S_STT = 58


class MF:
    def __init__(self, text, reads=None, chunk=None, text2=None):
        self.text = text
        self.text2 = text2
        self.reads = reads or []
        self.chunk = chunk


class RG:
    def __init__(self, texts, chunk, lead=None):
        self.texts = texts
        self.chunk = chunk
        self.ids = None
        self.lead = lead


def stamp(st, cfg, idx):
    if not cfg.stamps:
        return
    st_l = []
    st_l.append("s_memtime s[%d:%d]" % (S_STT, S_STT + 1))
    st_l.append("s_waitcnt lgkmcnt(0)")
    st_l.append("v_mov_b32 v%d, s%d" % (V_T0, S_STT))
    st_l.append("v_mov_b32 v%d, %d" % (V_T1, idx * 4))
    st_l.append("global_store_dword v%d, v%d, s[%d:%d]" % (V_T1, V_T0, S_STB, S_STB + 1))
    st.dsq = []
    st.raw("\n".join(st_l))


def vcost(t):
    if isinstance(t, tuple):
        return t[1]
    if not isinstance(t, str):
        return 0
    if t.endswith(":"):
        return 0
    if t.startswith(("v_exp", "v_rcp")):
        return 8
    if t.startswith("buffer_store"):
        return 12
    if "\n" in t:
        return 8
    return 4


def emit_schedule(st, mfs, wins, pre, shadow, cfg, D, barrier_at, addr_update, virtual=()):
    n = len(mfs)
    open_gap = {c: g for g, c in barrier_at.items()}
    rd_at, rd_gap, seen, pend = {}, {}, set(), []
    for i, m in enumerate(mfs):
        for rg in m.reads:
            if id(rg) in seen:
                continue
            seen.add(id(rg))
            lead = rg.lead if rg.lead is not None else D
            pend.append((max(i - lead, open_gap[rg.chunk]), i, rg))
    g, k = -1, 0
    while k < len(pend):
        cap = 99 if g < 0 else (cfg.CAPB if g in barrier_at else cfg.CAP)
        used = 0
        while k < len(pend) and pend[k][0] <= g and (used + len(pend[k][2].texts) <= cap or pend[k][1] - g <= cfg.MINLEAD):
            rg = pend[k][2]
            rd_at.setdefault(g, []).append(rg)
            rd_gap[id(rg)] = g
            used += len(rg.texts)
            k += 1
        g += 1
    for _, i, rg in pend:
        dst = set().union(*(parse(t)[2] for t in rg.texts))
        g = rd_gap[id(rg)]
        for j in range(max(g, 0), i):
            for k, t in enumerate([mfs[j].text, mfs[j].text2]):
                if t and (j > g or k == 1):
                    assert not (dst & parse(t)[1]), "read for MFMA %d (gap %d) overwrites an operand of MFMA %d" % (i, g, j)
    for _, i, rg in pend:
        if rg.chunk + 1 in open_gap and not getattr(rg, "free", False):
            assert rd_gap[id(rg)] < open_gap[rg.chunk + 1], "read of chunk %d after the next barrier" % rg.chunk
    budget = {}
    for g in range(n):
        b = 24 - 4 * sum(len(rg.texts) for rg in rd_at.get(g, []))
        if mfs[g].text2:
            b = 8 + max(0, 8 - 4 * sum(len(rg.texts) for rg in rd_at.get(g, [])))
        if g in barrier_at:
            b -= cfg.BARC
        budget[g] = b
    gaps = {}
    upd_done = set()
    for g, c in barrier_at.items():
        if g >= 0 and not cfg.nodrain:
            lo = max(gg for gg, l in rd_at.items() if gg < g and any(not getattr(r, "free", False) for r in l))
            if lo <= g - 1:
                for j, t in enumerate(addr_update(c)):
                    gg = min(g - 1, lo + 1 + j)
                    gaps.setdefault(gg, []).append(t)
                    budget[gg] -= 4
                upd_done.add(g)
    over = 0

    def fill(ops, g, g1):
        nonlocal over
        for o in ops:
            c = vcost(o)
            while g <= g1 and budget[g] < c:
                g += 1
            if g > g1:
                pre.setdefault(g1 + 1, []).append(o)
                over += c
            else:
                gaps.setdefault(g, []).append(o)
                budget[g] -= c
        return g
    for w in wins:
        if w[0] == "chain":
            cur = 0
            for ops, g0, g1, t in w[1]:
                cur = fill(ops, max(cur, g0), g1)
                if t is None:
                    continue
                gb = cur + 1
                while gb in barrier_at or gb in shadow:
                    gb += 1
                if gb <= g1:
                    br, ladd = w[2](t, gb)
                    shadow[gb] = br
                    cur = fill([ladd], gb, gb + 2)
                else:
                    br, ladd = w[2](t, g1)
                    pre.setdefault(g1 + 1, []).extend(br)
                    cur = fill([ladd], g1 + 1, g1 + 3)
                if cfg.verbose:
                    print("tile", t, "check at", gb, "deadline", g1, file=sys.stderr)
            continue
        ops, g0, g1 = w
        g = g0
        for o in ops:
            c = vcost(o)
            while g <= g1 and budget[g] < c:
                g += 1
            if g > g1:
                pre.setdefault(g1 + 1, []).append(o)
                over += c
            else:
                gaps.setdefault(g, []).append(o)
                budget[g] -= c
    if cfg.verbose:
        print("window overflow cycles", over, "over-budget gaps", [(g, b) for g, b in budget.items() if b < 0], file=sys.stderr)
    for g in sorted(k for k in rd_at if k < 0):
        if g in barrier_at:
            st.drain()
            st.raw("s_barrier")
            for t in addr_update(barrier_at[g]):
                st.raw(t)
        for rg in rd_at[g]:
            rg.ids = [st.ds(t) for t in rg.texts]

    def emit(t):
        if isinstance(t, tuple):
            st.ds(t[0])
        elif callable(t):
            t()
        else:
            st.raw(t)

    for i, m in enumerate(mfs):
        for t in pre.get(i, []):
            emit(t)
        ids = []
        for rg in m.reads:
            assert rg.ids is not None, "read not issued before use at mfma %d" % i
            ids += rg.ids
        st.need(ids)
        st.raw(m.text)
        if i in shadow:
            for t in shadow[i]:
                emit(t)
        if i in barrier_at:
            if barrier_at[i] not in virtual and not ("N" in cfg.dbg and barrier_at[i] in (10, 11, 12, 13, 14, 15, 17, 18, 19, 20, 21)):
                if not cfg.nodrain:
                    st.drain()
                st.raw("s_barrier")
            if i not in upd_done:
                for t in addr_update(barrier_at[i]):
                    st.raw(t)
        elif i not in shadow:
            ids = []
            for j in range(i + 1, min(n, i + 3)):
                for rg in mfs[j].reads:
                    if rg.ids is not None and (j == i + 1 or j - 1 in shadow or rd_gap[id(rg)] <= i - cfg.WL):
                        ids += rg.ids
            st.need(ids)
        for rg in rd_at.get(i, []):
            rg.ids = [st.ds(t) for t in rg.texts]
        fl = list(gaps.get(i, []))
        if m.text2:
            c = 4 * sum(len(rg.texts) for rg in rd_at.get(i, []))
            while fl and c + vcost(fl[0]) <= 8:
                c += vcost(fl[0])
                emit(fl.pop(0))
            st.raw(m.text2)
        for t in fl:
            emit(t)


def kv_items(cfg):
    k = cfg.skew
    items = [("K", t) for t in range(k)]
    for t in range(k, 16):
        items += [("K", t), ("V", t - k)]
    items += [("V", t) for t in range(16 - k, 16)]
    return items


def softmax_ops(t, sub_first, nb):
    S, P, lt = SB[t % nb], PB[t % nb], LT[t & 1]
    e = lambda i: ET + (i % 8)
    out = []
    for i in range(16):
        if sub_first:
            out.append("v_add_f32 v%d, v%d, v%d" % (S + i, NEGM, S + i))
        out.append("v_exp_f32 v%d, v%d" % (e(i), S + i))
        j = i - 1
        if j >= 1:
            out.append("v_add_f32 v%d, v%d, v%d" % (lt, e(j), e(0) if j == 1 else lt))
            if j & 1:
                out.append("v_cvt_pk_bf16_f32 v%d, v%d, v%d" % (P + j // 2, e(j - 1), e(j)))
    out.append("v_add_f32 v%d, v%d, v%d" % (lt, e(15), lt))
    out.append("v_cvt_pk_bf16_f32 v%d, v%d, v%d" % (P + 7, e(14), e(15)))
    return out


def rare_path(t, nb, live_s, pend_p):
    S = SB[t % nb]
    L = ["L_rare%d:" % t, "s_nop 15", "s_nop 3"]
    L.append("v_max3_f32 v%d, v%d, v%d, v%d" % (V_T0, S, S + 1, S + 2))
    for i in range(3, 15, 2):
        L.append("v_max3_f32 v%d, v%d, v%d, v%d" % (V_T0, V_T0, S + i, S + i + 1))
    L.append("v_max3_f32 v%d, v%d, v%d, 0" % (V_T0, V_T0, S + 15))
    L.append("v_mov_b32 v%d, v%d" % (V_T1, V_T0))
    L.append("s_nop 1")
    L.append("v_permlane32_swap_b32 v%d, v%d" % (V_T0, V_T1))
    L.append("v_max_f32 v%d, v%d, v%d" % (V_T0, V_T0, V_T1))
    L.append("v_ceil_f32 v%d, v%d" % (V_T0, V_T0))
    L.append("v_sub_f32 v%d, 0, v%d" % (V_T1, V_T0))
    L.append("v_exp_f32 v%d, v%d" % (V_T1, V_T1))
    for i in range(16):
        L.append("v_sub_f32 v%d, v%d, v%d" % (NEGM + i, NEGM + i, V_T0))
        for u in [t] + live_s:
            L.append("v_sub_f32 v%d, v%d, v%d" % (SB[u % nb] + i, SB[u % nb] + i, V_T0))
    L.append("v_mul_f32 v%d, v%d, v%d" % (V_L, V_L, V_T1))
    for i in range(64):
        L.append("v_mul_f32 v%d, v%d, v%d" % (ACC + i, ACC + i, V_T1))
    for u in pend_p:
        for i in range(8):
            p = PB[u % nb] + i
            L += ["v_lshlrev_b32 v%d, 16, v%d" % (ET, p), "v_and_b32 v%d, 0xffff0000, v%d" % (ET + 1, p),
                  "v_mul_f32 v%d, v%d, v%d" % (ET, ET, V_T1), "v_mul_f32 v%d, v%d, v%d" % (ET + 1, ET + 1, V_T1),
                  "v_cvt_pk_bf16_f32 v%d, v%d, v%d" % (p, ET, ET + 1)]
    L += softmax_ops(t, False, nb)
    L.append("s_nop 1")
    L.append("s_branch L_back%d" % t)
    return L


S_EP = 80
EPOCH = f"""
s_waitcnt lgkmcnt(0)
s_mul_i32 s{S_EP+2}, s{S_EP+2}, 1664525
s_add_u32 s{S_EP+2}, s{S_EP+2}, 1013904223
"""
EPOCH_NEXT = f"""s_or_b32 s{S_T0}, s{S_HP}, s{S_W}
s_cmp_lg_u32 s{S_T0}, 0
s_cbranch_scc1 L_noep
v_mov_b32 v12, 0
global_store_dword v12, v6, s[{S_EP}:{S_EP+1}]
L_noep:
"""
H_FL, H_TAG, H_PL, H_RD, H_OUT = 1, 6, 4, 5, 2


S_OWN = 94


def flag_addr(cfg):
    o = f"""
v_and_b32 v12, 63, v0
s_lshl_b32 s{S_T1}, s{S_W}, 11
s_lshl_b32 s{S_T2}, s{S_HP}, 3
s_add_u32 s{S_T1}, s{S_T1}, s{S_T2}
v_lshlrev_b32 v13, 9, v12
v_add_u32 v13, s{S_T1}, v13
v_mov_b32 v14, 0x7fff0000
v_cmp_gt_u32 vcc, 4, v12
v_mov_b32 v{H_TAG}, s{S_EP+2}
s_lshl_b32 s{S_T1}, s{S_W}, 2
v_cndmask_b32 v{H_FL}, v14, v13, vcc
v_not_b32 v{H_TAG+1}, v{H_TAG}
v_mov_b32 v2, s{S_T1}
"""
    if cfg.own:
        o += f"""
s_lshr_b32 s{S_T1}, s{S_HP}, 2
s_bfe_u32 s{S_OWN}, s{S_HP}, 0x10001
s_cmp_eq_u32 s{S_T1}, s{S_W}|s_cselect_b32 s{S_OWN}, s{S_OWN}, 2
v_bfe_u32 v13, v12, 4, 1
s_and_b32 s{S_T1}, s{S_HP}, 1
v_cmp_eq_u32 vcc, s{S_T1}, v13
s_cmp_eq_u32 s{S_OWN}, 0|s_cselect_b64 s[96:97], vcc, 0
s_cmp_eq_u32 s{S_OWN}, 1|s_cselect_b64 vcc, vcc, 0
v_cndmask_b32 v4, v{V_ST}, v14, s[96:97]
v_cndmask_b32 v5, v{V_ST}, v14, vcc
"""
    return [l.strip().replace("|", "\n") for l in o.strip().split("\n") if l.strip()]


def handoff_addr(i, mode):
    o = f"""
v_and_b32 v12, 63, v0
s_lshl_b32 s{S_T1}, s{S_W}, 11
s_lshl_b32 s{S_T2}, s{S_HP}, 3
s_add_u32 s{S_T1}, s{S_T1}, s{S_T2}
v_lshlrev_b32 v13, 9, v12
v_add_u32 v13, s{S_T1}, v13
v_mov_b32 v14, 0x7fff0000
v_cmp_gt_u32 vcc, 4, v12
v_mov_b32 v{H_TAG}, s{S_EP+2}
s_lshl_b32 s{S_T1}, s{S_HP}, 9
v_cndmask_b32 v{H_FL}, v14, v13, vcc
v_not_b32 v{H_TAG+1}, v{H_TAG}
v_and_b32 v13, 15, v12
v_lshlrev_b32 v14, 3, v13
v_add_u32 v{H_PL}, s{S_T1}, v14
s_lshr_b32 s{S_T1}, s{S_HP}, 1
s_lshl_b32 s{S_T1}, s{S_T1}, 11
s_and_b32 s{S_T2}, s{S_HP}, 1
s_lshl_b32 s{S_T2}, s{S_T2}, 8
s_add_u32 s{S_T1}, s{S_T1}, s{S_T2}
v_lshrrev_b32 v14, 4, v12
"""
    if mode == "q":
        o += f"""
s_lshl_b32 s{S_T2}, s{S_W}, 6
s_add_u32 s{S_T1}, s{S_T1}, s{S_T2}
v_lshlrev_b32 v15, 9, v14
v_lshl_add_u32 v15, v13, 2, v15
v_add_u32 v{H_RD}, s{S_T1}, v15
v_lshrrev_b32 v15, 2, v13
v_lshlrev_b32 v15, 11, v15
v_lshl_add_u32 v15, v14, 4, v15
v_and_b32 v13, 3, v13
v_lshl_add_u32 v15, v13, 2, v15
s_lshl_b32 s{S_T2}, s{S_W}, 13
"""
    else:
        o += f"""
v_lshlrev_b32 v15, 9, v14
v_lshl_add_u32 v15, v13, 4, v15
v_add_u32 v{H_RD}, s{S_T1}, v15
v_lshlrev_b32 v15, 11, v13
v_lshl_add_u32 v15, v14, 4, v15
s_mov_b32 s{S_T2}, 0
"""
    o += f"""
s_and_b32 s{S_T1}, s{S_HP}, 3
s_lshl_b32 s{S_T1}, s{S_T1}, 15
s_add_u32 s{S_T2}, s{S_T2}, s{S_T1}
s_lshr_b32 s{S_T1}, s{S_HP}, 2
s_lshl_b32 s{S_T1}, s{S_T1}, 6
s_add_u32 s{S_T2}, s{S_T2}, s{S_T1}
v_add_u32 v{H_OUT}, s{S_T2}, v15
"""
    return [l.strip() for l in o.strip().split("\n") if l.strip()]


def reduce_code(cfg, i, mode, tag):
    nd = 1 if mode == "q" else 4
    B = 16
    if isinstance(i, int):
        o = f"s_mov_b32 s{S_T0}, {i}\n"
    else:
        o = f"s_mov_b32 s{S_T0}, {i}\n"
    o += f"""
s_lshl_b32 s{S_T1}, s{S_T0}, 7
s_mov_b32 s{S_CNT}, 0
L_poll_{tag}:
buffer_load_dwordx2 v[12:13], v{H_PL}, s[{S_IN}:{S_IN+3}], s{S_T1} offen sc1
s_add_u32 s{S_CNT}, s{S_CNT}, 1
s_cmp_gt_u32 s{S_CNT}, {cfg.spin}
s_cbranch_scc1 L_go_{tag}
{"s_sleep %d" % cfg.psleep if cfg.psleep and tag == "l" else ""}
s_waitcnt vmcnt(0)
v_cmp_ne_u64 vcc, v[12:13], v[{H_TAG}:{H_TAG+1}]
s_cbranch_vccnz L_poll_{tag}
L_go_{tag}:
{tstamp(cfg, 4)}
s_lshl_b32 s{S_T1}, s{S_T0}, 14
"""
    sfx = "dword" if nd == 1 else "dwordx4"
    for p in range(16):
        o += f"buffer_load_{sfx} {vr(B + nd*p, nd)}, v{H_RD}, s[{S_WS}:{S_WS+3}], s{S_T1} offen {cfg.red_pol}\n"
        if p < 15:
            o += f"s_add_u32 s{S_T1}, s{S_T1}, 0x10000\n"
    o += f"""
s_add_u32 s{S_T0}, s{S_T0}, s{S_B}
s_and_b32 s{S_T0}, s{S_T0}, 3
s_lshl_b32 s{S_T0}, s{S_T0}, 8
s_mov_b32 s{S_T2}, 0xffff0000
"""
    A = B + 16 * nd
    for p in range(16):
        o += f"s_waitcnt vmcnt({15-p})\n"
        for j in range(nd):
            r = B + nd * p + j
            if p == 0:
                o += f"v_lshlrev_b32 v{A+2*j}, 16, v{r}\nv_and_b32 v{A+2*j+1}, s{S_T2}, v{r}\n"
            else:
                o += f"v_lshlrev_b32 v12, 16, v{r}\nv_and_b32 v13, s{S_T2}, v{r}\nv_add_f32 v{A+2*j}, v12, v{A+2*j}\nv_add_f32 v{A+2*j+1}, v13, v{A+2*j+1}\n"
    o += tstamp(cfg, 5) + "\n"
    for j in range(nd):
        o += f"v_cvt_pk_bf16_f32 v{12+j}, v{A+2*j}, v{A+2*j+1}\n"
    o += f"buffer_store_{sfx} {vr(12, nd)}, v{H_OUT}, s[{S_OUT}:{S_OUT+3}], s{S_T0} offen {cfg.out_pol}\n"
    return o


def reduce_dyn(cfg):
    B, A = 16, 80
    S_TODO, S_NOW = 94, 95
    poll = f"buffer_load_dwordx2 v[8:9], v3, s[{S_IN}:{S_IN+3}], 0 offen {cfg.ppol}\n"
    o = f"""s_mov_b32 s{S_T2}, 0xffff0000
s_mov_b32 s{S_TODO}, 15
s_mov_b32 s{S_CNT}, 0
{poll}s_waitcnt vmcnt(0)
L_dyn:
v_cmp_ne_u64 vcc, v[8:9], v[{H_TAG}:{H_TAG+1}]
s_add_u32 s{S_CNT}, s{S_CNT}, 1
s_cmp_gt_u32 s{S_CNT}, {cfg.spin}
s_cselect_b64 vcc, 0, vcc
s_mov_b32 s{S_NOW}, 0
"""
    for i in range(4):
        half = "vcc_lo" if i < 2 else "vcc_hi"
        o += f"""s_bitcmp1_b32 s{S_TODO}, {i}
s_cbranch_scc0 L_dn{i}
s_bfe_u32 s{S_T0}, {half}, {hex(0x100000 + 16*(i & 1))}
s_cbranch_scc1 L_dn{i}
s_bitset1_b32 s{S_NOW}, {i}
{tstamp(cfg, (4, 0, 1, 2)[i])}
s_mov_b32 s{S_T1}, {i*16384}
{"s_waitcnt vmcnt(46)" if i == 3 else ""}
"""
        for p in range(16):
            o += f"buffer_load_dword v{B+16*i+p}, v{H_RD}, s[{S_WS}:{S_WS+3}], s{S_T1} offen {cfg.red_pol}\n"
            if p < 15:
                o += f"s_add_u32 s{S_T1}, s{S_T1}, 0x10000\n"
        o += f"L_dn{i}:\n"
    o += f"""s_andn2_b32 s{S_TODO}, s{S_TODO}, s{S_NOW}
s_cbranch_scc0 L_dnp
{poll}L_dnp:
s_waitcnt vmcnt(0)
"""
    for i in range(4):
        o += f"s_bitcmp1_b32 s{S_NOW}, {i}\ns_cbranch_scc0 L_ds{i}\n"
        o += f"s_add_u32 s{S_T0}, s{S_B}, {i}\ns_and_b32 s{S_T0}, s{S_T0}, 3\ns_lshl_b32 s{S_T0}, s{S_T0}, 8\n"
        r = B + 16 * i
        o += f"v_lshlrev_b32 v{A}, 16, v{r}\nv_and_b32 v{A+1}, s{S_T2}, v{r}\n"
        for p in range(1, 16):
            o += f"v_lshlrev_b32 v12, 16, v{r+p}\nv_and_b32 v13, s{S_T2}, v{r+p}\nv_add_f32 v{A}, v12, v{A}\nv_add_f32 v{A+1}, v13, v{A+1}\n"
        o += f"v_cvt_pk_bf16_f32 v{A+2+i}, v{A}, v{A+1}\n"
        o += f"buffer_store_dword v{A+2+i}, v{H_OUT}, s[{S_OUT}:{S_OUT+3}], s{S_T0} offen {cfg.out_pol}\nL_ds{i}:\n"
    o += f"""s_cmp_lg_u32 s{S_TODO}, 0
s_cbranch_scc1 L_dyn
{tstamp(cfg, 5)}
"""
    o += EPOCH_NEXT
    return o


def reduce_loop(cfg):
    B, A = 16, 32
    S_I, S_DRY, S_PO, S_RO, S_OO = 50, 51, 52, 53, 54
    poll = f"buffer_load_dwordx2 v[8:9], v{H_PL}, s[{S_IN}:{S_IN+3}], s{S_PO} offen {cfg.ppol}\n"
    o = f"""s_mov_b32 s{S_T2}, 0xffff0000
s_mul_i32 s{S_T0}, s{S_W}, {SLOT}
s_add_u32 s{S_T0}, s{S_T0}, {AUX}
v_mov_b32 v11, s{S_T0}
s_mov_b32 s{S_I}, 0
s_mov_b32 s{S_PO}, 0
s_mov_b32 s{S_DRY}, {1 if cfg.dry else 0}
s_cmp_eq_u32 s{S_DRY}, 1
s_cbranch_scc1 L_rl_go
L_rl_start:
s_mov_b32 s{S_CNT}, 0
L_rl_wait:
ds_read_b32 v12, v11
s_add_u32 s{S_CNT}, s{S_CNT}, 1
s_cmp_gt_u32 s{S_CNT}, {cfg.spin}
s_cbranch_scc1 L_rl_on
s_sleep 1
s_waitcnt lgkmcnt(0)
v_cmp_ne_u32 vcc, v12, v{H_TAG}
s_cbranch_vccnz L_rl_wait
L_rl_on:
{tstamp(cfg, 3)}
{poll}s_waitcnt vmcnt(0)
L_rl_row:
s_mov_b32 s{S_CNT}, 0
L_rl_spin:
v_cmp_ne_u64 vcc, v[8:9], v[{H_TAG}:{H_TAG+1}]
s_cbranch_vccz L_rl_go
{poll}s_add_u32 s{S_CNT}, s{S_CNT}, 1
s_cmp_lt_u32 s{S_CNT}, {cfg.spin}
s_waitcnt vmcnt(0)
s_cbranch_scc1 L_rl_spin
L_rl_go:
s_lshl_b32 s{S_RO}, s{S_I}, 14
s_add_u32 s{S_OO}, s{S_B}, s{S_I}
s_and_b32 s{S_OO}, s{S_OO}, 3
s_lshl_b32 s{S_OO}, s{S_OO}, 8
s_cmp_eq_u32 s{S_DRY}, 1
s_cbranch_scc1 L_rl_sum
"""
    for p in range(16):
        o += f"buffer_load_dword v{B+p}, v{H_RD}, s[{S_WS}:{S_WS+3}], s{S_RO} offen {cfg.red_pol}\n"
        if p < 15:
            o += f"s_add_u32 s{S_RO}, s{S_RO}, 0x10000\n"
    o += f"s_add_u32 s{S_PO}, s{S_PO}, 128\ns_min_u32 s{S_PO}, s{S_PO}, 384\n{poll}L_rl_sum:\n"
    for p in range(16):
        o += f"s_waitcnt vmcnt({16-p})\n"
        q = B + p
        if p == 0:
            o += f"v_lshlrev_b32 v{A}, 16, v{q}\nv_and_b32 v{A+1}, s{S_T2}, v{q}\n"
        else:
            o += f"v_lshlrev_b32 v12, 16, v{q}\nv_and_b32 v13, s{S_T2}, v{q}\nv_add_f32 v{A}, v12, v{A}\nv_add_f32 v{A+1}, v13, v{A+1}\n"
    o += f"""v_cvt_pk_bf16_f32 v12, v{A}, v{A+1}
s_cmp_eq_u32 s{S_DRY}, 1
s_mov_b32 s{S_DRY}, 0
s_cbranch_scc1 L_rl_start
buffer_store_dword v12, v{H_OUT}, s[{S_OUT}:{S_OUT+3}], s{S_OO} offen {cfg.out_pol}
s_add_u32 s{S_I}, s{S_I}, 1
s_cmp_lt_u32 s{S_I}, 4
s_waitcnt vmcnt(1)
s_cbranch_scc1 L_rl_row
{tstamp(cfg, 5)}
"""
    o += EPOCH_NEXT
    return o


def reduce_x4(cfg):
    B, A = 16, 80
    VO = 88
    rounds = [[int(ch) for ch in r] for r in cfg.rounds.split(",")]
    poll = lambda r: f"buffer_load_dwordx2 v[8:9], v{H_PL if len(r) == 1 else 3}, s[{S_IN}:{S_IN+3}], 0 offen offset:{128*r[0]} {cfg.ppol}\n"
    o = f"""s_mov_b32 s{S_T2}, 0xffff0000
v_and_b32 v12, 15, v10
v_lshrrev_b32 v13, 4, v10
s_lshr_b32 s{S_T0}, s{S_HP}, 1
s_lshl_b32 s{S_T0}, s{S_T0}, 11
s_and_b32 s{S_T1}, s{S_HP}, 1
s_lshl_b32 s{S_T1}, s{S_T1}, 8
s_add_u32 s{S_T0}, s{S_T0}, s{S_T1}
s_lshl_b32 s{S_T1}, s{S_W}, 9
s_add_u32 s{S_T0}, s{S_T0}, s{S_T1}
v_lshlrev_b32 v14, 4, v12
v_add_u32 v14, s{S_T0}, v14
s_add_u32 s{S_T1}, s{S_HP}, 1
v_add_u32 v15, s{S_T1}, v13
"""
    for k in range(4):
        o += f"v_and_b32 v{VO+k}, 15, v15\nv_lshl_add_u32 v{VO+k}, v{VO+k}, 16, v14\nv_add_u32 v15, 4, v15\n"
    o += f"""s_lshr_b32 s{S_T0}, s{S_HP}, 2
s_lshl_b32 s{S_T1}, s{S_T0}, 2
v_mov_b32 v11, s{S_T1}
s_mul_i32 s{S_T1}, s{S_T0}, {SLOT}
s_add_u32 s{S_T1}, s{S_T1}, {AUX}
v_and_b32 v14, 0x7ff, v14
v_add_u32 v14, s{S_T1}, v14
s_lshl_b32 s{S_T0}, s{S_T0}, 6
s_and_b32 s{S_T1}, s{S_HP}, 3
s_lshl_b32 s{S_T1}, s{S_T1}, 15
s_add_u32 s{S_T0}, s{S_T0}, s{S_T1}
s_lshl_b32 s{S_T1}, s{S_W}, 4
s_add_u32 s{S_T0}, s{S_T0}, s{S_T1}
v_lshlrev_b32 v12, 11, v12
v_lshl_add_u32 v12, v13, 2, v12
v_add_u32 v{H_OUT}, s{S_T0}, v12
s_mov_b32 s{S_CNT}, 0
L_go_a:
ds_read_b32 v12, v11
s_add_u32 s{S_CNT}, s{S_CNT}, 1
s_cmp_gt_u32 s{S_CNT}, {cfg.spin}
s_cbranch_scc1 L_gone_a
s_sleep 1
s_waitcnt lgkmcnt(0)
v_cmp_ne_u32 vcc, v12, v{H_TAG}
s_cbranch_vccnz L_go_a
L_gone_a:
{tstamp(cfg, 3)}
"""
    o += poll(rounds[0]) + "s_waitcnt vmcnt(0)\n"
    for n, r in enumerate(rounds):
        o += f"""s_mov_b32 s{S_CNT}, 0
L_sp{n}:
v_cmp_ne_u64 vcc, v[8:9], v[{H_TAG}:{H_TAG+1}]
s_cbranch_vccz L_sg{n}
{poll(r)}s_add_u32 s{S_CNT}, s{S_CNT}, 1
s_cmp_lt_u32 s{S_CNT}, {cfg.spin}
s_waitcnt vmcnt(0)
s_cbranch_scc1 L_sp{n}
L_sg{n}:
"""
        for i in r:
            o += tstamp(cfg, (4, 0, 1, 2)[i]) + f"\ns_mov_b32 s{S_T1}, {i*16384}\n"
            for k in range(4):
                d = B + 16 * i + 4 * k
                if k == 3:
                    o += "s_mov_b32 exec_hi, 0x0000ffff\n"
                o += f"buffer_load_dwordx4 v[{d}:{d+3}], v{VO+k}, s[{S_WS}:{S_WS+3}], s{S_T1} offen {cfg.red_pol}\n"
            o += f"s_mov_b32 exec_lo, 0\ns_mov_b32 exec_hi, 0xffff0000\nds_read_b128 v[{d}:{d+3}], v14 offset:{i*2048}\ns_mov_b64 exec, -1\n"
        def total(r, left):
            o = ""
            for i in r:
                o += f"s_add_u32 s{50+i}, s{S_B}, {i}\ns_and_b32 s{50+i}, s{50+i}, 3\ns_lshl_b32 s{50+i}, s{50+i}, 8\n"
                for k in range(4):
                    if left is not None:
                        left -= 1
                        o += f"s_waitcnt vmcnt({left})" + (" lgkmcnt(0)\n" if k == 3 else "\n")
                    for j in range(4):
                        q = B + 16 * i + 4 * k + j
                        if k == 0:
                            o += f"v_lshlrev_b32 v{A+2*j}, 16, v{q}\nv_and_b32 v{A+2*j+1}, s{S_T2}, v{q}\n"
                        else:
                            o += f"v_lshlrev_b32 v12, 16, v{q}\nv_and_b32 v13, s{S_T2}, v{q}\nv_add_f32 v{A+2*j}, v12, v{A+2*j}\nv_add_f32 v{A+2*j+1}, v13, v{A+2*j+1}\n"
                o += "s_nop 1\n"
                for j in range(4):
                    o += f"v_permlane32_swap_b32 v{A+j}, v{A+j+4}\n"
                for j in range(4):
                    o += f"v_add_f32 v{A+j}, v{A+j}, v{A+j+4}\n"
                o += "s_nop 1\n"
                for j in range(2):
                    o += f"v_permlane16_swap_b32 v{A+j}, v{A+j+2}\n"
                for j in range(2):
                    o += f"v_add_f32 v{A+j}, v{A+j}, v{A+j+2}\n"
                o += f"v_cvt_pk_bf16_f32 v{92+i}, v{A}, v{A+1}\n"
            return o
        store = lambda r: "".join(f"buffer_store_dword v{92+i}, v{H_OUT}, s[{S_OUT}:{S_OUT+3}], s{50+i} offen {cfg.out_pol}\n" for i in r)
        last = n + 1 == len(rounds)
        if not last:
            o += poll(rounds[n + 1])
        if cfg.pipe:
            ns = 0
            if n:
                o += total(rounds[n - 1], None) + store(rounds[n - 1])
                ns = len(rounds[n - 1])
            if not last:
                o += f"s_waitcnt vmcnt({ns}) lgkmcnt(0)\n"
            else:
                o += total(r, 4 * len(r) + ns) + tstamp(cfg, 5) + "\n" + store(r)
        else:
            o += total(r, 4 * len(r) + (0 if last else 1))
            o += (tstamp(cfg, 5) + "\n") if last else "s_waitcnt vmcnt(0)\n"
            o += store(r)
    o += EPOCH_NEXT
    return o


def reduce_seq(cfg):
    B, A = 16, 80
    rounds = [[int(ch) for ch in r] for r in cfg.rounds.split(",")]
    o = f"s_mov_b32 s{S_T2}, 0xffff0000\n"
    poll = lambda r: f"buffer_load_dwordx2 v[8:9], v{H_PL if len(r) == 1 else 3}, s[{S_IN}:{S_IN+3}], 0 offen offset:{128*r[0]} {cfg.ppol}\n"
    go = f"""s_mov_b32 s{S_CNT}, 0
L_go_%s:
ds_read_b32 v12, v11
s_add_u32 s{S_CNT}, s{S_CNT}, 1
s_cmp_gt_u32 s{S_CNT}, {cfg.spin}
s_cbranch_scc1 L_gone_%s
s_sleep 1
s_waitcnt lgkmcnt(0)
v_cmp_ne_u32 vcc, v12, v{H_TAG}
s_cbranch_vccnz L_go_%s
L_gone_%s:
"""
    if cfg.ldsgo:
        o += f"s_lshr_b32 s{S_T0}, s{S_HP}, 2\ns_lshl_b32 s{S_T1}, s{S_T0}, 2\nv_mov_b32 v11, s{S_T1}\n"
        if cfg.own:
            o += f"s_mul_i32 s{S_T0}, s{S_T0}, {SLOT}\ns_add_u32 s{S_T0}, s{S_T0}, {AUX}\nv_and_b32 v14, 0x7ff, v{H_RD}\nv_add_u32 v14, s{S_T0}, v14\n"
    if cfg.early:
        if cfg.esleep:
            o += f"s_sleep {cfg.esleep}\n"
        o += poll(rounds[0]) + f"s_waitcnt vmcnt(0)\nv_cmp_ne_u64 vcc, v[8:9], v[{H_TAG}:{H_TAG+1}]\ns_mov_b32 s94, 1\ns_cbranch_vccz L_sg0\ns_mov_b32 s94, 0\n"
    if cfg.ldsgo:
        o += go % (("a",) * 4)
    o += tstamp(cfg, 3) + "\n"
    o += poll(rounds[0]) + "s_waitcnt vmcnt(0)\n"
    for n, r in enumerate(rounds):
        o += f"""s_mov_b32 s{S_CNT}, 0
L_sp{n}:
v_cmp_ne_u64 vcc, v[8:9], v[{H_TAG}:{H_TAG+1}]
s_cbranch_vccz L_sg{n}
{poll(r)}s_add_u32 s{S_CNT}, s{S_CNT}, 1
s_cmp_lt_u32 s{S_CNT}, {cfg.spin}
s_waitcnt vmcnt(0)
s_cbranch_scc1 L_sp{n}
L_sg{n}:
"""
        NP = 15 if cfg.own else 16
        for i in r:
            o += tstamp(cfg, (4, 0, 1, 2)[i]) + "\n"
            if cfg.own:
                o += f"ds_read_b32 v{B+16*i+15}, v14 offset:{i*2048}\ns_add_u32 s{S_T1}, s{S_HPO}, {i*16384}\n"
            else:
                o += f"s_mov_b32 s{S_T1}, {i*16384}\n"
            for p in range(NP):
                if cfg.own:
                    o += f"s_add_u32 s{S_T1}, s{S_T1}, 0x10000\ns_and_b32 s{S_T1}, s{S_T1}, 0xfffff\n"
                o += f"buffer_load_dword v{B+16*i+p}, v{H_RD}, s[{S_WS}:{S_WS+3}], s{S_T1} offen {cfg.red_pol}\n"
                if p < 15 and not cfg.own:
                    o += f"s_add_u32 s{S_T1}, s{S_T1}, 0x10000\n"
        k = 0
        if n + 1 < len(rounds):
            if cfg.early and n == 0:
                o += "s_cmp_eq_u32 s94, 1\ns_cbranch_scc1 L_e_nopoll\n" + poll(rounds[n + 1]) + "L_e_nopoll:\n"
            else:
                o += poll(rounds[n + 1])
                k = 1
        left = NP * len(r) + k
        for i in r:
            o += f"s_add_u32 s{S_T0}, s{S_B}, {i}\ns_and_b32 s{S_T0}, s{S_T0}, 3\ns_lshl_b32 s{S_T0}, s{S_T0}, 8\n"
            for p in ([15] + list(range(15)) if cfg.own else range(16)):
                if cfg.own and p == 15:
                    o += "s_waitcnt lgkmcnt(0)\n"
                else:
                    left -= 1
                    o += f"s_waitcnt vmcnt({left})\n"
                q = B + 16 * i + p
                if p == (15 if cfg.own else 0):
                    o += f"v_lshlrev_b32 v{A}, 16, v{q}\nv_and_b32 v{A+1}, s{S_T2}, v{q}\n"
                else:
                    o += f"v_lshlrev_b32 v12, 16, v{q}\nv_and_b32 v13, s{S_T2}, v{q}\nv_add_f32 v{A}, v12, v{A}\nv_add_f32 v{A+1}, v13, v{A+1}\n"
            o += f"v_cvt_pk_bf16_f32 v{A+2+i}, v{A}, v{A+1}\ns_mov_b32 s{50+i}, s{S_T0}\n"
        if n + 1 < len(rounds):
            o += "s_waitcnt vmcnt(0)\n"
        else:
            o += tstamp(cfg, 5) + "\n"
        for i in r:
            o += f"buffer_store_dword v{A+2+i}, v{H_OUT}, s[{S_OUT}:{S_OUT+3}], s{50+i} offen {cfg.out_pol}\n"
        if cfg.early and n == 0:
            o += "s_cmp_eq_u32 s94, 0\ns_cbranch_scc1 L_e_late\n" + go % (("b",) * 4) + poll(rounds[1]) + "s_waitcnt vmcnt(0)\nL_e_late:\n"
    o += EPOCH_NEXT
    return o


REG = re.compile(r"v\[(\d+):(\d+)\]|v(\d+)")


def regs_of(tok):
    m = REG.fullmatch(tok.strip().lstrip("-"))
    if not m:
        return set()
    if m.group(3):
        return {int(m.group(3))}
    return set(range(int(m.group(1)), int(m.group(2)) + 1))


def parse(line):
    l = line.split(";")[0].strip()
    if not l or l.endswith(":") or l.startswith("."):
        return None
    op, _, rest = l.partition(" ")
    toks = [t.strip() for t in rest.split(",")] if rest else []
    toks = [t.split(" ")[0] for t in toks]
    rd, wr = set(), set()
    if op.startswith("v_cmp"):
        for t in toks[1:]:
            rd |= regs_of(t)
    elif op.startswith("v_permlane"):
        rd = wr = regs_of(toks[0]) | regs_of(toks[1])
    elif op.startswith(("v_readfirstlane", "v_readlane")):
        rd = regs_of(toks[1])
    elif op.startswith("v_"):
        wr = regs_of(toks[0])
        for t in toks[1:]:
            rd |= regs_of(t)
        if op.startswith(("v_fmac", "v_writelane")):
            rd |= wr
    elif op.startswith("ds_read"):
        wr = regs_of(toks[0]); rd = regs_of(toks[1])
    elif op.startswith("ds_write"):
        rd = regs_of(toks[0]) | regs_of(toks[1])
    elif op.startswith(("buffer_store", "buffer_atomic", "global_store", "global_atomic")):
        for t in toks:
            rd |= regs_of(t)
    elif op.startswith(("buffer_load", "global_load")):
        if "lds" in l.split():
            rd = regs_of(toks[0])
        else:
            wr = regs_of(toks[0]); rd = regs_of(toks[1])
    return op, rd, wr, toks


def fix_hazards(lines):
    out = []
    hist = []
    t = 0
    last_mf = -100
    for line in lines:
        p = parse(line)
        if p is None:
            out.append(line)
            continue
        op, rd, wr, toks = p
        is_mf = op.startswith("v_mfma")
        is_valu = op.startswith("v_") and not is_mf
        is_mem = op.startswith(("ds_", "buffer_", "global_"))
        need = 0
        tt = max(t, last_mf) if is_mf else t
        dist = 0
        for (o2, r2, w2, k2, st2, t2) in reversed(hist[-40:]):
            m2 = o2.startswith("v_mfma")
            v2 = o2.startswith("v_") and not m2
            req = 0
            d = dist
            if v2 and o2.startswith(("v_exp", "v_rcp", "v_log", "v_rsq")) and is_valu and not op.startswith(("v_exp", "v_rcp")) and (w2 & rd):
                req = 1
            if v2 and is_mf and (w2 & rd):
                req = 2
            if v2 and op.startswith("v_permlane") and (w2 & rd):
                req = 2
            if v2 and op.startswith(("v_readfirstlane", "v_readlane")) and (w2 & rd):
                req = 1
            if o2.startswith(("buffer_store_dwordx4", "global_store_dwordx4")) and is_valu and (regs_of(k2[0] if o2.startswith("buffer") else k2[1]) & wr):
                req = 2
            ps = 4 if "16x16x32" in o2 else 8
            if m2 and (is_valu or is_mem) and (w2 & (rd | wr)):
                req = ps + 4
                d = tt - t2 - 1
            if m2 and is_mf and (w2 & (regs_of(toks[1]) | regs_of(toks[2]))):
                req = ps + 4
                d = tt - t2 - 1
            if m2 and is_mf and (w2 & regs_of(toks[3])) and regs_of(toks[3]) != w2:
                req = ps + 2
                d = tt - t2 - 1
            if m2 and is_valu and (regs_of(k2[3]) & wr):
                req = max(req, ps - 1)
                d = tt - t2 - 1
            if req > d:
                need = max(need, req - d)
            dist += st2
        while need > 0:
            k = min(need, 16)
            out.append("  s_nop %d" % (k - 1))
            hist.append(("s_nop", set(), set(), [], k, t))
            t += k
            need -= k
        tt = max(t, last_mf) if is_mf else t
        st_ = int(toks[0]) + 1 if op == "s_nop" else 1
        hist.append((op, rd, wr, toks, st_, tt))
        t = tt + st_
        if is_mf:
            last_mf = tt + (4 if "16x16x32" in op else 8)
        out.append(line)
    return out


TS = [4, 8, 10, 64, 66, 68, 70, 72, 96, 98]


def tstamp(cfg, k):
    return f"s_memrealtime s[{TS[k]}:{TS[k]+1}]" if cfg.tst else ""


def tst_end(cfg, base):
    o = f"""s_waitcnt vmcnt(0)
{tstamp(cfg, 7)}
s_lshl_b32 s14, s2, 3
s_add_u32 s14, s14, s{S_W}
s_add_u32 s14, s14, {base}
s_lshl_b32 s14, s14, 6
s_add_u32 s14, s14, 0x2300000
s_add_u32 s12, s74, s14
s_addc_u32 s13, s75, 0
s_waitcnt lgkmcnt(0)
v_mov_b32 v14, 0
"""
    for k in range(8):
        o += f"v_mov_b32 v{16+k}, s{TS[k]}\n"
    o += f"""v_mov_b32 v24, s60
v_mov_b32 v25, s{S_CNT}
global_store_dwordx4 v14, v[16:19], s[12:13]
global_store_dwordx4 v14, v[20:23], s[12:13] offset:16
v_mov_b32 v26, s96
v_mov_b32 v27, s98
global_store_dwordx4 v14, v[24:27], s[12:13] offset:32
"""
    return o


def span_end(cfg, base):
    if not cfg.span:
        return ""
    return f"""s_waitcnt vmcnt(0)
s_memrealtime s[{S_STT}:{S_STT+1}]
s_lshl_b32 s14, s2, 3
s_add_u32 s14, s14, s{S_W}
s_lshl_b32 s14, s14, 3
s_add_u32 s14, s14, {0x2200000 + base*8}
s_add_u32 s12, s74, s14
s_addc_u32 s13, s75, 0
s_waitcnt lgkmcnt(0)
v_mov_b32 v12, s60
v_mov_b32 v13, s{S_STT}
v_mov_b32 v14, 0
global_store_dwordx2 v14, v[12:13], s[12:13]
"""


def gen_compute(cfg):
    st = Stream()
    R = st.raw
    R("""
L_compute:
v_and_b32 v%(ln)d, 63, v0
""" % dict(ln=V_T0))
    ln = V_T0
    t1 = V_T1
    if not cfg.fastc:
        R("s_waitcnt lgkmcnt(0)")
        R(rest_setup(cfg))
    if cfg.tlb:
        R(f"""s_load_dword s96, s[{S_K}:{S_K+1}], 0
s_load_dword s96, s[{S_V}:{S_V+1}], 0
s_load_dword s96, s[{S_WO}:{S_WO+1}], 0
s_load_dword s96, s[{S_WS}:{S_WS+1}], s{S_HPO}
s_load_dword s96, s[{S_OUT}:{S_OUT+1}], 0""")
    if cfg.codepf == 2 and not cfg.fastc:
        R(f"""
s_getpc_b64 s[94:95]
s_lshr_b32 s{S_T0}, s2, 3
s_lshl_b32 s{S_T0}, s{S_T0}, 2
s_add_u32 s{S_T0}, s{S_T0}, s{S_W}
s_lshl_b32 s{S_T0}, s{S_T0}, 7
s_load_dword s96, s[94:95], s{S_T0}
s_lshr_b32 s{S_T0}, s{S_T0}, 2
s_add_u32 s{S_T0}, s{S_T0}, 0x4000
s_load_dword s97, s[94:95], s{S_T0}
""")
    if cfg.codepf == 1:
        R("""
s_getpc_b64 s[%d:%d]
s_sub_u32 s44, s44, 0x1800
s_subb_u32 s45, s45, 0
v_lshlrev_b32 v16, 7, v0
v_min_u32 v16, CODE_BYTES, v16
global_load_dword v255, v16, s[%d:%d]
""" % (S_T0, S_T0 + 1, S_T0, S_T0 + 1))
    XL32 = f"""v_bfe_u32 v22, v{ln}, 3, 2               ; tok>>3
v_lshl_add_u32 v23, v22, 10, v20
v_bfe_u32 v22, v{ln}, 2, 1
v_lshl_add_u32 v23, v22, 8, v23
s_and_b32 s{S_T0}, s{S_W}, 1
s_lshl_b32 s{S_T0}, s{S_T0}, 12
s_add_u32 s{S_T0}, s{S_T0}, {AUX}
v_add_u32 v{V_XL}, s{S_T0}, v23"""
    WQ32 = f"""s_lshr_b32 s{S_T0}, s{S_W}, 1
s_lshl_b32 s{S_T0}, s{S_T0}, 14
v_lshl_add_u32 v24, v18, 11, v23
v_add_u32 v{V_WQL}, s{S_T0}, v24"""
    R(f"""
v_lshrrev_b32 v18, 5, v{ln}              ; h
v_bfe_u32 v19, v{ln}, 2, 2
v_xor_b32 v20, v18, v19                  ; h^g
v_lshlrev_b32 v20, 4, v20
v_and_b32 v21, 3, v{ln}
v_lshl_add_u32 v20, v21, 6, v20          ; (key&3)*64 + (h^g)*16
v_bfe_u32 v22, v{ln}, 2, 3               ; key>>2
v_lshl_add_u32 v{V_KL}, v22, 10, v20
{"" if cfg.q16 else XL32}
v_bfe_u32 v22, v{ln}, 4, 1               ; G&1
v_lshlrev_b32 v22, 5, v22
v_lshl_add_u32 v22, v19, 6, v22          ; r*64 + (G&1)*32
v_lshl_add_u32 v23, v21, 3, v22          ; + c4*8
v_lshl_add_u32 v{V_VL}, v18, 10, v23
v_and_b32 v23, 1, v21
v_lshrrev_b32 v24, 1, v21
v_lshl_add_u32 v23, v23, 1, v24          ; bitswap(c4)
v_lshl_add_u32 v23, v23, 3, v22
{"" if cfg.q16 else WQ32}
s_lshl_b32 s{S_T0}, s{S_W}, 8
v_lshl_add_u32 v24, v18, 10, v23
v_add_u32 v{V_WOL}, s{S_T0}, v24
s_mul_i32 s{S_T0}, s{S_W}, {SLOT}
s_add_u32 s{S_T0}, s{S_T0}, {AUX}
v_lshlrev_b32 v24, 4, v{ln}
v_add_u32 v{V_OW}, s{S_T0}, v24
{f"s_lshr_b32 s{S_T0}, s{S_B}, 2" if cfg.khrot else f"s_mov_b32 s{S_T0}, 0"}            ; first head
s_mul_i32 s{S_T0}, s{S_T0}, {2*SLOT}
s_add_u32 s{S_T0}, s{S_T0}, {AUX}
v_add_u32 v{V_OR}, s{S_T0}, v24          ; O read (first head, th=0)
s_lshl_b32 s{S_T0}, s{S_W}, 12
v_add_u32 v{V_ST}, s{S_T0}, v24          ; partial store voffset: w*4096 + lane*16
s_mov_b32 s{S_THR}, {hex(f2u(2.0**cfg.thr_log2 if not cfg.force_rare else 4.0))}
s_mov_b32 s{S_QS}, {hex(f2u(QSCALE))}
""")
    if cfg.q16:
        R(f"""
v_lshrrev_b32 v18, 4, v{ln}              ; g
v_bfe_u32 v19, v{ln}, 2, 1               ; (tok>>2)&1
v_lshlrev_b32 v20, 1, v19
v_xor_b32 v20, v18, v20
v_lshlrev_b32 v20, 4, v20
v_lshl_add_u32 v20, v21, 6, v20
v_lshl_add_u32 v20, v19, 8, v20
v_bfe_u32 v22, v{ln}, 3, 1
v_lshl_add_u32 v20, v22, 10, v20
s_and_b32 s{S_T0}, s{S_W}, 1
s_lshl_b32 s{S_T0}, s{S_T0}, 12
s_add_u32 s{S_T0}, s{S_T0}, {AUX}
v_add_u32 v{V_XL}, s{S_T0}, v20
v_bfe_u32 v19, v{ln}, 2, 2               ; r
v_lshlrev_b32 v20, 6, v19
v_lshl_add_u32 v20, v21, 3, v20
v_lshl_add_u32 v20, v18, 11, v20
v_and_b32 v22, 1, v18
v_lshl_add_u32 v20, v22, 5, v20
s_lshr_b32 s{S_T0}, s{S_W}, 1
s_lshl_b32 s{S_T0}, s{S_T0}, 14
v_add_u32 v{V_WQL}, s{S_T0}, v20
""")
    if cfg.fastc:
        keep = [l for l in rest_setup(cfg).split("\n") if l.strip() and not re.search(
            r"s_load|s(10|13|19|90)\b|s(%s)," % "|".join(str(r + k) for r in (S_K, S_V, S_WO, S_OUT) for k in range(4)), l)]
        R("s_waitcnt lgkmcnt(0)")
        R("\n".join(keep))
        R(f"v_mov_b32 v16, 0\nglobal_load_dword v{V_EP}, v16, s[{S_EP}:{S_EP+1}]")
    else:
        R(EPOCH)
    if cfg.prio:
        R(f"s_setprio {cfg.prio}")
    if cfg.itlb:
        R("%WARM%")
    stamp(st, cfg, 1)

    def addr_update(c):
        base = (c % 4) * SLOT
        if c < 8:
            return [f"v_add_u32 v{V_XA0}, {base}, v{V_XL}", f"v_add_u32 v{V_TA}, {base}, v{V_WQL}",
                    f"v_xor_b32 v{V_XA1}, 32, v{V_TA if cfg.q16 else V_XA0}"]
        if c < 16:
            return [f"v_add_u32 v{V_XA0}, {base}, v{V_KL}", f"v_add_u32 v{V_TA}, {base}, v{V_VL}",
                    f"v_xor_b32 v{V_XA1}, 32, v{V_XA0}"]
        return [f"v_add_u32 v{V_TA}, {base}, v{V_WOL}"]

    fr_i = [0]

    def next_frag():
        f = FR + 4 * (fr_i[0] % 8)
        fr_i[0] += 1
        return f

    def tr_pair(f, off0, off1, chunk, lead=None):
        return RG([f"ds_read_b64_tr_b16 {vr(f,2)}, v{V_TA} offset:{off0}",
                   f"ds_read_b64_tr_b16 {vr(f+2,2)}, v{V_TA} offset:{off1}"], chunk, lead)

    mfs, wins, pre, shadow, bar = [], [], {}, {}, {}
    xi = 0
    for c in range(0 if cfg.q16 else 8):
        bar[len(mfs) - 1 - cfg.BL if c else -1] = c
        xr = []
        for s in range(4):
            xf = XF + 4 * (xi % 4)
            xi += 1
            xr.append((xf, RG([f"ds_read_b128 {vr(xf,4)}, v{V_XA0 + (s & 1)} offset:{(s >> 1) * 512}"], c, cfg.D1)))
        order = [(s, t) for s in range(4) for t in range(4)]
        if c == 7 and cfg.t1:
            order = [(s, t) for t in range(4) for s in range(4)]
        for s, t in order:
            f = next_frag()
            rg = tr_pair(f, (4 * s) * 1024 + t * 256, (4 * s + 1) * 1024 + t * 256, c, cfg.D1)
            cin = "0" if (c == 0 and s == 0) else ACC + 16 * t
            mfs.append(MF(mfma(ACC + 16 * t, f, xr[s][0], cin), [xr[s][1], rg], c))
    for c in range(8 if cfg.q16 else 0):
        bar[len(mfs) - 1 - cfg.BL if c else -1] = c
        xr = {}
        for s in range(2):
            for tt in range(2):
                xf = XF + 4 * (2 * s + tt) if not (c == 7 and s == 1) else SB[1] + 4 * tt
                xr[s, tt] = (xf, RG([f"ds_read_b128 {vr(xf,4)}, v{V_XA0} offset:{tt*2048 + s*512}"], c, min(cfg.D1, 6)))
        order = [(s, t) for s in range(2) for t in range(8)]
        if c == 7 and cfg.t1:
            order = [(s, t) for t in range(8) for s in range(2)]
        for s, t in order:
            f = next_frag()
            ta = V_TA if not (t & 1) else V_XA1
            rg = RG([f"ds_read_b64_tr_b16 {vr(f+2*j,2)}, v{ta} offset:{(8*s + j)*1024 + (t >> 1)*256}" for j in range(2)], c, cfg.D1)
            d = ACC + 8 * t
            first = c == 0 and s == 0
            mfs.append(MF(mfma16(d, f, xr[s, 0][0], "0" if first else d), [xr[s, 0][1], xr[s, 1][1], rg], c,
                          mfma16(d + 4, f, xr[s, 1][0], "0" if first else d + 4)))
    n1 = len(mfs)
    pre[n1] = [lambda: stamp(st, cfg, 2)] + (["s_waitcnt vmcnt(0)"] if cfg.codepf == 1 else [])
    if cfg.fastc:
        wins.append((["s_waitcnt vmcnt(0)\nv_readfirstlane_b32 s%d, v%d" % (S_EP + 2, V_EP),
                      "s_mul_i32 s%d, s%d, 1664525\ns_add_u32 s%d, s%d, 1013904223" % ((S_EP + 2,) * 4)], 90, 100))
    for h in range(8):
        ops = [f"v_mul_f32 v{ACC+8*h+i}, s{S_QS}, v{ACC+8*h+i}" for i in range(8)]
        ops += [f"v_cvt_pk_bf16_f32 v{QR+4*h+i}, v{ACC+8*h+2*i}, v{ACC+8*h+2*i+1}" for i in range(4)]
        if cfg.q16:
            ops += [f"v_permlane16_swap_b32 v{QR+4*h+i}, v{QR+4*h+i+2}" for i in range(2)]
        if cfg.t1 and cfg.q16:
            wins.append((ops, n1 - 16 + 2 * h + 3, n1 + h - 1))
        elif cfg.t1:
            wins.append((ops, n1 - 16 + 4 * (h >> 1) + 5, n1 + h - 1))
        else:
            pre[n1] += ops
    items = kv_items(cfg)
    NB = cfg.skew + 1
    start = {}
    for q, (kind, t) in enumerate(items):
        c = 8 + (q >> 2)
        tb = (q & 3) * 8192
        if (q & 3) == 0:
            bar[len(mfs) - 1 - cfg.BL] = c
        start[(kind, t)] = len(mfs)
        if kind == "K":
            S = SB[t % NB]
            for s in range(8):
                f = next_frag()
                rg = RG([f"ds_read_b128 {vr(f,4)}, v{V_XA0 + (s & 1)} offset:{tb + (s >> 1) * 256}"], c, cfg.D2)
                cin = S if s else ("0" if t <= cfg.skew else NEGM)
                mfs.append(MF(mfma(S, f, QR + 4 * s, cin), [rg], c))
        else:
            order = [(u, d) for u in range(2) for d in range(4)]
            if t == 15 and cfg.t3:
                order = [(u, d) for d in range(4) for u in range(2)]
            for u, d in order:
                if True:
                    f = next_frag()
                    rg = tr_pair(f, tb + (4 * u) * 1024 + d * 256, tb + (4 * u + 2) * 1024 + d * 256, c, cfg.D2)
                    cin = "0" if (t == 0 and u == 0) else ACC + 16 * d
                    mfs.append(MF(mfma(ACC + 16 * d, f, PB[t % NB] + 4 * u, cin), [rg], c))
    S = SB[0]
    ops0 = ["v_max3_f32 v%d, v%d, v%d, v%d" % (V_T0, S, S + 1, S + 2)]
    for i in range(3, 15, 2):
        ops0.append("v_max3_f32 v%d, v%d, v%d, v%d" % (V_T0, V_T0, S + i, S + i + 1))
    ops0.append("v_max_f32 v%d, v%d, v%d" % (V_T0, V_T0, S + 15))
    ops0.append("v_mov_b32 v%d, v%d" % (V_T1, V_T0))
    ops0.append("v_permlane32_swap_b32 v%d, v%d" % (V_T0, V_T1))
    ops0.append("v_max_f32 v%d, v%d, v%d" % (V_T0, V_T0, V_T1))
    ops0.append("v_sub_f32 v%d, 0, v%d" % (NEGM, V_T0))
    ops0 += softmax_ops(0, True, NB)
    ops0.append("v_mov_b32 v%d, v%d" % (V_L, LT[0]))
    chain = [(ops0, start[("K", 1)] + 1, start[("V", 0)] - 1, None)]
    nb = ["v_mov_b32 v%d, v%d" % (NEGM + i, NEGM) for i in range(1, 16)]
    chain.append((nb, start[("V", 0)], start[("K", cfg.skew + 1)] - 2, None))
    for t in range(1, 16):
        ops = softmax_ops(t, t <= cfg.skew, NB) + ["v_cmp_nge_f32 vcc, s%d, v%d" % (S_THR, LT[t & 1])]
        chain.append((ops, start[("K", t)] + 9, start[("V", t)] - 1, t))
    rare = []

    def place_check(t, g):
        live = [u for u in range(t + 1, 16) if start[("K", u)] <= g and u > cfg.skew]
        pend = [u for u in range(t) if start[("V", u)] + 7 > g]
        rare.extend(rare_path(t, NB, live, pend))
        return ["s_cbranch_vccnz L_rare%d" % t, "L_back%d:" % t], "v_add_f32 v%d, v%d, v%d" % (V_L, LT[t & 1], V_L)
    wins.append(("chain", chain, place_check))
    pv = start[("V", 15)]
    nend = len(mfs)
    lops = [f"v_mov_b32 v{V_T0}, v{V_L}", "s_nop 0", "s_nop 0", f"v_permlane32_swap_b32 v{V_L}, v{V_T0}",
            f"v_add_f32 v{V_L}, v{V_L}, v{V_T0}", f"v_rcp_f32 v{V_L}, v{V_L}"]

    def norm_ops(ks, packed):
        a = ACC + 8 * ks
        if packed:
            o = [f"v_pk_mul_f32 v[{a+2*i}:{a+2*i+1}], v[{a+2*i}:{a+2*i+1}], v[{V_L}:{V_L+1}] op_sel_hi:[1,0]" for i in range(4)]
        else:
            o = [f"v_mul_f32 v{a+i}, v{V_L}, v{a+i}" for i in range(8)]
        o += [f"v_cvt_pk_bf16_f32 v{QR+4*ks+i}, v{a+2*i}, v{a+2*i+1}" for i in range(4)]
        return o + [(f"ds_write_b128 v{V_OW}, {vr(QR+4*ks,4)} offset:{ks*1024}", 12)]
    if cfg.t3:
        wins.append((lops, pv, pv + 2))
        for ks in range(cfg.t3):
            wins.append((norm_ops(ks, False), pv + 3 + 2 * (ks >> 1), nend - 1))
        post = sum((norm_ops(ks, cfg.pk) for ks in range(cfg.t3, 8)), [])
    else:
        post = lops + sum((norm_ops(ks, cfg.pk) for ks in range(8)), [])
    emit_schedule(st, mfs, wins, pre, shadow, cfg, cfg.D2, bar, addr_update)
    stamp(st, cfg, 3)
    for o in pre.get(nend, []) + post:
        if isinstance(o, tuple):
            st.ds(o[0])
        else:
            R(o)
    R((f"s_lshr_b32 s{S_T0}, s{S_B}, 2" if cfg.khrot else f"s_mov_b32 s{S_T0}, 0") + f"\ns_xor_b32 s{S_T0}, s{S_T0}, 1\ns_mul_i32 s{S_T0}, s{S_T0}, {2*SLOT}\ns_add_u32 s{S_T0}, s{S_T0}, {AUX}")
    R(f"v_and_b32 v{V_OW+0}, 63, v0\nv_lshlrev_b32 v{V_T0}, 4, v{V_OW}")
    st.lines.pop(); st.lines.pop()
    R(f"v_and_b32 v{V_T1}, 63, v0\nv_lshlrev_b32 v{V_T1}, 4, v{V_T1}\nv_add_u32 v{V_XA0}, s{S_T0}, v{V_T1}")
    mfs, wins, pre, shadow, bar = [], [], {}, {}, {}
    orgs = {}
    for i in range(4):
        A = ACC + 32 * (i & 1)
        for kh in range(2):
            c = 16 + 2 * i + kh
            bar[len(mfs) - 1 - cfg.BL if c > 16 else -1] = c
            for ks in range(8):
                f = next_frag()
                rg = tr_pair(f, (4 * ks) * 1024, (4 * ks + 2) * 1024, c, cfg.D3)
                for th in range(2):
                    o = OF + 64 * kh + 32 * th + 4 * ks
                    reads = [rg]
                    if i == 0:
                        areg = V_OR if kh == 0 else V_XA0
                        reads.append(RG([f"ds_read_b128 {vr(o,4)}, v{areg} offset:{th*SLOT + ks*1024}"], 16, cfg.D3 - 2))
                        reads[-1].free = True
                    cin = "0" if (kh == 0 and ks == 0) else A + 16 * th
                    mfs.append(MF(mfma(A + 16 * th, f, o, cin), reads, c))

    def cvt_ops(i, f):
        A = ACC + 32 * (i & 1) + 8 * f
        return [f"v_cvt_pk_bf16_f32 v{PK+4*f+j}, v{A+2*j}, v{A+2*j+1}" for j in range(4)]

    def st_op(i, f):
        va = (4 + (f >> 1)) if cfg.own else V_ST
        o = [f"buffer_store_dwordx4 {vr(PK+4*f,4)}, v{va}, s[{S_WS}:{S_WS+3}], s{S_NC0+i} offen offset:{f*1024} {cfg.st_pol}"]
        if cfg.own:
            o = [f"s_cmp_eq_u32 s{S_OWN}, {f >> 1}\ns_cbranch_scc0 L_own{i}{f}\n"
                 f"ds_write_b128 v{V_OW}, {vr(PK+4*f,4)} offset:{i*2048 + (f & 1)*1024}\nL_own{i}{f}:"] + o
        return o

    def flag_op(i):
        return f"buffer_store_dwordx2 v[{H_TAG}:{H_TAG+1}], v{H_FL}, s[{S_IN}:{S_IN+3}], 0 offen offset:{128*i} {cfg.fpol}"
    wins.append(([f"s_add_u32 s{S_NC0+i}, s{S_HPO}, {i*16384}" for i in range(4)], 33, 40))
    vq, sent = [], set()

    def vwait(tag):
        p = max(k for k, t in enumerate(vq) if t == tag)
        n = len(vq) - 1 - p
        del vq[:p + 1]
        return f"s_waitcnt vmcnt({n})"
    if cfg.stmode == "late":
        vq += [("st", 0)] * 3 + [("st", 1), ("st", 0)] + [("st", 1)] * 3 + [("st", 2)] * 4
        wins.append((sum((cvt_ops(0, f) for f in range(4)), []), 33, 60))
        wins.append((handoff_addr(3, "q"), 40, 78))
        g = 80 + cfg.ST0
        for f in range(4):
            wins.append((st_op(0, f), g + 2 * f, 94))
        for f in range(4):
            wins.append((cvt_ops(1, f) + st_op(1, f), g + 2 * f + 3, 94))
        for f in range(4):
            wins.append((cvt_ops(2, f) + st_op(2, f), 97 + 3 * f, 126))
    else:
        wins.append((flag_addr(cfg), 26, 33) if cfg.seq else (handoff_addr(3, "q"), 33, 60))
        ev = []
        for i in range(3):
            for f in range(4):
                ev.append((32 * (i + 1) + 2 + cfg.STS * f, "st", i, f))
        ev.append((cfg.FL0, "fl", 0, 0))
        ev.append((cfg.FL1, "fl", 1, 0))
        for g, kind, i, f in sorted(ev):
            if kind == "st":
                wins.append((cvt_ops(i, f) + st_op(i, f), g, 32 * (i + 2) - 1))
                vq.append(("st", i))
            elif g < 128:
                wins.append(([vwait(("st", i)), flag_op(i)], g, 127))
                vq.append(("fl", i))
                sent.add(i)
    if cfg.endbar and cfg.EB < 128:
        shadow[cfg.EB] = ["s_barrier"]
    emit_schedule(st, mfs, wins, pre, shadow, cfg, cfg.D3, bar, addr_update, virtual={23})
    stamp(st, cfg, 4)
    if cfg.tst:
        R(tstamp(cfg, 0))
    if cfg.stamps:
        vq.append("stamp")
    for f in range(4):
        R("\n".join(cvt_ops(3, f) + st_op(3, f)))
        vq.append(("st", 3))
    if cfg.tst:
        R(tstamp(cfg, 1))
    for i in range(4):
        if i not in sent:
            if ("st", i) in vq:
                R(vwait(("st", i)))
            R(flag_op(i))
            vq.append(("fl", i))
        if i == 1 and cfg.endbar and cfg.EB >= 128:
            R("s_barrier" if not cfg.ldsgo else f"ds_write_b32 v2, v{H_TAG}")
        if i == 2 and cfg.tst:
            R(tstamp(cfg, 2))
    if cfg.tst:
        R(tstamp(cfg, 3))
    stamp(st, cfg, 8)
    if not cfg.seq:
        rc = reduce_code(cfg, 3, "q", "c").split("L_go_c:\n")
        R(rc[0] + "L_go_c:")
        stamp(st, cfg, 9)
        R(rc[1])
        R(EPOCH_NEXT)
    stamp(st, cfg, 10)
    if cfg.stamps:
        R("s_waitcnt vmcnt(0)")
        stamp(st, cfg, 5)
        R(f"s_memrealtime s[{S_STT}:{S_STT+1}]\ns_waitcnt lgkmcnt(0)\nv_mov_b32 v{V_T0}, s{S_STT}\nv_mov_b32 v{V_T1}, 28\nglobal_store_dword v{V_T1}, v{V_T0}, s[{S_STB}:{S_STB+1}]")
    if cfg.tst:
        R(tst_end(cfg, 0))
    if cfg.span:
        R(span_end(cfg, 0))
    R("s_endpgm")
    R("L_main_end:")
    R("\n".join(rare))
    if cfg.dbg:
        keep = []
        nmf = [0]
        for l in st.lines:
            t = l.strip()
            if "E" in cfg.dbg and t.startswith("v_exp"): continue
            if "A" in cfg.dbg and t.startswith("v_add_f32"): continue
            if "C" in cfg.dbg and t.startswith("v_cvt_pk") and (" v19" in t.split(",")[0] or " v20" in t.split(",")[0]): continue
            if "K" in cfg.dbg and t.startswith("ds_read_b128"): continue
            if "T" in cfg.dbg and t.startswith("ds_read_b64_tr"): continue
            if "W" in cfg.dbg and t.startswith("s_waitcnt lgkmcnt"): continue
            if "B" in cfg.dbg and (t.startswith("s_cbranch_vccnz") or t.startswith("v_cmp_nge")): continue
            if t.startswith("v_mfma"):
                nmf[0] += 1
                ph = 1 if nmf[0] <= 128 else 2 if nmf[0] <= 384 else 3
                if "xyz"[ph - 1] in cfg.dbg:
                    continue
                if str(ph) in cfg.dbg:
                    m = re.match(r"v_mfma_f32_32x32x16_bf16 v\[(\d+):\d+\], (v\[\d+:\d+\]), (v\[\d+:\d+\]), (.*)", t)
                    d = int(m.group(1)) + 8 * (nmf[0] >> 2 & 1)
                    for q in range(2):
                        dd = "v[%d:%d]" % (d + 4 * q, d + 4 * q + 3)
                        keep.append("  v_mfma_f32_16x16x32_bf16 %s, %s, %s, %s" % (dd, m.group(2), m.group(3), dd if m.group(4).startswith("v[%s:" % m.group(1)) else "0"))
                    continue
            keep.append(l)
        st.lines = keep
        if "S" in cfg.dbg:
            out, i = [], 0
            L = st.lines
            while i < len(L):
                if "16x16x32" in L[i] and i + 1 < len(L) and "16x16x32" in L[i + 1]:
                    j, c = i + 2, 0
                    out.append(L[i])
                    while j < len(L) and "v_mfma" not in L[j] and not L[j].strip().startswith(("s_barrier", "s_cbranch")) and not L[j].endswith(":"):
                        t = L[j].strip()
                        k = 0 if (t.startswith("s_waitcnt") and j == i + 2) else vcost(t)
                        if c + k > 8 and not t.startswith("ds_"):
                            break
                        c += k
                        out.append(L[j])
                        j += 1
                    out.append(L[i + 1])
                    i = j
                else:
                    out.append(L[i])
                    i += 1
            st.lines = out
    n0 = len(st.lines)
    st.lines = fix_hazards(st.lines)
    if cfg.verbose:
        print("hazard nops inserted:", len(st.lines) - n0, file=sys.stderr)
    return st.text()


def rest_setup(cfg):
    return f"""
s_lshl_b32 s{S_GRP}, s{S_BR}, 3
s_add_u32 s{S_GRP}, s{S_GRP}, s{S_B}
s_lshl_b32 s18, s{S_GRP}, 8
s_add_u32 s18, s18, {hex(0x1040000 + (cfg.wsoff << 20))}
s_add_u32 s{S_EP}, s74, s18
s_addc_u32 s{S_EP+1}, s75, 0
s_load_dword s{S_EP+2}, s[{S_EP}:{S_EP+1}], 0
s_lshl_b32 s10, s{S_B}, 3
s_add_u32 s10, s10, s91
s_lshl_b32 s10, s10, 17
s_lshl_b32 s13, s{S_HP}, 18
s_lshl_b32 s14, s{S_GRP}, 20
{f's_add_u32 s14, s14, {hex(cfg.wsoff << 20)}' if cfg.wsoff else ''}
s_lshl_b32 s{S_HPO}, s{S_HP}, 16
s_lshl_b32 s15, s{S_GRP}, 13
s_add_u32 s15, s15, {hex(0x1000000 + (cfg.wsoff << 20))}
s_lshl_b32 s90, s{S_BR}, 10
s_lshl_b32 s19, s{S_B}, 17
s_add_u32 s19, s19, s90
s_add_u32 s{S_K}, s66, s10
s_addc_u32 s{S_K+1}, s67, 0
s_mov_b32 s{S_K+2}, 0x20000
s_mov_b32 s{S_K+3}, 0x20000
s_add_u32 s{S_V}, s68, s10
s_addc_u32 s{S_V+1}, s69, 0
s_mov_b32 s{S_V+2}, 0x20000
s_mov_b32 s{S_V+3}, 0x20000
s_add_u32 s{S_WO}, s72, s13
s_addc_u32 s{S_WO+1}, s73, 0
s_mov_b32 s{S_WO+2}, 0x40000
s_mov_b32 s{S_WO+3}, 0x20000
s_add_u32 s{S_WS}, s74, s14
s_addc_u32 s{S_WS+1}, s75, 0
s_mov_b32 s{S_WS+2}, 0x100000
s_mov_b32 s{S_WS+3}, 0x20000
s_add_u32 s{S_IN}, s74, s15
s_addc_u32 s{S_IN+1}, s75, 0
s_mov_b32 s{S_IN+2}, 0x2000
s_mov_b32 s{S_IN+3}, 0x20000
s_add_u32 s{S_OUT}, s92, s19
s_addc_u32 s{S_OUT+1}, s93, 0
s_sub_u32 s{S_OUT+2}, 0x20000, s90
s_mov_b32 s{S_OUT+3}, 0x20000
"""


def gen_loader(cfg):
    L = []
    R = lambda t: L.extend(("  " + l.strip()) if not l.endswith(":") else l for l in t.strip("\n").split("\n"))
    vWQ, vX, vK, vV, vWO = 1, 2, 3, 4, 5
    R(f"""
L_loader:
s_sub_u32 s{S_W}, s{S_W}, 4
s_lshl_b32 s5, s5, 1
s_add_u32 s5, s5, s{S_ROT}
%ROT%
s_lshl_b32 s11, s{S_B}, 16      ; x offset
s_lshl_b32 s12, s{S_HP}, 9
s_mov_b32 s{S_X+2}, 0x10000
s_mov_b32 s{S_X+3}, 0x20000
s_sub_u32 s{S_WQ+2}, 0x400000, s12
s_mov_b32 s{S_WQ+3}, 0x20000
v_and_b32 v10, 63, v0
v_lshrrev_b32 v11, 4, v10               ; t = i>>4
v_bfe_u32 v12, v10, 2, 2                ; r
v_and_b32 v13, 3, v10                   ; c
v_lshlrev_b32 v14, 6, v11
v_lshl_add_u32 v15, v13, 4, v14         ; t*64 + c*16
s_and_b32 s{S_T0}, s{S_W}, 1
s_lshl_b32 s{S_T0}, s{S_T0}, 18
s_lshr_b32 s{S_T1}, s{S_W}, 1
s_lshl_b32 s{S_T1}, s{S_T1}, 8
s_add_u32 s{S_T0}, s{S_T0}, s{S_T1}
v_lshl_add_u32 v16, v12, 13, v15
v_add_u32 v{vWQ}, s{S_T0}, v16
v_xor_b32 v19, 32, v{vWQ}
s_lshl_b32 s{S_M8}, s{S_W}, 13
s_lshl_b32 s{S_M1}, s{S_W}, 10
v_and_b32 v16, 1, v11                   ; tq
s_and_b32 s{S_T0}, s{S_W}, 1
s_lshl_b32 s{S_T0}, s{S_T0}, 1
{f"v_lshlrev_b32 v17, 1, v16" if cfg.q16 else f"v_or_b32 v17, s{S_T0}, v16"}              ; g
v_xor_b32 v17, v17, v13
v_lshlrev_b32 v17, 4, v17
v_lshrrev_b32 v18, 1, v11               ; ch
v_lshl_add_u32 v17, v18, 6, v17
v_lshl_add_u32 v18, v16, 2, v12         ; 4tq + t3
v_lshl_add_u32 v17, v18, 10, v17
v_add_u32 v{vX}, s{S_M8}, v17           ; + 8*lw*1024
s_waitcnt lgkmcnt(0)
s_add_u32 s{S_X}, s64, s11
s_addc_u32 s{S_X+1}, s65, 0
s_add_u32 s{S_WQ}, s70, s12
s_addc_u32 s{S_WQ+1}, s71, 0
""")
    vq = []

    def pieces(c):
        base = (c % 4) * SLOT
        sa, sb = (50 + 2 * (c & 1), 51 + 2 * (c & 1)) if c < cfg.rst else (54, 55)
        P = []
        if c < 8:
            if cfg.ramp:
                pro = f"s_bfe_u32 s{sa}, s{S_ROT}, {hex(0x30000 + 4*c)}\n"
            else:
                pro = f"s_add_u32 s{sa}, s{S_ROT}, {c}\ns_and_b32 s{sa}, s{sa}, 7\n"
            pro += f"s_lshl_b32 s{sb}, s{sa}, 7\ns_lshl_b32 s{sa}, s{sa}, 19\n"
            for p in range(2):
                P.append(f"s_add_u32 m0, s{S_M1}, {base + AUX + p*4096}\ns_add_u32 s{S_T2}, s{sb}, {p*32768}\n"
                         f"buffer_load_dwordx4 v{vX}, s[{S_X}:{S_X+3}], s{S_T2} offen {cfg.nt_w} lds")
            for p in range(8):
                P.append(f"s_add_u32 m0, s{S_M8}, {base + p*1024}\ns_add_u32 s{S_T2}, s{sa}, {p*32768}\n"
                         f"buffer_load_dwordx4 v{19 if cfg.q16 and (p & 2) else vWQ}, s[{S_WQ}:{S_WQ+3}], s{S_T2} offen {cfg.nt_w} lds")
        elif c < 16:
            pro = ""
            js = list(range(4))
            if cfg.kkvv:
                js.sort(key=lambda j: kv_items(cfg)[(c - 8) * 4 + j])
            for j in js:
                kind, t = kv_items(cfg)[(c - 8) * 4 + j]
                v, sr = (vK, S_K) if kind == "K" else (vV, S_V)
                for p in range(2):
                    if cfg.kvrot:
                        off = f"s_add_u32 s{S_T2}, s{S_KVR}, {t*8192 + p*4096}\ns_and_b32 s{S_T2}, s{S_T2}, 0x1ffff"
                    else:
                        off = f"s_mov_b32 s{S_T2}, {t*8192 + p*4096}"
                    P.append(f"s_add_u32 m0, s{S_M1}, {base + j*8192 + p*4096}\n{off}\n"
                             f"buffer_load_dwordx4 v{v}, s[{sr}:{sr+3}], s{S_T2} offen {cfg.nt_kv} lds")
        else:
            i, kh = (c - 16) >> 1, (c - 16) & 1
            pro = f"s_add_u32 s{sa}, s{S_B}, {i}\ns_and_b32 s{sa}, s{sa}, 3\ns_lshl_b32 s{sa}, s{sa}, 8\n"
            if cfg.khrot:
                pro += f"s_lshr_b32 s{sb}, s{S_B}, 2\ns_xor_b32 s{sb}, s{sb}, {kh}\ns_lshl_b32 s{sb}, s{sb}, 17\ns_add_u32 s{sa}, s{sa}, s{sb}\n"
            for p in range(8):
                if c >= cfg.rst:
                    rg = 256 - 32 * (24 - c) + 4 * p
                    P.append(f"s_add_u32 s{S_T2}, s{sa}, {p*4096 + (0 if cfg.khrot else kh << 17)}\n"
                             f"buffer_load_dwordx4 v[{rg}:{rg+3}], v{vWO}, s[{S_WO}:{S_WO+3}], s{S_T2} offen {cfg.nt_w}")
                    continue
                P.append(f"s_add_u32 m0, s{S_M8}, {base + p*1024}\ns_add_u32 s{S_T2}, s{sa}, {p*4096 + (0 if cfg.khrot else kh << 17)}\n"
                         f"buffer_load_dwordx4 v{vWO}, s[{S_WO}:{S_WO+3}], s{S_T2} offen {cfg.nt_w} lds")
        P[0] = pro + P[0]
        return P

    todo = [(c, k, len(pieces(c)), t) for c in range(cfg.rst) for k, t in enumerate(pieces(c))]
    rtodo = [(c, t) for c in range(cfg.rst, 24) for t in pieces(c)]
    rcum = {int(e[0], 36): int(e[1:]) for e in cfg.rplan.split(",") if e}
    nstaged = [0]

    def issue_staged(s):
        want = rcum.get(s, 0) * 4 if s in rcum else 0
        if s == max(rcum, default=16):
            want = 999
        while rtodo and nstaged[0] < want:
            c, t = rtodo.pop(0)
            R(t)
            vq.append(("r", c))
            nstaged[0] += 1

    def write_staged(c):
        wait_for(("r", c))
        R(f"v_add_u32 v9, {(c % 4) * SLOT}, v11")
        for p in range(8):
            rg = 256 - 32 * (24 - c) + 4 * p
            R(f"ds_write_b128 v9, v[{rg}:{rg+3}] offset:{p*1024}")

    def issue_to(pos):
        while todo and todo[0][0] + (todo[0][1] + 1) / todo[0][2] <= pos + 1e-6:
            c, k, n, t = todo.pop(0)
            if c == 1 and k == 0 and cfg.prow >= 0:
                R(f"s_waitcnt vmcnt({cfg.prow})")
            win = cfg.win + (1 if c > cfg.pacem else 0)
            if cfg.win and cfg.pace0 <= c <= cfg.pace1 and len(vq) >= win:
                R(f"s_waitcnt vmcnt({win - 1})")
                del vq[:len(vq) - (win - 1)]
            R(t)
            if cfg.pace and cfg.pace0 <= c <= cfg.pace1:
                R(cfg.pace.replace(";", "\n"))
            vq.append(("c", c))

    def lstamp(i):
        if cfg.lstamps:
            R(f"s_memtime s[{S_STT}:{S_STT+1}]\ns_waitcnt lgkmcnt(0)\nv_writelane_b32 v100, s{S_STT}, {i}")
    lstamp(50)
    issue_to(1)
    lstamp(51)
    R(rest_setup(cfg))
    if cfg.codepf == 2 and cfg.fastc:
        R(f"""s_getpc_b64 s[94:95]
L_pc:
s_add_u32 s94, s94, L_compute-L_pc
s_addc_u32 s95, s95, 0
s_lshr_b32 s{S_T0}, s2, 3
s_lshl_b32 s{S_T0}, s{S_T0}, 2
s_add_u32 s{S_T0}, s{S_T0}, s{S_W}
s_lshl_b32 s{S_T0}, s{S_T0}, 7
s_load_dword s55, s[94:95], s{S_T0}
s_lshr_b32 s{S_T0}, s{S_T0}, 2
s_add_u32 s{S_T0}, s{S_T0}, 0x4000
s_load_dword s55, s[94:95], s{S_T0}""")
    R(f"v_lshlrev_b32 v11, 4, v10\nv_add_u32 v11, s{S_M8}, v11") if False else None
    if cfg.kvrot == 1:
        R(f"s_lshl_b32 s{S_KVR}, s{S_B}, 1\ns_add_u32 s{S_KVR}, s{S_KVR}, s91\ns_lshl_b32 s{S_KVR}, s{S_KVR}, 13")
    elif cfg.kvrot == 2:
        R(f"s_mul_i32 s{S_KVR}, s91, 5\ns_mul_i32 s{S_T0}, s{S_B}, 3\ns_add_u32 s{S_KVR}, s{S_KVR}, s{S_T0}\ns_lshl_b32 s{S_KVR}, s{S_KVR}, 13")
    elif cfg.kvrot == 3:
        R(f"s_lshl_b32 s{S_KVR}, s{S_B}, 1\ns_add_u32 s{S_KVR}, s{S_KVR}, s91\ns_and_b32 s{S_T0}, s{S_HP}, 1\ns_mul_i32 s{S_T0}, s{S_T0}, {cfg.kvd}\ns_add_u32 s{S_KVR}, s{S_KVR}, s{S_T0}\ns_lshl_b32 s{S_KVR}, s{S_KVR}, 13")
    R(f"""
v_lshl_add_u32 v16, v12, 8, v15
v_add_u32 v{vV}, s{S_M1}, v16
v_xor_b32 v16, s{S_W}, v13
v_lshl_add_u32 v16, v16, 4, v14
v_lshl_add_u32 v16, v12, 8, v16
v_add_u32 v{vK}, s{S_M1}, v16
v_lshl_add_u32 v16, v12, 10, v15
s_lshl_b32 s{S_T0}, s{S_W}, 15
v_add_u32 v{vWO}, s{S_T0}, v16
v_lshlrev_b32 v11, 4, v10
v_add_u32 v11, s{S_M8}, v11
""")
    depth = [int(ch, 36) / 8 for ch in cfg.plan]
    depth += [depth[-1]] * (24 - len(depth))

    def wait_for(*tags):
        pos = [k for k, t in enumerate(vq) if t in tags]
        if pos:
            n = len(vq) - 1 - max(pos)
            R(f"s_waitcnt vmcnt({n})")
            del vq[:max(pos) + 1]

    for s in range(23):
        assert s + depth[s] <= max(3, s + 2)
        issue_to(s + 1 + depth[s])
        issue_staged(s)
        if s + 2 >= cfg.rst and s + 2 < 24 and s >= 3:
            write_staged(s + 2)
        if s == 0:
            lstamp(48)
        if s == cfg.openin:
            R(f"""s_mul_i32 s{S_T0}, s{S_HP}, 520
v_lshlrev_b32 v6, 7, v10
v_mov_b32 v7, 0x7fff0000
v_cmp_gt_u32 vcc, 4, v0
v_mov_b32 v8, 0
v_mov_b32 v9, 0
v_lshlrev_b32 v6, 7, v10
v_subrev_u32 v16, 256, v0
v_cmp_gt_u32 vcc, 4, v16
s_nop 1
v_cndmask_b32 v6, v7, v6, vcc
buffer_store_dwordx2 v[8:9], v6, s[{S_IN}:{S_IN+3}], s{S_T0} offen sc1""")
            vq.append("open")
        if s == cfg.openout:
            R(f"""s_and_b32 s{S_T0}, s{S_HP}, 3
s_lshl_b32 s{S_T0}, s{S_T0}, 15
s_lshr_b32 s{S_T1}, s{S_HP}, 2
s_lshl_b32 s{S_T1}, s{S_T1}, 6
s_add_u32 s{S_T0}, s{S_T0}, s{S_T1}
v_and_b32 v6, 15, v10
v_lshlrev_b32 v6, 11, v6
v_lshrrev_b32 v7, 4, v10
v_lshl_add_u32 v6, v7, 8, v6
s_cmp_lg_u32 s{S_W}, 1
s_cbranch_scc1 L_noout
buffer_load_dword v7, v6, s[{S_OUT}:{S_OUT+3}], s{S_T0} offen
L_noout:""")
            vq.insert(0, "x") if False else None
        if s == 12:
            R(EPOCH)
        wait_for(("c", s if s < 22 else 23))
        if s >= cfg.rst:
            R("s_waitcnt lgkmcnt(%d)" % (8 if s < 22 and not (cfg.tst or cfg.cyc or cfg.lstamps) else 0 if s == 22 else 8))
        lstamp(2 * s)
        if not ("N" in cfg.dbg and s in (10, 11, 12, 13, 14, 15, 17, 18, 19, 20, 21)):
            R("s_barrier")
        if cfg.tst and s in (0, 8, 16):
            R(tstamp(cfg, s // 8) if not cfg.seq else tstamp(cfg, 6) if s == 16 else tstamp(cfg, 8 + s // 8))
        if cfg.cyc:
            if s:
                R(f"s_waitcnt lgkmcnt(0)\nv_writelane_b32 v100, s100, {2*s-2}\nv_writelane_b32 v100, s58, {2*s-1}")
            R("s_memtime s[100:101]\ns_memrealtime s[58:59]")
        lstamp(2 * s + 1)
    if not cfg.seq:
        R(f"s_cmp_eq_u32 s{S_W}, 3\ns_cbranch_scc1 L_ld_done")
    R("\n".join(handoff_addr(0, "q" if cfg.seq else "w")))
    R(f"s_lshl_b32 s{S_T1}, s{S_HP}, 9\nv_and_b32 v3, {63 if cfg.dyn else 31}, v10\nv_lshlrev_b32 v3, 3, v3\nv_add_u32 v3, s{S_T1}, v3")
    lstamp(46)
    if cfg.endbar and not cfg.ldsgo:
        R("s_barrier")
    if cfg.tst and not cfg.seq:
        R(tstamp(cfg, 3))
    lstamp(47)
    R(reduce_x4(cfg) if cfg.x4 else reduce_loop(cfg) if cfg.loopred else reduce_dyn(cfg) if cfg.seq and cfg.dyn else reduce_seq(cfg) if cfg.seq else reduce_code(cfg, f"s{S_W}", "w", "l"))
    R("L_ld_done:")
    if cfg.lstamps or cfg.cyc:
        R(f"""s_waitcnt lgkmcnt(0)
v_writelane_b32 v100, s62, 49
v_writelane_b32 v100, s60, 50
s_lshl_b32 s14, s2, 2
s_add_u32 s14, s14, s{S_W}
s_lshl_b32 s14, s14, 8
s_add_u32 s14, s14, 0x2100000
s_add_u32 s{S_STT}, s74, s14
s_addc_u32 s{S_STT+1}, s75, 0
v_lshlrev_b32 v21, 2, v10
global_store_dword v21, v100, s[{S_STT}:{S_STT+1}]""")
    if cfg.tst:
        R(tst_end(cfg, 4))
    if cfg.span:
        R(span_end(cfg, 4))
    R("s_endpgm")
    return "\n".join(L) + "\n"


def gen_main(cfg):
    name = NAME + "_kernel"
    s = f""".globl {name}
.p2align 12
.p2align 8
.type {name},@function
{name}:
  s_cmp_ge_u32 s2, 256
  s_cbranch_scc1 L_exit
"""
    if cfg.stamps or cfg.lstamps or cfg.span or cfg.tst:
        s += f"  s_memrealtime s[60:61]\n  s_memtime s[62:63]\n"
    s += f"""
  s_bfe_u32 s{S_BR}, s2, 0x10002
  s_mul_i32 s5, s{S_BR}, 40
  s_add_u32 s8, s0, s5
  s_addc_u32 s9, s1, 0
  s_load_dwordx8 s[64:71], s[8:9], 0      ; x k v wq
  s_load_dwordx2 s[72:73], s[8:9], 32     ; wo
  s_load_dwordx2 s[74:75], s[0:1], 96     ; ws
  s_load_dwordx2 s[92:93], s[0:1], 80     ; out
  v_lshrrev_b32 v1, 6, v0
  s_lshr_b32 s4, s2, 3            ; slot
  s_and_b32 s{S_ROT}, s4, 1
  v_readfirstlane_b32 s{S_W}, v1
  s_and_b32 s91, s2, 3
  s_lshl_b32 s91, s91, 1
  s_add_u32 s91, s91, s{S_ROT}    ; hkv
  {f"s_lshr_b32 s{S_B}, s4, 2" if cfg.remap else f"s_bfe_u32 s{S_B}, s4, 0x30001"}   ; b
  {"s_bfe_u32 s5, s4, 0x10001" if cfg.remap else "s_lshr_b32 s5, s4, 4"}            ; half
  s_lshl_b32 s{S_HP}, s91, 1
  s_add_u32 s{S_HP}, s{S_HP}, s5  ; hp
"""
    if cfg.stamps:
        s += f"""
  s_waitcnt lgkmcnt(0)
  s_lshl_b32 s14, s2, 3
  s_add_u32 s14, s14, s{S_W}
  s_lshl_b32 s14, s14, 6
  s_add_u32 s14, s14, 0x2000000
  s_add_u32 s{S_STB}, s74, s14
  s_addc_u32 s{S_STB+1}, s75, 0
  v_mov_b32 v{V_T0}, s62
  v_mov_b32 v{V_T1}, 0
  global_store_dword v{V_T1}, v{V_T0}, s[{S_STB}:{S_STB+1}]
  v_mov_b32 v{V_T0}, s60
  v_mov_b32 v{V_T1}, 24
  global_store_dword v{V_T1}, v{V_T0}, s[{S_STB}:{S_STB+1}]
  s_waitcnt vmcnt(0)
"""
    s += f"""
  s_cmp_lt_u32 s{S_W}, 4
  s_cbranch_scc1 L_compute
"""
    s += gen_loader(cfg)
    comp = gen_compute(cfg)
    s += ".p2align 12\n" + comp
    s += "L_exit:\n  s_endpgm\nL_code_end:\n"
    s = s.replace("CODE_BYTES", "0x7f80")
    rot = {8: f"  s_lshl_b32 s5, s5, 1\n  s_add_u32 s{S_ROT}, s5, s{S_B}",
           -8: f"  s_mov_b32 s{S_ROT}, s{S_B}",
           4: f"  s_add_u32 s5, s5, s{S_B}\n  s_lshl_b32 s{S_ROT}, s5, 1",
           2: f"  s_add_u32 s5, s5, s{S_B}\n  s_lshl_b32 s{S_ROT}, s5, 2",
           1: f"  s_mov_b32 s{S_ROT}, 0"}[cfg.rot]
    if cfg.ramp:
        sizes = [int(ch) for ch in cfg.ramp]
        tabs = []
        for q in range(8):
            first, o = 0, []
            for n in sizes:
                o.append(first + ((q >> 2) if n == 2 else (q >> 1) if n == 4 else q % n))
                first += n
            o += [c for c in range(8) if c not in o]
            tabs.append(sum(c << (4 * i) for i, c in enumerate(o)))
        rot = f"  s_lshl_b32 s5, s5, 1\n  s_add_u32 s5, s5, s{S_B}\n  s_and_b32 s5, s5, 7\n  s_mov_b32 s{S_ROT}, {hex(tabs[0])}"
        for q in range(1, 8):
            rot += f"\n  s_cmp_eq_u32 s5, {q}\n  s_cselect_b32 s{S_ROT}, {hex(tabs[q])}, s{S_ROT}"
    s = s.replace("%ROT%", rot)
    return s


def gen_reduce(cfg):
    name = "reduce_kernel"
    s = f""".globl {name}
.p2align 8
.type {name},@function
{name}:
  s_cmp_ge_u32 s2, 256
  s_cbranch_scc1 L_rexit
  s_load_dwordx2 s[4:5], s[0:1], 96
  s_load_dwordx2 s[6:7], s[0:1], 80
  s_lshr_b32 s8, s2, 4            ; group
  s_and_b32 s9, s2, 15            ; slice
  s_lshl_b32 s10, s8, 20
  s_lshl_b32 s11, s9, 12
  s_add_u32 s10, s10, s11
  v_lshlrev_b32 v1, 4, v0
  s_mov_b32 s14, 0x100000
  s_mov_b32 s15, 0x20000
  s_mov_b32 s18, 0x100000
  s_mov_b32 s19, 0x20000
  s_waitcnt lgkmcnt(0)
  s_add_u32 s12, s4, s10
  s_addc_u32 s13, s5, 0
  s_mov_b32 s16, s6
  s_mov_b32 s17, s7
"""
    for p in range(16):
        s += f"  s_mov_b32 s20, {p*65536}\n  buffer_load_dwordx4 v[{16+4*p}:{19+4*p}], v1, s[12:15], s20 offen {cfg.red_pol}\n"
    s += """
  s_and_b32 s20, s8, 7
  s_lshl_b32 s20, s20, 17
  s_lshr_b32 s21, s8, 3
  s_lshl_b32 s21, s21, 10
  s_add_u32 s20, s20, s21
  s_and_b32 s21, s9, 1
  s_lshl_b32 s21, s21, 16
  s_add_u32 s20, s20, s21
  s_lshr_b32 s21, s9, 1
  s_lshl_b32 s21, s21, 7
  s_add_u32 s20, s20, s21
  v_and_b32 v2, 31, v0
  v_lshlrev_b32 v2, 11, v2
  v_lshrrev_b32 v3, 5, v0
  v_lshl_add_u32 v2, v3, 4, v2
  s_mov_b32 s22, 0xffff0000
"""
    for p in range(16):
        s += f"  s_waitcnt vmcnt({15-p})\n"
        for j in range(4):
            r = 16 + 4 * p + j
            if p == 0:
                s += f"  v_lshlrev_b32 v{4+2*j}, 16, v{r}\n  v_and_b32 v{5+2*j}, s22, v{r}\n"
            else:
                s += f"  v_lshlrev_b32 v12, 16, v{r}\n  v_and_b32 v13, s22, v{r}\n  v_add_f32 v{4+2*j}, v12, v{4+2*j}\n  v_add_f32 v{5+2*j}, v13, v{5+2*j}\n"
    for j in range(4):
        s += f"  v_cvt_pk_bf16_f32 v{12+j}, v{4+2*j}, v{5+2*j}\n"
    s += """  buffer_store_dwordx4 v[12:15], v2, s[16:19], s20 offen
L_rexit:
  s_endpgm
"""
    return s


def desc(name, nv, ns):
    return f""".p2align 6
.amdhsa_kernel {name}
  .amdhsa_next_free_vgpr {nv}
  .amdhsa_next_free_sgpr {ns}
  .amdhsa_accum_offset {nv}
  .amdhsa_group_segment_fixed_size 0
  .amdhsa_kernarg_size 104
  .amdhsa_user_sgpr_count 2
  .amdhsa_user_sgpr_kernarg_segment_ptr 1
  .amdhsa_system_sgpr_workgroup_id_x 1
.end_amdhsa_kernel
"""


def generate(cfg):
    ref = open("cdna_kernels/%s.s.ref" % NAME).read().split("\n")
    head = [l for l in ref if l.startswith(";") and "@launch" not in l and "Override launch" not in l and "grid=ceil" not in l]
    head = head[:14]
    s = "\n".join(head) + "\n"
    s += f"; @launch grid=(256,1,1) block=(512,1,1) lds=163840\n"
    s += '.amdgcn_target "amdgcn-amd-amdhsa--gfx950"\n.text\n'
    s += gen_main(cfg)
    s += '.section .rodata,"a"\n'
    s += desc(NAME + "_kernel", 256, 102)
    return s


def add_page_stubs(text):
    import subprocess, tempfile, os
    lines = text.split("\n")
    i0 = lines.index("L_compute:")
    i1 = lines.index("L_main_end:")
    iw = next(i for i, l in enumerate(lines) if l.strip() == "%WARM%")
    nwarm = 10
    probe = lines[:iw] + ["  s_nop 0"] * nwarm + lines[iw + 1:]
    d = tempfile.mkdtemp()
    open(d + "/p.s", "w").write("\n".join(probe))
    subprocess.check_call(["clang", "-x", "assembler", "-target", "amdgcn-amd-amdhsa", "-mcpu=gfx950", "-c", d + "/p.s", "-o", d + "/p.o"])
    dis = subprocess.check_output(["llvm-objdump", "-d", "--mcpu=gfx950", d + "/p.o"], text=True).split("\n")
    k = next(i for i, l in enumerate(dis) if l.endswith("<L_compute>:"))
    sizes = [4 * len(l.split("//")[1].split(":")[1].split()) for l in dis[k:] if "//" in l]
    out, addr, n, stubs = probe[:i0 + 1], 0, 0, []
    for l in probe[i0 + 1:i1 + nwarm - 1]:
        t = l.split(";")[0].strip()
        if t and not t.endswith(":"):
            if addr // 4096 > len(stubs):
                stubs.append(len(out))
                out.append(None)
                addr += 4
            addr += sizes[n]
            n += 1
        out.append(l)
    out += probe[i1 + nwarm - 1:]
    ns = len(stubs)
    for j, p in enumerate(stubs):
        tgt = "L_stub%d" % (j + 4) if j + 4 < ns else "L_warm_ret"
        out[p] = "L_stub%d:\n  s_cbranch_execz %s" % (j, tgt)
    warm = ["  s_mov_b64 exec, 0"]
    for w in range(4):
        warm += ["  s_cmp_eq_u32 s%d, %d" % (S_W, w), "  s_cbranch_scc1 %s" % ("L_stub%d" % w if w < ns else "L_warm_ret")]
    warm += ["L_warm_ret:\n  s_mov_b64 exec, -1"]
    out[iw:iw + nwarm] = warm
    return "\n".join(out)


if __name__ == "__main__":
    cfg = Cfg()
    out = sys.argv[1]
    for a in sys.argv[2:]:
        k, v = a.split("=")
        old = getattr(cfg, k)
        if isinstance(old, bool):
            v = v in ("1", "True", "true")
        elif isinstance(old, int):
            v = int(v)
        elif isinstance(old, float):
            v = float(v)
        else:
            v = v.replace("+", " ").replace("/", ",")
        setattr(cfg, k, v)
    txt = generate(cfg)
    if cfg.itlb:
        txt = add_page_stubs(txt)
    open(out, "w").write(txt)
```
